```python
import torch

def _softmax(x, axis=-1):
    return torch.softmax(x, dim=axis)
def _gelu(x):
    return torch.nn.functional.gelu(x, approximate="tanh")
def _silu(x):
    return torch.nn.functional.silu(x)
def _sigmoid(x):
    return torch.sigmoid(x)
def _layernorm(x, axis=-1, eps=1e-5):
    m = x.mean(dim=axis, keepdim=True)
    v = x.var(dim=axis, keepdim=True, unbiased=False)
    return (x - m) / torch.sqrt(v + eps)
def _scatter_add(tgt, idx, src, axis=0):
    return tgt.clone().index_add_(axis, idx, src)
def _segment_sum(src, seg, n):
    out = torch.zeros((n,) + src.shape[1:], dtype=src.dtype)
    return out.index_add_(0, seg, src)
def _pad(x, pw):
    flat = tuple(v for pair in reversed(pw) for v in pair)
    return torch.nn.functional.pad(x, flat)

kernel_name = 'recurrent_scan__sliding_local_dilated__mixer_s_mlp__prompt'

def setup_inputs():

    _w = (lambda a: (lambda t: t.to(torch.bfloat16) if t.is_floating_point() else t)(torch.as_tensor(a)))
    def _A_setup():
        B, S, D = 1, 2048, 640
        return {
            "x": _w((lambda *s: torch.randn(*s, dtype=torch.bfloat16) * 0.05)(B, S, D)),
            "wqkv": _w((lambda *s: torch.randn(*s, dtype=torch.bfloat16) * 0.05)(D, 3 * D)),
            "wo": _w((lambda *s: torch.randn(*s, dtype=torch.bfloat16) * 0.05)(D, D)),
        }
    _A_in = _A_setup()

    def _B_setup():
        B, S, D, F = 1, 2048, 640, 1728
        return {
            "x":  _w((lambda *s: torch.randn(*s, dtype=torch.bfloat16) * 0.05)(B, S, D)),
            "w1": _w((lambda *s: torch.randn(*s, dtype=torch.bfloat16) * 3.2)(D, D) * (D ** -0.5)),
            "w2": _w((lambda *s: torch.randn(*s, dtype=torch.bfloat16) * 3.2)(D, D) * (D ** -0.5)),
            "w3": _w((lambda *s: torch.randn(*s, dtype=torch.bfloat16) * 3.2)(D, F) * (D ** -0.5)),
            "w4": _w((lambda *s: torch.randn(*s, dtype=torch.bfloat16) * 3.2)(F, D) * (F ** -0.5)),
        }
    _B_in = _B_setup()

    return {
        "A_x": _A_in["x"],
        "A_wqkv": _A_in["wqkv"],
        "A_wo": _A_in["wo"],
        "B_x": _B_in["x"],
        "B_w1": _B_in["w1"],
        "B_w2": _B_in["w2"],
        "B_w3": _B_in["w3"],
        "B_w4": _B_in["w4"],
    }

def reference(A_x, A_wqkv, A_wo, B_x, B_w1, B_w2, B_w3, B_w4):
    def _A_ref(x, wqkv, wo):
        B, S, D = x.shape
        H = 32; Dh = D // H
        W, dil = 8, 2
        qkv = (lambda x, *d: x.permute(*d))((x @ wqkv).reshape(B, S, 3, H, Dh), 2, 0, 3, 1, 4)
        q, k, v = qkv[0], qkv[1], qkv[2]
        scale = Dh ** -0.5
        pos = torch.arange(S)
        off = torch.arange(W) * dil
        idx = pos[:, None] - off[None, :]
        mask = idx >= 0
        idx_c = torch.where(mask, idx, 0).reshape(-1)
        kg = k[:, :, idx_c, :].reshape(B, H, S, W, Dh)
        vg = v[:, :, idx_c, :].reshape(B, H, S, W, Dh)
        logits = torch.einsum("bhsd,bhswd->bhsw", q, kg) * scale
        logits = torch.where(mask[None, None, :, :], logits, -1e9)
        attn = _softmax(logits, axis=-1)
        o = torch.einsum("bhsw,bhswd->bhsd", attn, vg)
        return (lambda x, *d: x.permute(*d))(o, 0, 2, 1, 3).reshape(B, S, D) @ wo

    def _B_ref(x, w1, w2, w3, w4):
        B, S, D = x.shape
        h = _gelu(_layernorm(x, axis=-1) @ w1)
        c = D // 4
        g0 = _pad(h[:, :, 0*c:1*c], ((0, 0), (1, 0), (0, 0)))[:, :S, :]
        g1 = _pad(h[:, :, 1*c:2*c], ((0, 0), (0, 1), (0, 0)))[:, 1:, :]
        g2 = _pad(h[:, :, 2*c:3*c], ((0, 0), (2, 0), (0, 0)))[:, :S, :]
        g3 = _pad(h[:, :, 3*c:   ], ((0, 0), (0, 2), (0, 0)))[:, 2:, :]
        hs = torch.concatenate([g0, g1, g2, g3], axis=-1) @ w2
        x1 = x + hs
        h2 = _gelu(_layernorm(x1, axis=-1) @ w3) @ w4
        return x1 + h2

    x = A_x
    xn = _layernorm(x, axis=-1)
    s = _A_ref(xn, A_wqkv, A_wo)
    g = _silu(_B_ref(xn, B_w1, B_w2, B_w3, B_w4))
    return x + s * g
```

```python
import sys, struct
NAME = "recurrent_scan__sliding_local_dilated__mixer_s_mlp__prompt"
def f2u(x): return struct.unpack("<I", struct.pack("<f", x))[0]
def hx(x): return "0x%x" % (x & 0xffffffff)

QF, KF, VF, HF = 0x0, 0x280000, 0x500000, 0x780000
X1F, OF, TF = 0xA00000, 0xC80000, 0xF00000
W2P, WOP, W3P, W4P = 0x1600000, 0x16C8000, 0x1790000, 0x19C0000
STAT, PST, CNT = 0x1C00000, 0x1C10000, 0x1C40000
WS_REC = 0x2000000
STAMP_OFF = 0x8000000
C_PK, C_H, C_QKV, C_X1, C_O, C_T = 0, 16, 32, 48, 64, 80
SLOT, WOFF, MISC = 36864, 16384, 147456
PL = "sc1"

class G:
    def __init__(s, opt):
        s.L = []; s.o = opt; s.nlab = 0; s.nstamp = {}
    def e(s, t):
        for x in t.split("\n"): s.L.append("    " + x.strip() if not x.strip().endswith(":") else x.strip())
    def lab(s, p="L"):
        s.nlab += 1; return f"{p}{s.nlab}"
    def stamp(s, role):
        if not s.o.get("stamps"): return
        i = s.nstamp.get(role, 0); s.nstamp[role] = i + 1
        assert i < 14
        s.e(f"s_memrealtime s[{72+2*i}:{73+2*i}]")
    def dump_stamps(s, role, slot):
        if not s.o.get("stamps"): return
        n = s.nstamp.get(role, 0)
        s.e(f"s_waitcnt lgkmcnt(0)\ns_add_u32 s52, s52, {hx(STAMP_OFF)}\ns_addc_u32 s53, s53, 0")
        s.e(f"s_mul_i32 s3, s2, 224\ns_add_u32 s3, s3, {slot*112}\nv_mov_b32 v2, s3\ns_mov_b64 exec, 1")
        for i in range(14):
            j = min(i, n - 1)
            s.e(f"v_mov_b32 v4, s{72+2*j}\nv_mov_b32 v5, s{73+2*j}\nglobal_store_dwordx2 v2, v[4:5], s[52:53] offset:{8*i}\ns_nop 1")
        s.e("s_mov_b64 exec, -1")
    def poll(s, vaddr, vexp, vtmp):
        l0, l1 = s.lab("Lpoll"), s.lab("Lpollx")
        s.e(f"s_mov_b32 s31, 0\n{l0}:")
        s.e(f"buffer_load_dword {vtmp}, {vaddr}, s[8:11], 0 offen sc0 sc1")
        s.e(f"s_add_u32 s31, s31, 1\ns_cmp_gt_u32 s31, 400000\ns_cbranch_scc1 {l1}")
        s.e(f"s_waitcnt vmcnt(0)\nv_cmp_lt_u32 vcc, {vtmp}, {vexp}\ns_cbranch_vccnz {l0}\n{l1}:\ns_waitcnt vmcnt(0)")
    def poll2(s, sa, sb, exp, va="v4", vb="v5", vc="v6"):
        s.e(f"s_lshl_b32 s29, {sa}, 7\ns_lshl_b32 s30, {sb}, 7\nv_mov_b32 {va}, s29\nv_mov_b32 {vb}, s30")
        s.e(f"s_mov_b32 vcc_lo, 0xaaaaaaaa\ns_mov_b32 vcc_hi, 0xaaaaaaaa\ns_nop 0\nv_cndmask_b32 {va}, {va}, {vb}, vcc")
        s.e(f"v_add_u32 {va}, {hx(CNT)}, {va}\nv_mov_b32 {vb}, {exp}")
        s.poll(va, vb, vc)
    def signal(s, sidx, vt="v4"):
        s.e(f"s_lshl_b32 s29, {sidx}, 7\ns_add_u32 s29, s29, {hx(CNT)}\nv_mov_b32 {vt}, 1")
        s.e(f"s_mov_b64 exec, 1\nbuffer_atomic_add {vt}, off, s[8:11], s29 sc1\ns_mov_b64 exec, -1")
    def sdiv(s, dst, src, d, maxv):
        sh = 16; m = (1 << sh) // d + 1
        assert all((x * m) >> sh == x // d for x in range(maxv)), (d, maxv)
        s.e(f"s_mul_i32 {dst}, {src}, {m}\ns_lshr_b32 {dst}, {dst}, {sh}")
    def redg(s, v, t, op):
        s.e(f"v_mov_b32 {t}, {v}\ns_nop 1\nv_permlane32_swap_b32 {t}, {v}\n{op} {v}, {v}, {t}")
        s.e(f"v_mov_b32 {t}, {v}\ns_nop 1\nv_permlane16_swap_b32 {t}, {v}\n{op} {v}, {v}, {t}")

def R(b, n=4): return f"v[{b}:{b+n-1}]"
MF = "v_mfma_f32_16x16x32_bf16"
MF16 = "v_mfma_f32_16x16x16_bf16"
JOBS = [("J1", 10), ("J2", 5), ("J3", 10), ("J4", 5), ("J5", 14)]

def interleave(a, b):
    out = []; na, nb = len(a), len(b); j = 0
    for i, x in enumerate(a):
        out.append(x)
        while j < nb and (j + 1) * na <= (i + 1) * nb: out.append(b[j]); j += 1
    return out + b[j:]

GELU_C0 = -2 * 0.7978845608028654 * 1.4426950408889634
GELU_C1 = GELU_C0 * 0.044715
def gelu_pairs(g, regs, t0):
    c0 = R(t0 + 8, 2)
    for k in range(0, len(regs), 4):
        grp = regs[k:k + 4]
        T = [t0 + 2 * i for i in range(len(grp))]
        for y, t in zip(grp, T): g.e(f"v_pk_mul_f32 {R(t,2)}, {R(y,2)}, {R(y,2)}")
        for y, t in zip(grp, T): g.e(f"v_pk_fma_f32 {R(t,2)}, {R(t,2)}, s[54:55], {c0}")
        for y, t in zip(grp, T): g.e(f"v_pk_mul_f32 {R(t,2)}, {R(t,2)}, {R(y,2)}")
        for y, t in zip(grp, T): g.e(f"v_exp_f32 v{t}, v{t}\nv_exp_f32 v{t+1}, v{t+1}")
        if len(grp) < 2: g.e("s_nop 0")
        for y, t in zip(grp, T): g.e(f"v_pk_add_f32 {R(t,2)}, {R(t,2)}, 1.0 op_sel_hi:[1,0]")
        for y, t in zip(grp, T): g.e(f"v_rcp_f32 v{t}, v{t}\nv_rcp_f32 v{t+1}, v{t+1}")
        if len(grp) < 2: g.e("s_nop 0")
        for y, t in zip(grp, T): g.e(f"v_pk_mul_f32 {R(y,2)}, {R(y,2)}, {R(t,2)}")

def prologue(g):
    e = g.e; o = g.o
    e("s_cmp_ge_u32 s2, 256\ns_cbranch_scc1 Lend")
    g.stamp("c"); g.nstamp["x"] = g.nstamp.get("c", 0)
    e("s_load_dwordx16 s[32:47], s[0:1], 0\ns_load_dwordx4 s[48:51], s[0:1], 64\ns_load_dwordx2 s[52:53], s[0:1], 80")
    e("v_lshrrev_b32 v2, 6, v0\nv_and_b32 v1, 63, v0\ns_and_b32 s29, s2, 7\ns_lshr_b32 s30, s2, 3\nv_readfirstlane_b32 s22, v2")
    e("s_lshl_b32 s25, s29, 1\ns_lshr_b32 s3, s30, 4\ns_add_u32 s25, s25, s3\ns_and_b32 s26, s30, 15")
    e("s_lshl_b32 s27, s25, 1\ns_lshr_b32 s3, s26, 3\ns_add_u32 s27, s27, s3\ns_and_b32 s28, s26, 7")
    if o.get("map1", 1) == 1:
        e("s_lshr_b32 s23, s29, 1\ns_lshl_b32 s23, s23, 2\ns_lshr_b32 s3, s30, 3\ns_add_u32 s23, s23, s3")
        e("s_and_b32 s24, s30, 7\ns_lshl_b32 s24, s24, 1\ns_and_b32 s3, s29, 1\ns_add_u32 s24, s24, s3")
    else:
        e("s_mov_b32 s23, s25\ns_mov_b32 s24, s26")
    e("s_mov_b32 s6, 2621440\ns_mov_b32 s7, 0x20000\ns_mov_b32 s10, %s\ns_mov_b32 s11, 0x20000" % hx(WS_REC))
    e("s_mov_b32 s15, 0x20000\ns_mov_b32 s18, 2621440\ns_mov_b32 s19, 0x20000")
    e("s_waitcnt lgkmcnt(0)")
    e("s_mov_b32 s4, s32\ns_mov_b32 s5, s33\ns_mov_b32 s8, s52\ns_mov_b32 s9, s53\ns_mov_b32 s16, s48\ns_mov_b32 s17, s49")
    e("s_mov_b32 s14, 2457600\ns_mov_b32 s21, %d\ns_cmp_ge_u32 s24, 12\ns_cselect_b64 s[12:13], s[40:41], s[34:35]\ns_cselect_b32 s14, 819200, s14" % SLOT + "")
    e("s_cmp_ge_u32 s22, 6\ns_cbranch_scc1 Lwload\ns_cmp_ge_u32 s22, 4\ns_cbranch_scc1 Lxload")

def packer(g):
    e = g.e
    e("s_or_b32 s3, s2, s22\ns_cmp_lg_u32 s3, 0\ns_cbranch_scc1 Lnoinit")
    e(f"v_lshlrev_b32 v2, 7, v1\nv_mov_b32 v3, 0\ns_mov_b32 s3, {hx(CNT)}\nbuffer_store_dword v3, v2, s[8:11], s3 offen sc0 sc1")
    e(f"s_mov_b32 s3, {hx(CNT+8192)}\nbuffer_store_dword v3, v2, s[8:11], s3 offen sc0 sc1\ns_waitcnt vmcnt(0)")
    e("v_mov_b32 v2, 1\nglobal_store_dword v3, v2, s[50:51] sc0 sc1\nLnoinit:")
    e("s_lshl_b32 s56, s2, 2\ns_add_u32 s56, s56, s22")
    e(f"s_lshl_b32 s57, s22, 12\ns_add_u32 s57, s57, {MISC}")
    e("v_lshrrev_b32 v2, 5, v1\nv_bfe_u32 v3, v1, 3, 2\nv_and_b32 v4, 7, v1\nv_lshlrev_b32 v4, 4, v4")
    e("v_lshrrev_b32 v5, 4, v1\nv_lshlrev_b32 v5, 3, v5\nv_bfe_u32 v6, v1, 2, 2\nv_add_u32 v5, v5, v6\nv_lshlrev_b32 v5, 7, v5\nv_add_u32 v5, s57, v5\nv_and_b32 v6, 3, v1")
    e("v_lshlrev_b32 v7, 4, v1")
    e("Lpk_loop:")
    e("s_cmp_ge_u32 s56, 940\ns_cbranch_scc1 Lpk_w3")
    e("s_mov_b32 s66, 0\ns_mov_b32 s60, 1280\ns_cmp_ge_u32 s56, 400\ns_cbranch_scc1 Lpk_w4")
    e("s_mov_b32 s65, 100\ns_mov_b32 s14, 819200\ns_cmp_ge_u32 s56, 200\ns_cbranch_scc1 Lpk_wo")
    e(f"s_mov_b64 s[12:13], s[42:43]\ns_mov_b32 s64, {hx(W2P)}\ns_mov_b32 s3, s56\ns_branch Lpk_acc10")
    e(f"Lpk_w4:\ns_mov_b64 s[12:13], s[46:47]\ns_mov_b32 s14, 2211840\ns_mov_b32 s64, {hx(W4P)}\ns_mov_b32 s65, 270\ns_sub_u32 s3, s56, 400")
    e("Lpk_acc10:"); g.sdiv("s58", "s3", 10, 600)
    e("s_mul_i32 s59, s58, 10\ns_sub_u32 s59, s3, s59\ns_lshl_b32 s61, s58, 5\ns_mov_b32 s62, 16\ns_mov_b32 s63, 4\ns_branch Lpk_go")
    e(f"Lpk_wo:\ns_mov_b64 s[12:13], s[36:37]\ns_mov_b32 s64, {hx(WOP)}\ns_sub_u32 s3, s56, 200")
    g.sdiv("s58", "s3", 10, 600)
    e("s_mul_i32 s59, s58, 10\ns_sub_u32 s59, s3, s59"); g.sdiv("s29", "s58", 5, 64)
    e("s_mul_i32 s30, s29, 5\ns_sub_u32 s30, s58, s30\ns_mul_i32 s61, s29, 160\ns_mul_i32 s3, s30, 40\ns_cmp_eq_u32 s30, 4")
    e("s_cselect_b32 s3, 16, s3\ns_cselect_b32 s62, 80, 20\ns_cselect_b32 s63, 20, 4\ns_add_u32 s61, s61, s3\ns_branch Lpk_go")
    e(f"Lpk_w3:\ns_mov_b64 s[12:13], s[44:45]\ns_mov_b32 s14, 2211840\ns_mov_b32 s64, {hx(W3P)}\ns_mov_b32 s65, 140\ns_mov_b32 s66, 1\ns_mov_b32 s60, 3456\ns_sub_u32 s3, s56, 940")
    g.sdiv("s58", "s3", 27, 600)
    e("s_mul_i32 s59, s58, 27\ns_sub_u32 s59, s3, s59"); g.sdiv("s29", "s58", 5, 64)
    e("s_mul_i32 s30, s29, 5\ns_sub_u32 s30, s58, s30\ns_lshl_b32 s61, s58, 5\ns_cmp_eq_u32 s30, 4\ns_cselect_b32 s62, 16, 4\ns_cselect_b32 s63, 4, 8")
    e("Lpk_go:")
    e("v_mul_lo_u32 v8, v2, s62\nv_add_u32 v8, v8, v3\nv_mul_lo_u32 v8, v8, s60\nv_add_u32 v8, v8, v4")
    e("s_mul_i32 s67, s61, s60\ns_lshl_b32 s3, s59, 7\ns_add_u32 s67, s67, s3\ns_mul_i32 s68, s63, s60")
    for d in range(4):
        e(f"s_add_u32 m0, s57, {d*1024}\ns_nop 0\nbuffer_load_dwordx4 v8, s[12:15], s67 offen lds")
        if d < 3: e("s_add_u32 s67, s67, s68")
    for fbl in range(2):
        lw3, ldn = g.lab("Lpkd"), g.lab("Lpkd")
        e(f"s_lshl_b32 s3, s59, 1\ns_add_u32 s3, s3, {fbl}\ns_cmp_lg_u32 s66, 0\ns_cbranch_scc1 {lw3}")
        g.sdiv("s29", "s3", 5, 64)
        e("s_mul_i32 s30, s29, 5\ns_sub_u32 s30, s3, s30\ns_lshl_b32 s29, s29, 1")
        e("s_lshr_b32 s3, s30, 1\ns_and_b32 s31, s30, 1\ns_lshl_b32 s31, s31, 1\ns_cmp_eq_u32 s30, 4")
        e("s_cselect_b32 s3, 0, s3\ns_cselect_b32 s31, 4, s31\ns_cselect_b32 s70, s65, 1\ns_cselect_b32 s71, 8, 16\ns_cselect_b32 s30, 32, 8")
        e("s_add_u32 s29, s29, s3\ns_mul_i32 s29, s29, s65\ns_mul_i32 s3, s58, 5")
        e(f"s_branch {ldn}\n{lw3}:")
        g.sdiv("s29", "s3", 7, 64)
        e("s_mul_i32 s30, s29, 7\ns_sub_u32 s30, s3, s30\ns_lshl_b32 s29, s29, 1")
        e("s_lshr_b32 s3, s30, 2\ns_and_b32 s31, s30, 3\ns_lshl_b32 s31, s31, 1\ns_cmp_eq_u32 s30, 3")
        e("s_cselect_b32 s70, s65, 1\ns_mov_b32 s71, 8\ns_mov_b32 s30, 32")
        e("s_add_u32 s29, s29, s3\ns_mul_i32 s29, s29, s65\ns_mul_i32 s3, s58, 7")
        e(f"{ldn}:")
        e("s_add_u32 s29, s29, s3\ns_add_u32 s29, s29, s31\ns_add_u32 s70, s70, s29")
        e(f"s_lshl_b32 s29, s29, 10\ns_lshl_b32 s70, s70, 10\ns_add_u32 s{100-2*fbl}, s29, s64\ns_add_u32 s{101-2*fbl}, s70, s64")
        e(f"v_mul_lo_u32 v{10+2*fbl}, v6, s71\nv_add_u32 v{10+2*fbl}, v{10+2*fbl}, v5\nv_add_u32 v{11+2*fbl}, s30, v{10+2*fbl}")
    l0, l1 = g.lab("Lini"), g.lab("Linix")
    e(f"v_mov_b32 v15, 0\ns_mov_b32 s31, 0\n{l0}:\nglobal_load_dword v14, v15, s[50:51] sc0 sc1")
    e(f"s_add_u32 s31, s31, 1\ns_cmp_gt_u32 s31, 400000\ns_cbranch_scc1 {l1}")
    e(f"s_waitcnt vmcnt(0)\nv_cmp_eq_u32 vcc, 0, v14\ns_cbranch_vccnz {l0}\n{l1}:\ns_waitcnt vmcnt(0)")
    for q in range(4):
        e(f"ds_read_b64_tr_b16 {R(16+4*q,2)}, v{10+q} offset:{64*(q//2)}\nds_read_b64_tr_b16 {R(18+4*q,2)}, v{10+q} offset:{64*(q//2)+512}")
    e("s_waitcnt lgkmcnt(0)")
    for q in range(4):
        e(f"buffer_store_dwordx4 {R(16+4*q)}, v7, s[8:11], s{100-2*(q//2)+(q%2)} offen {PL}")
    e("s_add_u32 s56, s56, 1024\ns_cmp_lt_u32 s56, 1480\ns_cbranch_scc1 Lpk_loop")

def slot_adv(g, regs, scnt="s57"):
    g.e(f"s_add_u32 {scnt}, {scnt}, 1\ns_and_b32 {scnt}, {scnt}, 3\ns_cselect_b32 s3, s21, {hx(-3*SLOT)}")
    return [f"v_add_u32 v{r}, s3, v{r}" for r in regs]

ACC, SUM, SQ, CS, ONES = 64, 144, 160, 176, 196
def j1_consumer(g):
    e = g.e
    XA, WA, XB, WB = 200, 216, 8, 24
    e("s_lshr_b32 s58, s22, 1\ns_and_b32 s59, s22, 1\ns_xor_b32 s60, s58, s59")
    e("v_and_b32 v4, 15, v1\nv_lshrrev_b32 v5, 4, v1")
    e("s_lshl_b32 s3, s60, 2\nv_add_u32 v6, s3, v5\nv_lshrrev_b32 v7, 1, v4\nv_xor_b32 v6, v6, v7\nv_lshlrev_b32 v6, 4, v6")
    e("s_lshl_b32 s3, s58, 13\nv_lshlrev_b32 v7, 7, v4\nv_add3_u32 v2, v6, v7, s3\nv_xor_b32 v3, 64, v2")
    e("s_cmp_ge_u32 s24, 12\ns_cselect_b32 s61, 32, 40\ns_cselect_b32 s62, 8, 40\ns_cselect_b32 s63, 32, 160\ns_cselect_b32 s3, 256, 32")
    e("s_mul_i32 s63, s63, s59\ns_add_u32 s63, s63, s3")
    e("v_lshlrev_b32 v6, 3, v5\nv_bfe_u32 v7, v1, 2, 2\nv_add_u32 v6, v6, v7\nv_mul_u32_u24 v6, 320, v6")
    e("v_and_b32 v7, 3, v1\nv_and_b32 v54, 1, v5\nv_lshlrev_b32 v54, 5, v54")
    e(f"s_mul_i32 s64, s60, 10240\ns_add_u32 s64, s64, {WOFF}\ns_sub_u32 s65, {2*WOFF+10240}, s64")
    for nt in range(5):
        if nt < 4:
            e(f"s_lshl_b32 s3, s59, 2\ns_add_u32 s3, s3, {nt}\ns_mul_i32 s3, s3, s61\nv_lshlrev_b32 v55, 3, v7\nv_add_u32 v55, s3, v55")
        else:
            e("v_mul_lo_u32 v55, v7, s62\nv_add_u32 v55, s63, v55")
        e(f"v_xor_b32 v55, v55, v54\nv_add_u32 v55, v55, v6\nv_add_u32 v{44+nt}, s64, v55\nv_add_u32 v{49+nt}, s65, v55")
    for r in range(ACC, ONES): e(f"v_mov_b32 v{r}, 0")
    for r in range(ONES, ONES + 4): e(f"v_mov_b32 v{r}, 0x3f803f80")
    for r in range(XB, WB + 20): e(f"v_mov_b32 v{r}, 0")
    e("s_mov_b32 s57, 0\ns_mov_b32 s56, 0")
    def reads(xa, wa0, X, W):
        L = []
        for rt in range(4): L.append(f"ds_read_b128 {R(X+4*rt)}, v{xa} offset:{rt*2048}")
        for nt in range(5):
            L.append(f"ds_read_b64_tr_b16 {R(W+4*nt,2)}, v{wa0+nt}")
            L.append(f"ds_read_b64_tr_b16 {R(W+4*nt+2,2)}, v{wa0+nt} offset:1280")
        return L
    def mf(X, W, vt, phaseA):
        L = []
        for nt in range(5):
            for rt in range(4):
                a, b = (R(X+4*rt), R(W+4*nt)) if vt else (R(W+4*nt), R(X+4*rt))
                L.append(f"{MF} {R(ACC+(rt*5+nt)*4)}, {a}, {b}, {R(ACC+(rt*5+nt)*4)}")
            if not phaseA: L.append(f"{MF} {R(CS+4*nt)}, {R(ONES)}, {R(W+4*nt)}, {R(CS+4*nt)}")
        if phaseA:
            for rt in range(4):
                L.append(f"{MF} {R(SUM+4*rt)}, {R(ONES)}, {R(X+4*rt)}, {R(SUM+4*rt)}")
                L.append(f"{MF} {R(SQ+4*rt)}, {R(X+4*rt)}, {R(X+4*rt)}, {R(SQ+4*rt)}")
        return L
    e("s_lshr_b32 s3, s24, 2\ns_cmp_eq_u32 s3, 2\ns_cbranch_scc1 Lj1v")
    NPRE = g.o.get("j1pre", 8)
    for vt in (0, 1):
        lp = "Lj1v" if vt else "Lj1n"
        e(f"{lp}:\ns_barrier")
        mB = mf(XB, WB, vt, False)
        for x in interleave(mB[NPRE:], reads(2, 44, XA, WA)): e(x)
        e("s_waitcnt lgkmcnt(0)")
        mA = mf(XA, WA, vt, True)
        for x in interleave(mA[:20], reads(3, 49, XB, WB)): e(x)
        adv = slot_adv(g, [2, 3] + list(range(44, 54)))
        for x in interleave(mA[20:], adv): e(x)
        e("s_waitcnt lgkmcnt(0) vmcnt(0)")
        for x in mB[:NPRE]: e(x)
        e(f"s_add_u32 s56, s56, 1\ns_cmp_lt_u32 s56, 10\ns_cbranch_scc1 {lp}")
        for x in mB[NPRE:]: e(x)
        if not vt: e("s_branch Lj1done")
    e("Lj1done:")
    g.stamp("c")
    e(f"s_lshl_b32 s3, s59, 9\ns_lshl_b32 s29, s58, 8\ns_add_u32 s3, s3, s29\ns_add_u32 s3, s3, {MISC}\nv_lshlrev_b32 v6, 2, v4\nv_add_u32 v6, s3, v6")
    e(f"s_mul_i32 s3, s58, 640\ns_mul_i32 s29, s59, 320\ns_add_u32 s3, s3, s29\ns_add_u32 s3, s3, {MISC+2048}\nv_lshlrev_b32 v7, 2, v4\nv_add_u32 v7, s3, v7")
    e("s_mov_b32 s60, 0x22222222\ns_mov_b32 s61, s60\ns_mov_b32 s62, 0x44444444\ns_mov_b32 s63, s62\ns_mov_b32 s64, 0x88888888\ns_mov_b32 s65, s64\ns_nop 3")
    for rt in range(4):
        q = SQ + 4 * rt
        e(f"v_cndmask_b32 v{q}, v{q}, v{q+1}, s[60:61]\nv_cndmask_b32 v{q}, v{q}, v{q+2}, s[62:63]\nv_cndmask_b32 v{q}, v{q}, v{q+3}, s[64:65]")
    e("s_mov_b32 exec_lo, 0x00f0000f\ns_mov_b32 exec_hi, 0xf0000f00")
    for rt in range(4):
        e(f"ds_write_b32 v6, v{SUM+4*rt} offset:{64*rt}\nds_write_b32 v6, v{SQ+4*rt} offset:{1024+64*rt}")
    for nt in range(5): e(f"ds_write_b32 v7, v{CS+4*nt} offset:{64*nt}")
    e("s_mov_b64 exec, -1\ns_waitcnt lgkmcnt(0)\ns_barrier")
    e("s_lshr_b32 s61, s24, 2\ns_and_b32 s62, s24, 3")
    e(f"s_mul_i32 s60, s61, {KF}\ns_mul_i32 s3, s62, 5120\ns_add_u32 s60, s60, s3\ns_lshl_b32 s3, s59, 11\ns_add_u32 s63, s60, s3")
    e("s_lshl_b32 s3, s59, 3\ns_add_u32 s64, s60, s3\ns_add_u32 s64, s64, 4096")
    e("s_lshl_b32 s65, s23, 7\ns_lshl_b32 s3, s58, 6\ns_add_u32 s65, s65, s3")
    inv = hx(f2u(1.0 / 640)); eps = hx(f2u(1e-5))
    e(f"s_mov_b32 s66, {inv}\ns_mov_b32 s67, {eps}")
    e("s_cmp_eq_u32 s61, 2\ns_cbranch_scc1 Lj1ev")
    e(f"s_lshl_b32 s3, s58, 8\ns_add_u32 s3, s3, {MISC}\nv_lshlrev_b32 v6, 2, v4\nv_add_u32 v6, s3, v6")
    e(f"s_mul_i32 s3, s59, 320\ns_add_u32 s3, s3, {MISC+2048}\nv_lshlrev_b32 v7, 4, v5\nv_add_u32 v7, s3, v7")
    for rt in range(4):
        e(f"ds_read2_b32 {R(8+4*rt,2)}, v6 offset0:{16*rt} offset1:{128+16*rt}")
        e(f"ds_read_b32 v{10+4*rt}, v6 offset:{1024+64*rt}\nds_read_b32 v{11+4*rt}, v6 offset:{1536+64*rt}")
    for nt in range(5):
        e(f"ds_read_b128 {R(144+4*nt)}, v7 offset:{64*nt}\nds_read_b128 {R(164+4*nt)}, v7 offset:{640+64*nt}")
    e("s_lshr_b32 s3, s62, 1\ns_add_u32 s3, s3, 1\ns_sub_u32 s29, 0, s3\ns_bitcmp1_b32 s62, 0\ns_cselect_b32 s3, s29, s3\ns_cmp_eq_u32 s61, 3\ns_cselect_b32 s68, s3, 0")
    e("s_add_u32 s3, s65, s68\nv_add_u32 v24, s3, v4\ns_movk_i32 s69, 0x5000")
    for rt in range(4):
        e(f"v_add_u32 v25, {16*rt}, v24\nv_and_b32 v26, 0x7ff, v25\nv_cmp_eq_u32 s[{70+0}:{71}], v25, v26" if False else
          f"v_add_u32 v25, {16*rt}, v24\nv_and_b32 v26, 0x7ff, v25\nv_cmp_eq_u32 vcc, v25, v26")
        e(f"v_lshrrev_b32 v25, 4, v26\nv_and_b32 v26, 15, v26\nv_cndmask_b32 v{32+rt}, 0, 1.0, vcc")
        e(f"v_mul_lo_u32 v25, v25, s69\nv_lshl_add_u32 v26, v5, 4, v26\nv_lshl_add_u32 v{28+rt}, v26, 4, v25")
    e("s_waitcnt lgkmcnt(0)")
    for rt in range(4):
        b = 8 + 4 * rt
        e(f"v_add_f32 v{b}, v{b}, v{b+1}\nv_add_f32 v{b+2}, v{b+2}, v{b+3}\nv_mul_f32 v{b}, s66, v{b}\nv_mul_f32 v{b+2}, s66, v{b+2}")
        e(f"v_fma_f32 v{b+2}, -v{b}, v{b}, v{b+2}\nv_max_f32 v{b+2}, 0, v{b+2}\nv_add_f32 v{b+3}, s67, v{b+2}\nv_rsq_f32 v{b+1}, v{b+3}")
    for i in range(10): e(f"v_pk_add_f32 {R(144+2*i,2)}, {R(144+2*i,2)}, {R(164+2*i,2)}")
    e("s_cmp_lg_u32 s24, 12\ns_cbranch_scc1 Lj1nost\ns_cmp_lg_u32 s59, 0\ns_cbranch_scc1 Lj1nost")
    e(f"s_lshl_b32 s3, s65, 3\ns_add_u32 s3, s3, {hx(STAT)}\nv_lshlrev_b32 v6, 3, v4\ns_mov_b64 exec, 0xffff")
    for rt in range(4): e(f"buffer_store_dwordx2 {R(8+4*rt,2)}, v6, s[8:11], s3 offen offset:{128*rt} {PL}")
    e("s_mov_b64 exec, -1\nLj1nost:")
    e("s_cmp_lg_u32 s61, 3\ns_cbranch_scc1 Lj1nh")
    for rt in range(4):
        b = 8 + 4 * rt
        e(f"v_mul_f32 v{b+3}, v{b+1}, v{b+1}\nv_fma_f32 v{b+3}, v{b+3}, v{b+2}, s67\nv_rsq_f32 v{b+3}, v{b+3}\nv_mul_f32 v{b+2}, v{b+1}, v{32+rt}\nv_mul_f32 v{b+3}, v{b+2}, v{b+3}")
        e(f"v_mov_b32 v{b+2}, v{b}\n")
    e("s_branch Lj1nh2\nLj1nh:")
    for rt in range(4):
        b = 8 + 4 * rt
        e(f"v_mov_b32 v{b+2}, v{b}\nv_mov_b32 v{b+3}, v{b+1}")
    e("Lj1nh2:")
    e(f"s_mov_b32 s54, {hx(f2u(GELU_C1))}\ns_mov_b32 s55, s54\nv_mov_b32 v44, {hx(f2u(GELU_C0))}\nv_mov_b32 v45, v44")
    for rt in range(4):
        b = 8 + 4 * rt
        for nt in range(5):
            for h in range(2):
                a = ACC + (rt * 5 + nt) * 4 + 2 * h
                e(f"v_pk_fma_f32 {R(a,2)}, {R(144+4*nt+2*h,2)}, {R(b+2,2)}, {R(a,2)} op_sel_hi:[1,0,1] neg_lo:[1,0,0] neg_hi:[1,0,0]")
        for nt in range(5):
            for h in range(2):
                a = ACC + (rt * 5 + nt) * 4 + 2 * h
                e(f"v_pk_mul_f32 {R(a,2)}, {R(a,2)}, {R(b+2,2)} op_sel:[0,1] op_sel_hi:[1,1]")
        sk = g.lab("Lsk")
        e(f"s_cmp_lg_u32 s61, 3\ns_cbranch_scc1 {sk}")
        gelu_pairs(g, [ACC + rt * 20 + 2 * i for i in range(10)], 36)
        e(f"{sk}:")
        store_tile(g, ACC + rt * 20, 200 + 12 * (rt % 2), f"v{28+rt}", "s63", "s64", 0)
    e("s_branch Lj1pub")
    e("Lj1ev:")
    e(f"s_lshl_b32 s3, s58, 8\ns_add_u32 s3, s3, {MISC}\nv_lshlrev_b32 v6, 4, v5\nv_add_u32 v6, s3, v6")
    e(f"s_mul_i32 s3, s59, 320\ns_add_u32 s3, s3, {MISC+2048}\nv_lshlrev_b32 v7, 2, v4\nv_add_u32 v7, s3, v7")
    for rt in range(4):
        e(f"ds_read_b128 {R(144+16*rt)}, v6 offset:{64*rt}\nds_read_b128 {R(148+16*rt)}, v6 offset:{512+64*rt}")
        e(f"ds_read_b128 {R(152+16*rt)}, v6 offset:{1024+64*rt}\nds_read_b128 {R(156+16*rt)}, v6 offset:{1536+64*rt}")
    for nt in range(5): e(f"ds_read2_b32 {R(8+2*nt,2)}, v7 offset0:{16*nt} offset1:{160+16*nt}")
    e("s_lshr_b32 s3, s65, 4\ns_mul_i32 s3, s3, 20480\nv_lshlrev_b32 v28, 4, v1\nv_add_u32 v28, s3, v28")
    for rt in range(1, 4): e(f"v_add_u32 v{28+rt}, {20480*rt}, v28")
    e("s_waitcnt lgkmcnt(0)")
    for nt in range(5): e(f"v_add_f32 v{8+2*nt}, v{8+2*nt}, v{9+2*nt}")
    for rt in range(4):
        for r in range(4):
            m, q = 144 + 16 * rt + r, 152 + 16 * rt + r
            e(f"v_add_f32 v{m}, v{m}, v{m+4}\nv_add_f32 v{q}, v{q}, v{q+4}\nv_mul_f32 v{m}, s66, v{m}\nv_mul_f32 v{q}, s66, v{q}")
            e(f"v_fma_f32 v{q}, -v{m}, v{m}, v{q}\nv_max_f32 v{q}, 0, v{q}\nv_add_f32 v{q}, s67, v{q}\nv_rsq_f32 v{q}, v{q}")
    e("s_nop 0")
    for rt in range(4):
        for nt in range(5):
            for h in range(2):
                a = ACC + (rt * 5 + nt) * 4 + 2 * h
                e(f"v_pk_fma_f32 {R(a,2)}, {R(144+16*rt+2*h,2)}, {R(8+2*nt,2)}, {R(a,2)} op_sel_hi:[1,0,1] neg_lo:[1,0,0] neg_hi:[1,0,0]")
        for nt in range(5):
            for h in range(2):
                a = ACC + (rt * 5 + nt) * 4 + 2 * h
                e(f"v_pk_mul_f32 {R(a,2)}, {R(a,2)}, {R(152+16*rt+2*h,2)}")
        store_tile(g, ACC + rt * 20, 212 + 12 * (rt % 2), f"v{28+rt}", "s63", "s64", 0)
    e("Lj1pub:")
    g.stamp("c")
    e("s_waitcnt vmcnt(0)\ns_barrier")

def store_tile(g, a, t, vo, spair, ssingle, off, npair=2, srd="s[8:11]", pstep=1024, pol=PL):
    n = npair * 4 + 2
    for i in range(n): g.e(f"v_cvt_pk_bf16_f32 v{t+i}, v{a+2*i}, v{a+2*i+1}")
    vop, vos = vo if isinstance(vo, tuple) else (vo, vo)
    for p in range(npair): g.e(f"buffer_store_dwordx4 {R(t+4*p)}, {vop}, {srd}, {spair} offen offset:{off+pstep*p} {pol}")
    g.e(f"buffer_store_dwordx2 {R(t+4*npair,2)}, {vos}, {srd}, {ssingle} offen offset:{off} {pol}")

def small_gemm(g, name, acc, nfull, half, slot0, after_first=None):
    e = g.e
    X, W = 128, 144
    e(f"s_lshl_b32 s3, s22, 12\ns_add_u32 s3, s3, {slot0*SLOT}\nv_lshlrev_b32 v3, 4, v1\nv_add_u32 v2, s3, v3\nv_add_u32 v3, {slot0*SLOT+WOFF}, v3")
    for r in range(acc, acc + 20): e(f"v_mov_b32 v{r}, 0")
    e(f"s_mov_b32 s57, {slot0}\ns_mov_b32 s56, 0")
    def rd(ks): return [f"ds_read_b128 {R(X+4*ks)}, v2 offset:{ks*1024}"] + [f"ds_read_b128 {R(W+20*ks+4*nt)}, v3 offset:{(ks*5+nt)*1024}" for nt in range(5)]
    def mf(ks): return [f"{MF} {R(acc+4*nt)}, {R(W+20*ks+4*nt)}, {R(X+4*ks)}, {R(acc+4*nt)}" for nt in range(5)]
    def body(nks, last):
        for x in rd(0) + rd(1): e(x)
        for ks in range(nks):
            if ks + 2 < nks:
                e("s_waitcnt lgkmcnt(6)")
                for x in interleave(mf(ks), rd(ks + 2)): e(x)
            elif ks + 1 < nks:
                e("s_waitcnt lgkmcnt(6)")
                adv = slot_adv(g, [2, 3]) if not last else []
                for x in mf(ks) + adv: e(x)
            else:
                e("s_waitcnt lgkmcnt(0)")
                for x in mf(ks): e(x)
    if after_first:
        e("s_barrier"); after_first(); e(f"s_branch L{name}b")
    e(f"L{name}:\ns_barrier\nL{name}b:")
    body(4, False)
    e(f"s_add_u32 s56, s56, 1\ns_cmp_lt_u32 s56, {nfull}\ns_cbranch_scc1 L{name}")
    if half:
        e("s_barrier"); body(2, True)

XK, X1K = 236, 246
def tile_addr(g):
    e = g.e
    e("v_and_b32 v4, 15, v1\nv_lshrrev_b32 v5, 4, v1")
    e("s_lshl_b32 s65, s27, 6\ns_lshl_b32 s3, s22, 4\ns_add_u32 s65, s65, s3")
    e("s_lshr_b32 s58, s28, 1\ns_and_b32 s59, s28, 1")
    e("v_mul_u32_u24 v28, 1280, v4\nv_lshl_add_u32 v29, v5, 3, v28\nv_lshl_add_u32 v28, v5, 4, v28")
    e("s_mul_i32 s60, s65, 1280\ns_mul_i32 s3, s58, 320\ns_add_u32 s60, s60, s3\ns_lshl_b32 s3, s59, 5\ns_add_u32 s61, s60, s3\ns_add_u32 s61, s61, 256")
    e("s_lshl_b32 s3, s59, 7\ns_add_u32 s60, s60, s3")
    e("s_lshr_b32 s62, s65, 4\ns_mul_i32 s62, s62, 20480\ns_mul_i32 s3, s58, 5120\ns_add_u32 s62, s62, s3")
    e("s_lshl_b32 s3, s59, 3\ns_add_u32 s63, s62, s3\ns_add_u32 s63, s63, 4096\ns_lshl_b32 s3, s59, 11\ns_add_u32 s62, s62, s3")
    e("v_lshlrev_b32 v30, 4, v1")

def unpack(g, src, dst, n):
    for i in range(n): g.e(f"v_lshlrev_b32 v{dst+2*i}, 16, v{src+i}\nv_and_b32 v{dst+2*i+1}, 0xffff0000, v{src+i}")

def j2_consumer(g):
    e = g.e
    tile_addr(g)
    e(f"buffer_load_dwordx4 {R(XK)}, v28, s[4:7], s60 offen\nbuffer_load_dwordx4 {R(XK+4)}, v28, s[4:7], s60 offen offset:64\nbuffer_load_dwordx2 {R(XK+8,2)}, v29, s[4:7], s61 offen")
    def first():
        g.stamp("c")
        e(f"s_lshl_b32 s3, s65, 3\ns_add_u32 s3, s3, {hx(STAT)}\nv_lshlrev_b32 v6, 3, v4\nbuffer_load_dwordx2 v[32:33], v6, s[8:11], s3 offen {PL}")
    small_gemm(g, "j2", 64, 5, False, 2, first)
    e("s_barrier")
    g.stamp("c")
    e("s_waitcnt vmcnt(0)")
    unpack(g, XK, 8, 10)
    e("v_mul_f32 v34, v32, v33\nv_mov_b32 v35, v33")
    for i in range(10): e(f"v_pk_add_f32 {R(64+2*i,2)}, {R(64+2*i,2)}, v[34:35] op_sel_hi:[1,0] neg_lo:[0,1] neg_hi:[0,1]")
    for i in range(10): e(f"v_pk_fma_f32 {R(64+2*i,2)}, {R(8+2*i,2)}, v[34:35], {R(64+2*i,2)} op_sel:[0,1,0] op_sel_hi:[1,1,1]")
    e(f"s_add_u32 s66, s62, {hx(X1F)}\ns_add_u32 s67, s63, {hx(X1F)}")
    store_tile(g, 64, X1K, "v30", "s66", "s67", 0)
    e("v_pk_mul_f32 v[38:39], v[64:65], v[64:65]\nv_mov_b32 v36, v64\nv_mov_b32 v37, v65")
    for i in range(1, 10):
        e(f"v_pk_add_f32 v[36:37], v[36:37], {R(64+2*i,2)}\nv_pk_fma_f32 v[38:39], {R(64+2*i,2)}, {R(64+2*i,2)}, v[38:39]")
    e("v_add_f32 v36, v36, v37\nv_add_f32 v37, v38, v39")
    g.redg("v36", "v38", "v_add_f32"); g.redg("v37", "v39", "v_add_f32")
    e(f"s_lshl_b32 s3, s65, 6\ns_lshl_b32 s29, s28, 3\ns_add_u32 s3, s3, s29\ns_add_u32 s3, s3, {hx(PST)}\nv_lshlrev_b32 v6, 6, v4")
    e(f"s_mov_b64 exec, 0xffff\nbuffer_store_dwordx2 v[36:37], v6, s[8:11], s3 offen {PL}\ns_mov_b64 exec, -1")
    e("s_waitcnt vmcnt(0)\ns_barrier")
    g.stamp("c")

def attention(g):
    e = g.e
    e(f"s_add_u32 s66, s25, {C_QKV}\ns_max_u32 s67, s25, 1\ns_add_u32 s67, s67, {C_QKV-1}")
    g.poll2("s66", "s67", 12, "v8", "v9", "v10")
    Q, KP, KC, VP, VC = 64, 76, 88, 100, 112
    e("s_cmp_eq_u32 s65, 0\ns_cselect_b32 s3, 0, 20480\ns_sub_u32 s68, s62, s3\ns_sub_u32 s69, s63, s3")
    for (r, base, sp, ss) in ((Q, QF, "s62", "s63"), (KC, KF, "s62", "s63"), (KP, KF, "s68", "s69"), (VC, VF, "s62", "s63"), (VP, VF, "s68", "s69")):
        e(f"s_add_u32 s66, {sp}, {hx(base)}\ns_add_u32 s67, {ss}, {hx(base)}")
        e(f"buffer_load_dwordx4 {R(r)}, v30, s[8:11], s66 offen {PL}\nbuffer_load_dwordx4 {R(r+4)}, v30, s[8:11], s66 offen offset:1024 {PL}\nbuffer_load_dwordx2 {R(r+8,2)}, v30, s[8:11], s67 offen {PL}")
    e("v_lshlrev_b32 v16, 2, v5\nv_sub_u32 v16, v4, v16\nv_mov_b32 v18, 0xf149f2ca\ns_cmp_eq_u32 s65, 0\ns_cselect_b32 s3, 1024, 16")
    for kt in range(2):
        for r in range(4):
            if kt == 0: e(f"v_add_u32 v17, s3, v16\nv_subrev_u32 v17, {r}, v17")
            else: e(f"v_subrev_u32 v17, {r}, v16")
            e(f"v_and_b32 v17, 0xfffffff1, v17\nv_cmp_eq_u32 vcc, 0, v17\ns_nop 1\nv_cndmask_b32 v{8+4*kt+r}, v18, 0, vcc")
    S, QM, P, VM, O = 128, 160, 168, 184, 200
    e("s_waitcnt vmcnt(6)")
    for h in range(4):
        lo = (0xffff << (16 * h)) & 0xffffffff; hi = (0xffff << (16 * h)) >> 32
        e(f"s_mov_b32 vcc_lo, {hx(lo)}\ns_mov_b32 vcc_hi, {hx(hi)}\ns_nop 0\nv_cndmask_b32 v{QM+2*h}, 0, v{Q+8}, vcc\nv_cndmask_b32 v{QM+2*h+1}, 0, v{Q+9}, vcc")
    e("s_nop 1")
    for h in range(4):
        for kt, K in enumerate((KP, KC)):
            e(f"{MF16} {R(S+8*h+4*kt)}, {R(K+2*h,2)}, {R(Q+2*h,2)}, {R(8+4*kt)}")
    for h in range(4):
        for kt, K in enumerate((KP, KC)):
            e(f"{MF16} {R(S+8*h+4*kt)}, {R(K+8,2)}, {R(QM+2*h,2)}, {R(S+8*h+4*kt)}")
    e("s_waitcnt vmcnt(0)")
    for h in range(4):
        m = 0x000f000f << (4 * h)
        e(f"s_mov_b32 vcc_lo, {hx(m)}\ns_mov_b32 vcc_hi, {hx(m)}\ns_nop 0")
        for kt, V in enumerate((VP, VC)):
            e(f"v_cndmask_b32 v{VM+4*h+2*kt}, 0, v{V+8}, vcc\nv_cndmask_b32 v{VM+4*h+2*kt+1}, 0, v{V+9}, vcc")
    sc = (20 ** -0.5) * 1.4426950408889634
    e(f"s_mov_b32 s66, {hx(f2u(sc))}")
    for h in range(4):
        b = S + 8 * h
        e(f"v_max3_f32 v{20+h}, v{b}, v{b+1}, v{b+2}\nv_max3_f32 v{20+h}, v{20+h}, v{b+3}, v{b+4}\nv_max3_f32 v{20+h}, v{20+h}, v{b+5}, v{b+6}\nv_max_f32 v{20+h}, v{20+h}, v{b+7}")
    def red4(op):
        for sw in ("v_permlane32_swap_b32", "v_permlane16_swap_b32"):
            for h in range(4): e(f"v_mov_b32 v{24+h}, v{20+h}")
            e("s_nop 1")
            for h in range(4): e(f"{sw} v{24+h}, v{20+h}")
            for h in range(4): e(f"{op} v{20+h}, v{20+h}, v{24+h}")
    red4("v_max_f32")
    for h in range(4): e(f"v_mul_f32 v{20+h}, s66, v{20+h}")
    for h in range(4):
        for i in range(8): e(f"v_fma_f32 v{S+8*h+i}, v{S+8*h+i}, s66, -v{20+h}")
    for h in range(4):
        for i in range(8): e(f"v_exp_f32 v{S+8*h+i}, v{S+8*h+i}")
    e("s_nop 0")
    for h in range(4):
        b = S + 8 * h
        e(f"v_pk_add_f32 v[24:25], {R(b,2)}, {R(b+2,2)}\nv_pk_add_f32 v[26:27], {R(b+4,2)}, {R(b+6,2)}\nv_pk_add_f32 v[24:25], v[24:25], v[26:27]\nv_add_f32 v{20+h}, v24, v25")
    red4("v_add_f32")
    for h in range(4): e(f"v_rcp_f32 v{20+h}, v{20+h}")
    e("s_nop 0")
    for h in range(4):
        for i in range(8): e(f"v_mul_f32 v{S+8*h+i}, v{S+8*h+i}, v{20+h}")
        for i in range(4): e(f"v_cvt_pk_bf16_f32 v{P+4*h+i}, v{S+8*h+2*i}, v{S+8*h+2*i+1}")
    e("s_nop 1")
    for kt, V in enumerate((VP, VC)):
        for h in range(4):
            c = "0" if kt == 0 else R(O + 4 * h)
            e(f"{MF16} {R(O+4*h)}, {R(V+2*h,2)}, {R(P+4*h+2*kt,2)}, {c}")
    for h in range(4):
        for kt in range(2):
            c = "0" if (h == 0 and kt == 0) else R(O + 16)
            e(f"{MF16} {R(O+16)}, {R(VM+4*h+2*kt,2)}, {R(P+4*h+2*kt,2)}, {c}")
    e(f"s_add_u32 s66, s62, {hx(OF)}\ns_add_u32 s67, s63, {hx(OF)}\ns_nop 7")
    store_tile(g, O, 220, "v30", "s66", "s67", 0)
    g.stamp("c")

def j3_consumer(g):
    e = g.e
    A3, CS3, XA, WA, XB, WB, ON = 64, 120, 148, 156, 184, 192, 220
    s0 = 3
    e("s_and_b32 s58, s22, 1\ns_lshr_b32 s59, s22, 1")
    e(f"s_lshl_b32 s3, s22, 12\ns_lshl_b32 s29, s58, 10\ns_add_u32 s3, s3, s29\ns_add_u32 s3, s3, {s0*SLOT}\nv_lshlrev_b32 v7, 4, v1\nv_add_u32 v2, s3, v7\nv_xor_b32 v3, 1024, v2")
    e(f"s_mul_i32 s3, s58, 7168\ns_add_u32 s3, s3, {s0*SLOT+WOFF}\nv_add_u32 v6, s3, v7\ns_sub_u32 s3, {2*(s0*SLOT+WOFF)+7168}, s3\nv_add_u32 v7, s3, v7")
    for r in range(A3, XA): e(f"v_mov_b32 v{r}, 0")
    for r in range(XB, ON): e(f"v_mov_b32 v{r}, 0")
    for r in range(ON, ON + 4): e(f"v_mov_b32 v{r}, 0x3f803f80")
    e(f"s_mov_b32 s57, {s0}\ns_mov_b32 s56, 0")
    def reads(xa, wa, X, W):
        return [f"ds_read_b128 {R(X+4*rt)}, v{xa} offset:{rt*2048}" for rt in range(2)] + [f"ds_read_b128 {R(W+4*nt)}, v{wa} offset:{nt*1024}" for nt in range(7)]
    def mf(X, W): return [f"{MF} {R(A3+(rt*7+nt)*4)}, {R(W+4*nt)}, {R(X+4*rt)}, {R(A3+(rt*7+nt)*4)}" for nt in range(7) for rt in range(2)]
    NPRE = g.o.get("j3pre", 2)
    e("s_barrier")
    g.stamp("c")
    e(f"s_lshl_b32 s65, s25, 7\ns_lshl_b32 s3, s22, 5\ns_add_u32 s65, s65, s3\ns_lshl_b32 s3, s65, 6\ns_add_u32 s3, s3, {hx(PST)}")
    e(f"v_lshlrev_b32 v8, 6, v4\nv_lshl_add_u32 v8, v5, 4, v8\nbuffer_load_dwordx4 v[12:15], v8, s[8:11], s3 offen {PL}\nbuffer_load_dwordx4 v[16:19], v8, s[8:11], s3 offen offset:1024 {PL}")
    e("s_branch Lj3b\nLj3:\ns_barrier\nLj3b:")
    mB = mf(XB, WB)
    for x in interleave(mB[NPRE:], reads(2, 6, XA, WA)): e(x)
    e("s_waitcnt lgkmcnt(0)")
    for x in interleave(mf(XA, WA), reads(3, 7, XB, WB)): e(x)
    e("s_and_b32 s3, s56, 1\ns_cmp_lg_u32 s3, s59\ns_cbranch_scc1 Lj3nc")
    for nt in range(7): e(f"{MF} {R(CS3+4*nt)}, {R(ON)}, {R(WA+4*nt)}, {R(CS3+4*nt)}")
    e("Lj3nc:")
    for x in slot_adv(g, [2, 3, 6, 7]): e(x)
    e("s_waitcnt lgkmcnt(0) vmcnt(0)")
    for x in mB[:NPRE]: e(x)
    e("s_add_u32 s56, s56, 1\ns_cmp_lt_u32 s56, 10\ns_cbranch_scc1 Lj3")
    for x in mB[NPRE:]: e(x)
    g.stamp("c")
    e(f"s_mul_i32 s3, s22, 448\ns_add_u32 s3, s3, {MISC}\nv_lshlrev_b32 v6, 2, v4\nv_add_u32 v6, s3, v6\ns_mov_b64 exec, 0xffff")
    for nt in range(7): e(f"ds_write_b32 v6, v{CS3+4*nt} offset:{64*nt}")
    e("s_mov_b64 exec, -1")
    for rt in range(2):
        b = 12 + 4 * rt
        e(f"v_add_f32 v{b}, v{b}, v{b+2}\nv_add_f32 v{b+1}, v{b+1}, v{b+3}")
        g.redg(f"v{b}", f"v{b+2}", "v_add_f32"); g.redg(f"v{b+1}", f"v{b+3}", "v_add_f32")
    e(f"s_mov_b32 s66, {hx(f2u(1.0/640))}\ns_mov_b32 s67, {hx(f2u(1e-5))}")
    for rt in range(2):
        b = 12 + 4 * rt
        e(f"v_mul_f32 v{b}, s66, v{b}\nv_mul_f32 v{b+1}, s66, v{b+1}\nv_fma_f32 v{b+1}, -v{b}, v{b}, v{b+1}\nv_max_f32 v{b+1}, 0, v{b+1}\nv_add_f32 v{b+1}, s67, v{b+1}\nv_rsq_f32 v{b+1}, v{b+1}")
    e("s_waitcnt lgkmcnt(0)\ns_barrier")
    e(f"v_lshlrev_b32 v6, 4, v5\nv_add_u32 v6, {MISC}, v6")
    for w in range(4):
        for nt in range(7): e(f"ds_read_b128 {R(120+28*w+4*nt)}, v6 offset:{448*w+64*nt}")
    e("s_lshr_b32 s58, s26, 1\ns_and_b32 s59, s26, 1\ns_lshr_b32 s3, s65, 4\ns_mul_i32 s66, s3, 57344\ns_mul_i32 s3, s58, 7168\ns_add_u32 s66, s66, s3")
    e(f"s_add_u32 s66, s66, {hx(TF)}\ns_lshl_b32 s3, s59, 3\ns_add_u32 s67, s66, s3\ns_add_u32 s67, s67, 3072\ns_lshl_b32 s3, s59, 12\ns_add_u32 s66, s66, s3")
    e(f"v_mov_b32 v44, {hx(f2u(GELU_C0))}\nv_mov_b32 v45, v44\ns_mov_b32 s54, {hx(f2u(GELU_C1))}\ns_mov_b32 s55, s54")
    e("s_waitcnt lgkmcnt(0)")
    for i in range(14): e(f"v_pk_add_f32 {R(120+2*i,2)}, {R(120+2*i,2)}, {R(148+2*i,2)}\nv_pk_add_f32 {R(176+2*i,2)}, {R(176+2*i,2)}, {R(204+2*i,2)}")
    for i in range(14): e(f"v_pk_add_f32 {R(120+2*i,2)}, {R(120+2*i,2)}, {R(176+2*i,2)}")
    for rt in range(2):
        b = 12 + 4 * rt
        for i in range(14):
            a = A3 + rt * 28 + 2 * i
            e(f"v_pk_fma_f32 {R(a,2)}, {R(120+2*i,2)}, {R(b,2)}, {R(a,2)} op_sel_hi:[1,0,1] neg_lo:[1,0,0] neg_hi:[1,0,0]")
        for i in range(14):
            a = A3 + rt * 28 + 2 * i
            e(f"v_pk_mul_f32 {R(a,2)}, {R(a,2)}, {R(b,2)} op_sel:[0,1] op_sel_hi:[1,1]")
        gelu_pairs(g, [A3 + rt * 28 + 2 * i for i in range(14)], 36)
        store_tile(g, A3 + rt * 28, 148 + 16 * rt, "v30", "s66", "s67", 0, npair=3)
        if rt == 0: e("s_add_u32 s66, s66, 57344\ns_add_u32 s67, s67, 57344")
    g.stamp("c")
    e("s_waitcnt vmcnt(0)\ns_barrier")

def j45_consumer(g):
    e = g.e
    small_gemm(g, "j4", 84, 5, False, 1)
    e("s_barrier")
    g.stamp("c")
    small_gemm(g, "j5", 64, 13, True, 2)
    g.stamp("c")
    unpack(g, X1K, 8, 10)
    unpack(g, XK, 104, 10)
    e(f"s_mov_b32 s54, {hx(f2u(-1.4426950408889634))}\ns_mov_b32 s55, s54")
    for i in range(10): e(f"v_pk_add_f32 {R(64+2*i,2)}, {R(64+2*i,2)}, {R(8+2*i,2)}")
    for i in range(10): e(f"v_pk_mul_f32 {R(8+2*i,2)}, {R(64+2*i,2)}, s[54:55]")
    for i in range(20): e(f"v_exp_f32 v{8+i}, v{8+i}")
    for i in range(10): e(f"v_pk_add_f32 {R(8+2*i,2)}, {R(8+2*i,2)}, 1.0 op_sel_hi:[1,0]")
    for i in range(20): e(f"v_rcp_f32 v{8+i}, v{8+i}")
    for i in range(10): e(f"v_pk_mul_f32 {R(64+2*i,2)}, {R(64+2*i,2)}, {R(84+2*i,2)}")
    for i in range(10): e(f"v_pk_fma_f32 {R(64+2*i,2)}, {R(64+2*i,2)}, {R(8+2*i,2)}, {R(104+2*i,2)}")
    store_tile(g, 64, 128, ("v28", "v29"), "s60", "s61", 0, srd="s[16:19]", pstep=64, pol="")
    g.stamp("c")

class Loader:
    def __init__(s, g, kind):
        s.g = g; s.kind = kind; s.ops = []
    def wait_chunk(s, k):
        idx = [i for i, t in enumerate(s.ops) if t == k]
        if not idx: return
        n = len(s.ops) - 1 - idx[-1]
        assert n <= 63
        s.g.e(f"s_waitcnt vmcnt({n})")
    def drained(s): s.ops = []

def chunk_list(stop):
    L = []
    for jn, (name, n) in enumerate(JOBS):
        if jn >= stop: break
        for c in range(n): L.append((name, c))
    return L

def loader(g, kind):
    e = g.e; o = g.o; stop = o.get("stop", 5)
    CH = chunk_list(stop); N = len(CH)
    ld = Loader(g, kind)
    rot = o.get("rot", 1)
    e("Lxload:" if kind == "x" else "Lwload:")
    e("s_and_b32 s58, s22, 1\nv_lshlrev_b32 v2, 4, v1")
    if kind == "x":
        e("v_lshrrev_b32 v4, 3, v1\nv_and_b32 v5, 7, v1\nv_lshrrev_b32 v6, 1, v4\nv_xor_b32 v5, v5, v6\nv_mul_u32_u24 v4, 1280, v4\nv_lshl_add_u32 v8, v5, 4, v4\nv_xor_b32 v9, 64, v8")
    else:
        e("s_movk_i32 s60, 3840\ns_cmp_ge_u32 s24, 12\ns_cselect_b32 s60, 1280, s60\ns_cselect_b32 s3, 12, 0\ns_sub_u32 s3, s24, s3\ns_mul_i32 s61, s3, 320")
        for d in range(5):
            e(f"v_add_u32 v4, {64*d}, v1\nv_mul_u32_u24 v5, 3277, v4\nv_lshrrev_b32 v5, 16, v5\nv_mul_u32_u24 v6, 20, v5\nv_sub_u32 v6, v4, v6")
            e(f"v_lshrrev_b32 v7, 2, v5\nv_and_b32 v7, 2, v7\nv_xor_b32 v6, v6, v7\nv_mul_lo_u32 v5, v5, s60\nv_lshl_add_u32 v{8+d}, v6, 4, v5")
    cur = {"job": None}
    def job_setup(job):
        nrot = {"J1": 10, "J2": 5, "J3": 10, "J4": 5, "J5": 13}[job]
        key = {"J1": "s_add_u32 s3, s23, s24", "J3": "s_mov_b32 s3, s26"}.get(job, "s_mov_b32 s3, s26")
        e(key)
        if job == "J1": e("s_mul_i32 s3, s3, 3")
        g.sdiv("s29", "s3", nrot, 128)
        e(f"s_mul_i32 s29, s29, {nrot}\ns_sub_u32 s59, s3, s29")
        if not rot: e("s_mov_b32 s59, 0")
        if kind == "x":
            if job == "J1":
                e("s_lshl_b32 s3, s23, 1\ns_add_u32 s3, s3, s58\ns_mul_i32 s66, s3, 81920\ns_mov_b32 s64, 128")
            elif job == "J3":
                e(f"s_lshl_b32 s3, s25, 1\ns_add_u32 s3, s3, s58\ns_mul_i32 s66, s3, 81920\ns_add_u32 s66, s66, {hx(X1F)}\ns_movk_i32 s64, 2048")
            else:
                base, rs = {"J2": (HF, 20480), "J4": (OF, 20480), "J5": (TF, 57344)}[job]
                e(f"s_lshl_b32 s3, s27, 1\ns_add_u32 s3, s3, s58\ns_mul_i32 s66, s3, {2*rs}\ns_add_u32 s66, s66, {hx(base)}\ns_movk_i32 s64, 4096")
        else:
            if job == "J1":
                e("s_lshl_b32 s3, s58, 5\ns_mul_i32 s66, s3, s60\ns_add_u32 s66, s66, s61\ns_lshl_b32 s64, s60, 6\ns_lshl_b32 s67, s60, 4")
            elif job == "J3":
                e(f"s_mul_i32 s66, s26, 143360\ns_mul_i32 s3, s58, 7168\ns_add_u32 s66, s66, s3\ns_add_u32 s66, s66, {hx(W3P)}\ns_movk_i32 s64, 14336")
            else:
                base, cs = {"J2": (W2P, 102400), "J4": (WOP, 102400), "J5": (W4P, 276480)}[job]
                e(f"s_mul_i32 s66, s28, {cs}\ns_mul_i32 s3, s58, 10240\ns_add_u32 s66, s66, s3\ns_add_u32 s66, s66, {hx(base)}\ns_movk_i32 s64, 20480")
        e(f"s_mul_i32 s65, s64, {nrot}\ns_add_u32 s63, s66, s65\ns_mul_i32 s3, s59, s64\ns_add_u32 s62, s66, s3")
    def dma(vo, srd, so, off, k, pol):
        e(f"buffer_load_dwordx4 {vo}, {srd}, {so} offen offset:{off} {pol} lds"); ld.ops.append(k)
    def issue(k):
        job, c = CH[k]; sl = (k % 4) * SLOT
        if cur["job"] != job:
            cur["job"] = job
            if kind == "w" and job == "J2":
                e(f"v_and_b32 v4, 7, v1\nv_lshlrev_b32 v4, 7, v4\nv_add_u32 v4, {hx(CNT + C_PK*128)}, v4\nv_mov_b32 v5, 32")
                g.poll("v4", "v5", "v6"); ld.drained()
            if kind == "x" and job == "J2":
                e(f"s_and_b32 s3, s27, 1\ns_lshl_b32 s3, s3, 1\ns_add_u32 s3, s3, s25\ns_add_u32 s3, s3, 15\ns_and_b32 s3, s3, 15\ns_add_u32 s67, s3, {C_H}\ns_add_u32 s66, s25, {C_H}")
                g.poll2("s66", "s67", 4); ld.drained()
            if kind == "x" and job in ("J3", "J4", "J5"):
                e(f"s_add_u32 s66, s25, {dict(J3=C_X1, J4=C_O, J5=C_T)[job]}")
                g.poll2("s66", "s66", 16); ld.drained()
            if kind == "x": g.stamp("x")
            job_setup(job)
        half = (job == "J5" and c == 13)
        if half:
            e("s_mov_b32 s62, s63")
            if kind == "w": e("s_mul_i32 s3, s58, 5120\ns_sub_u32 s62, s62, s3")
        if kind == "x":
            if job == "J1":
                e(f"s_lshl_b32 s3, s58, 13\ns_add_u32 s68, s3, {sl}\ns_mov_b32 s69, s62")
                for i in range(8):
                    e(f"s_add_u32 m0, s68, {i*1024}")
                    if i: e("s_add_u32 s69, s69, 10240")
                    else: e("s_nop 0")
                    dma(f"v{8+(i&1)}", "s[4:7]", "s69", 0, k, "")
            else:
                nrt, nks, rs = (4, 2, 20480) if job == "J3" else (2, 2 if half else 4, 57344 if job == "J5" else 20480)
                e(f"s_lshl_b32 s3, s58, 13\ns_add_u32 s68, s3, {sl}\ns_mov_b32 s69, s62")
                for rt in range(nrt):
                    e(f"s_add_u32 m0, s68, {rt*8192//nrt}")
                    if rt: e(f"s_add_u32 s69, s69, {rs}")
                    else: e("s_nop 0")
                    for q in range(nks): dma("v2", "s[8:11]", "s69", q * 1024, k, PL)
        else:
            if job == "J1":
                e(f"s_mul_i32 s3, s58, 10240\ns_add_u32 s68, s3, {sl+WOFF}\ns_add_u32 s69, s62, s67")
                for grp in range(2):
                    for d in range(5):
                        e(f"s_add_u32 m0, s68, {grp*5120+d*1024}\ns_nop 0")
                        dma(f"v{8+d}", "s[12:15]", "s69" if grp else "s62", 0, k, "")
            else:
                n = 7 if job == "J3" else (5 if half else 10)
                e(f"s_mul_i32 s3, s58, {n*1024}\ns_add_u32 s68, s3, {sl+WOFF}\ns_mov_b32 s69, s62")
                for q in range(n):
                    if q % 4 == 0:
                        e(f"s_add_u32 m0, s68, {q*1024}")
                        if q: e("s_add_u32 s69, s69, 4096")
                        else: e("s_nop 0")
                    dma("v2", "s[8:11]", "s69", (q % 4) * 1024, k, PL)
        e("s_add_u32 s62, s62, s64\ns_cmp_ge_u32 s62, s63\ns_cselect_b32 s3, s65, 0\ns_sub_u32 s62, s62, s3")
    issued = [0]
    def issue_upto(kmax, gate):
        while issued[0] < min(kmax, N):
            job = CH[issued[0]][0]
            if kind == "x" and job in ("J2", "J3", "J5") and job not in gate: return
            issue(issued[0]); issued[0] += 1
    def sig(code, idx):
        if kind != "x": return
        sk = g.lab("Lsg")
        e(f"s_cmp_lg_u32 s58, 0\ns_cbranch_scc1 {sk}"); e(code); g.signal(idx)
        e(f"{sk}:")
    gate = set()
    issue_upto(4, gate)
    k = 0
    for jn, (job, n) in enumerate(JOBS):
        if jn >= stop: break
        for c in range(n):
            ld.wait_chunk(k); e("s_barrier")
            if job == "J1" and c == 1: sig(f"s_and_b32 s66, s2, 7\ns_add_u32 s70, s66, {C_PK}", "s70")
            if job == "J3" and c == 1: sig(f"s_add_u32 s70, s25, {C_O}", "s70")
            issue_upto(k + 4, gate); k += 1
        if job == "J5": break
        e("s_barrier")
        issue_upto(k + 4, gate)
        if job != "J4":
            e("s_barrier")
            if kind == "x": g.stamp("x")
            if job == "J1": sig(f"s_cmp_ge_u32 s24, 12\ns_cselect_b32 s3, {C_H}, {C_QKV}\ns_add_u32 s70, s23, s3", "s70")
            if job == "J2": sig(f"s_add_u32 s70, s25, {C_X1}", "s70")
            if job == "J3": sig(f"s_add_u32 s70, s25, {C_T}", "s70")
            gate.add({"J1": "J2", "J2": "J3", "J3": "J5"}[job])
            issue_upto(k + 4, gate)
    if kind == "x":
        g.stamp("x")
        if o.get("stamps"):
            e("s_cmp_lg_u32 s58, 0\ns_cbranch_scc1 Lend"); g.dump_stamps("x", 1)
    e("s_endpgm")

def main(opt):
    g = G(opt); e = g.e; stop = opt.get("stop", 5)
    hdr = open("cdna_kernels/" + NAME + ".s.ref").read().split("\n")
    hdr = [l for l in hdr if l.startswith(";") and "@launch" not in l]
    out = hdr + ["; @launch grid=(256,1,1) block=(512,1,1) lds=163840",
        '.amdgcn_target "amdgcn-amd-amdhsa--gfx950"', ".text", f".globl {NAME}_kernel", ".p2align 8",
        f".type {NAME}_kernel,@function", f"{NAME}_kernel:"]
    prologue(g); packer(g); g.stamp("c"); j1_consumer(g)
    if stop >= 2: j2_consumer(g); attention(g)
    if stop >= 3: j3_consumer(g)
    if stop >= 5: j45_consumer(g)
    if opt.get("stamps"):
        e("s_cmp_lg_u32 s22, 0\ns_cbranch_scc1 Lend"); g.dump_stamps("c", 0)
    e("Lend:\ns_endpgm")
    loader(g, "x"); loader(g, "w")
    out += g.L
    out += ['.section .rodata,"a"', ".p2align 6", f".amdhsa_kernel {NAME}_kernel", "  .amdhsa_next_free_vgpr 256", "  .amdhsa_next_free_sgpr 102",
        "  .amdhsa_accum_offset 256", "  .amdhsa_group_segment_fixed_size 0", "  .amdhsa_kernarg_size 88", "  .amdhsa_user_sgpr_count 2",
        "  .amdhsa_user_sgpr_kernarg_segment_ptr 1", "  .amdhsa_system_sgpr_workgroup_id_x 1", ".end_amdhsa_kernel"]
    return "\n".join(out) + "\n"

if __name__ == "__main__":
    opt = {}
    for a in sys.argv[2:]:
        k, v = a.split("="); opt[k] = int(v)
    open(sys.argv[1], "w").write(main(opt))
```

```python
import sys, struct
NAME = "recurrent_scan__sliding_local_dilated__mixer_s_mlp__prompt"
def f2u(x): return struct.unpack("<I", struct.pack("<f", x))[0]
def hx(x): return "0x%x" % (x & 0xffffffff)

QF, KF, VF, HF = 0x0, 0x280000, 0x500000, 0x780000
X1F, OF, TF = 0xA00000, 0xC80000, 0x2000000
TSTR = 57344 + int([a for a in sys.argv if a.startswith('tpad=')][0][5:]) if any(a.startswith('tpad=') for a in sys.argv) else 57344
W2P, WOP, W3P, W4P = 0x1600000, 0x16C8000, 0x1790000, 0x19C0000
STAT, PST, CNT, CSP = 0x1C00000, 0x1C10000, 0x1C40000, 0x1C80000
WS_REC = 0x3000000
STAMP_OFF = 0x8000000
C_PKB = 8
WSL = 20480
C_PK, C_H, C_QKV, C_X1, C_O, C_T = 0, 16, 32, 48, 64, 80
SLOT, WOFF, MISC = 36864, 16384, 147456
F_PK, F_J1, F_X1, F_T, F_O = CNT, CNT + 8192, CNT + 16384, CNT + 18432, CNT + 20480
F_PKB = CNT + 24576
LCNT, CS3 = MISC + 3328, MISC + 3584
PL = "sc1"

class G:
    def __init__(s, opt):
        s.L = []; s.o = opt; s.nlab = 0; s.nstamp = {}
    def e(s, t):
        for x in t.split("\n"): s.L.append("    " + x.strip() if not x.strip().endswith(":") else x.strip())
    def lab(s, p="L"):
        s.nlab += 1; return f"{p}{s.nlab}"
    def stamp(s, role, name="."):
        if not s.o.get("stamps"): return
        inner = str(s.o.get("inner", ""))
        if role == "x" and name.startswith("i") and inner != "0": return
        if role == "c" and s.nstamp.get(role, 0) > 0:
            if inner and inner not in name: return
            if not inner and name.startswith("i"): return
        i = s.nstamp.get(role, 0); s.nstamp[role] = i + 1
        assert i < 14
        s.e(f"s_memrealtime s[{72+2*i}:{73+2*i}]")
    def dump_stamps(s, role, slot):
        if not s.o.get("stamps"): return
        n = s.nstamp.get(role, 0)
        s.e(f"s_waitcnt lgkmcnt(0)\ns_add_u32 s52, s52, {hx(STAMP_OFF)}\ns_addc_u32 s53, s53, 0")
        s.e(f"s_mul_i32 s3, s2, 224\ns_add_u32 s3, s3, {slot*112}\nv_mov_b32 v2, s3\ns_mov_b64 exec, 1")
        for i in range(14):
            j = min(i, n - 1)
            s.e(f"v_mov_b32 v4, s{72+2*j}\nv_mov_b32 v5, s{73+2*j}\nglobal_store_dwordx2 v2, v[4:5], s[52:53] offset:{8*i}\ns_nop 1")
        s.e("s_mov_b64 exec, -1")
    def poll(s, vaddr, vexp, vtmp):
        l0, l1 = s.lab("Lpoll"), s.lab("Lpollx")
        s.e(f"s_mov_b32 s31, 0\n{l0}:")
        s.e(f"buffer_load_dword {vtmp}, {vaddr}, s[8:11], 0 offen {s.o.get('pollpol', 'sc1')}")
        s.e(f"s_add_u32 s31, s31, 1\ns_cmp_gt_u32 s31, 400000\ns_cbranch_scc1 {l1}")
        s.e(f"s_waitcnt vmcnt(0)\nv_cmp_lt_u32 vcc, {vtmp}, {vexp}\ns_cbranch_vccnz {l0}\n{l1}:\ns_waitcnt vmcnt(0)")
    def pollg(s, base, sh, mask, va="v4", vb="v5", vc="v6"):
        s.e(f"s_lshl_b32 s29, s25, {sh}\ns_add_u32 s29, s29, {hx(base)}\nv_and_b32 {va}, {mask}, v1\nv_lshl_add_u32 {va}, {va}, 2, s29\nv_mov_b32 {vb}, 1")
        s.poll(va, vb, vc)
    def pk_check(s, va, r, first=False):
        l0, l1, l2 = s.lab("Lpk"), s.lab("Lpkok"), s.lab("Lpkld")
        s.e("s_mov_b32 s31, 0" + (f"\ns_branch {l2}" if first else ""))
        s.e(f"{l0}:\nv_min_u32 v{r}, v{r}, v{r+1}\nv_min3_u32 v{r}, v{r}, v{r+2}, v{r+3}\nv_cmp_eq_u32 vcc, 0, v{r}\ns_cbranch_vccz {l1}\ns_add_u32 s31, s31, 1\ns_cmp_gt_u32 s31, 400000\ns_cbranch_scc1 {l1}")
        s.e(f"{l2}:\nbuffer_load_dwordx4 v[{r}:{r+3}], {va}, s[8:11], 0 offen sc1\ns_waitcnt vmcnt(0)\ns_branch {l0}\n{l1}:")
    def flag_off(s, base, srb, sh, sslot):
        s.e(f"s_lshl_b32 s70, {srb}, {sh}\ns_lshl_b32 s3, {sslot}, 2\ns_add_u32 s70, s70, s3\ns_add_u32 s70, s70, {hx(base)}")
    def signal(s, vt="v4"):
        s.e(f"v_mov_b32 {vt}, 1\ns_mov_b64 exec, 1\nbuffer_store_dword {vt}, off, s[8:11], s70 sc1\ns_mov_b64 exec, -1")
    def wsignal(s, k, rep=0):
        l = s.lab("Lws")
        s.e(f"s_mov_b64 exec, 1\nv_mov_b32 v7, 1\nv_mov_b32 v33, {LCNT+4*k}\nds_add_rtn_u32 v33, v33, v7")
        s.e(f"s_waitcnt lgkmcnt(0)\nv_cmp_eq_u32 vcc, 3, v33\ns_cbranch_vccz {l}\n" + ("s_mov_b64 exec, 15\nv_mov_b32 v7, 1\nv_lshlrev_b32 v33, 11, v1\nbuffer_store_dword v7, v33, s[8:11], s70 offen sc1" if rep else "buffer_store_dword v7, off, s[8:11], s70 sc1") + f"\n{l}:\ns_mov_b64 exec, -1")
    def pk_setup(s):
        s.e("s_mov_b32 s95, 0x20000\nv_lshrrev_b32 v236, 5, v1\nv_bfe_u32 v237, v1, 3, 2\nv_and_b32 v238, 7, v1\nv_lshlrev_b32 v238, 4, v238")
        s.e("v_lshrrev_b32 v239, 4, v1\nv_lshlrev_b32 v239, 3, v239\nv_bfe_u32 v240, v1, 2, 2\nv_add_u32 v239, v239, v240\nv_lshlrev_b32 v239, 7, v239\nv_and_b32 v240, 3, v1\nv_lshlrev_b32 v241, 2, v1\nv_lshlrev_b32 v251, 4, v1")
    def prefetch(s, vm, base, nlines, va, vd):
        s.e(f"s_lshr_b32 s3, s2, 3\ns_mul_i32 s3, s3, {nlines*128}\ns_add_u32 s3, s3, {hx(base)}\nv_lshlrev_b32 {va}, 7, v1")
        for q in range((nlines + 63) // 64):
            n = min(64, nlines - 64 * q)
            if n < 64: s.e(f"s_mov_b32 exec_lo, {hx((1 << min(n, 32)) - 1)}\ns_mov_b32 exec_hi, {hx((1 << max(n - 32, 0)) - 1)}")
            vm.op(f"buffer_load_dword {vd}, {va}, s[8:11], s3 offen", "pf")
            s.e("s_add_u32 s3, s3, 8192")
        s.e("s_mov_b64 exec, -1")
    def sdiv(s, dst, src, d, maxv):
        sh = 16; m = (1 << sh) // d + 1
        assert all((x * m) >> sh == x // d for x in range(maxv)), (d, maxv)
        s.e(f"s_mul_i32 {dst}, {src}, {m}\ns_lshr_b32 {dst}, {dst}, {sh}")
    def redg(s, v, t, op):
        s.e(f"v_mov_b32 {t}, {v}\ns_nop 1\nv_permlane32_swap_b32 {t}, {v}\n{op} {v}, {v}, {t}")
        s.e(f"v_mov_b32 {t}, {v}\ns_nop 1\nv_permlane16_swap_b32 {t}, {v}\n{op} {v}, {v}, {t}")

def R(b, n=4): return f"v[{b}:{b+n-1}]"
MF = "v_mfma_f32_16x16x32_bf16"
MF16 = "v_mfma_f32_16x16x16_bf16"
JOBS = [("J1", 10), ("J2", 5), ("J3", 10), ("J4", 5), ("J5", 14)]

def interleave(a, b):
    out = []; na, nb = len(a), len(b); j = 0
    for i, x in enumerate(a):
        out.append(x)
        while j < nb and (j + 1) * na <= (i + 1) * nb: out.append(b[j]); j += 1
    return out + b[j:]

GELU_C0 = -2 * 0.7978845608028654 * 1.4426950408889634
GELU_C1 = GELU_C0 * 0.044715
def gelu_pairs(g, regs, t0):
    c0 = R(t0 + 8, 2)
    for k in range(0, len(regs), 4):
        grp = regs[k:k + 4]
        T = [t0 + 2 * i for i in range(len(grp))]
        for y, t in zip(grp, T): g.e(f"v_pk_mul_f32 {R(t,2)}, {R(y,2)}, {R(y,2)}")
        for y, t in zip(grp, T): g.e(f"v_pk_fma_f32 {R(t,2)}, {R(t,2)}, s[54:55], {c0}")
        for y, t in zip(grp, T): g.e(f"v_pk_mul_f32 {R(t,2)}, {R(t,2)}, {R(y,2)}")
        for y, t in zip(grp, T): g.e(f"v_exp_f32 v{t}, v{t}\nv_exp_f32 v{t+1}, v{t+1}")
        if len(grp) < 2: g.e("s_nop 0")
        for y, t in zip(grp, T): g.e(f"v_pk_add_f32 {R(t,2)}, {R(t,2)}, 1.0 op_sel_hi:[1,0]")
        for y, t in zip(grp, T): g.e(f"v_rcp_f32 v{t}, v{t}\nv_rcp_f32 v{t+1}, v{t+1}")
        if len(grp) < 2: g.e("s_nop 0")
        for y, t in zip(grp, T): g.e(f"v_pk_mul_f32 {R(y,2)}, {R(y,2)}, {R(t,2)}")

def prologue(g):
    e = g.e; o = g.o
    e("s_cmp_ge_u32 s2, 256\ns_cbranch_scc1 Lend")
    g.stamp("c"); g.nstamp["x"] = g.nstamp.get("c", 0)
    e("s_load_dwordx16 s[32:47], s[0:1], 0\ns_load_dwordx4 s[48:51], s[0:1], 64\ns_load_dwordx2 s[52:53], s[0:1], 80")
    e("v_lshrrev_b32 v2, 6, v0\nv_and_b32 v1, 63, v0\ns_and_b32 s29, s2, 7\ns_lshr_b32 s30, s2, 3\nv_readfirstlane_b32 s22, v2")
    e("s_lshl_b32 s25, s29, 1\ns_lshr_b32 s3, s30, 4\ns_add_u32 s25, s25, s3\ns_and_b32 s26, s30, 15")
    e("s_lshl_b32 s27, s25, 1\ns_lshr_b32 s3, s26, 3\ns_add_u32 s27, s27, s3\ns_and_b32 s28, s26, 7")
    if o.get("map1", 3) == 3:
        e("s_lshr_b32 s23, s29, 2\ns_lshl_b32 s23, s23, 3\ns_lshr_b32 s3, s30, 2\ns_add_u32 s23, s23, s3")
        e("s_and_b32 s24, s29, 3\ns_lshl_b32 s24, s24, 2\ns_and_b32 s3, s30, 3\ns_add_u32 s24, s24, s3")
    elif o.get("map1", 3) == 2:
        e("s_lshr_b32 s23, s29, 1\ns_lshl_b32 s23, s23, 2\ns_lshr_b32 s3, s30, 3\ns_add_u32 s23, s23, s3")
        e("s_and_b32 s24, s29, 1\ns_lshl_b32 s24, s24, 3\ns_and_b32 s3, s30, 7\ns_add_u32 s24, s24, s3")
    elif o.get("map1", 3) == 1:
        e("s_lshr_b32 s23, s29, 1\ns_lshl_b32 s23, s23, 2\ns_lshr_b32 s3, s30, 3\ns_add_u32 s23, s23, s3")
        e("s_and_b32 s24, s30, 7\ns_lshl_b32 s24, s24, 1\ns_and_b32 s3, s29, 1\ns_add_u32 s24, s24, s3")
    else:
        e("s_mov_b32 s23, s25\ns_mov_b32 s24, s26")
    e("s_mov_b32 s6, 2621440\ns_mov_b32 s7, 0x20000\ns_mov_b32 s10, %s\ns_mov_b32 s11, 0x20000" % hx(WS_REC))
    e("s_mov_b32 s15, 0x20000\ns_mov_b32 s18, 2621440\ns_mov_b32 s19, 0x20000")
    e("s_waitcnt lgkmcnt(0)")
    g.stamp("c", "i0"); g.nstamp["x"] = g.nstamp.get("c", 0)
    e("s_mov_b32 s4, s32\ns_mov_b32 s5, s33\ns_mov_b32 s8, s52\ns_mov_b32 s9, s53\ns_mov_b32 s16, s48\ns_mov_b32 s17, s49")
    e("s_mov_b32 s14, 2457600\ns_mov_b32 s21, %d\ns_cmp_ge_u32 s24, 12\ns_cselect_b64 s[12:13], s[40:41], s[34:35]\ns_cselect_b32 s14, 819200, s14" % SLOT + "")
    e("s_cmp_ge_u32 s22, 6\ns_cbranch_scc1 Lwload\ns_cmp_eq_u32 s22, 5\ns_cbranch_scc1 Lx5load\ns_cmp_eq_u32 s22, 4\ns_cbranch_scc1 Lx4load")

def slot_adv(g, regs, scnt="s57"):
    g.e(f"s_add_u32 {scnt}, {scnt}, 1\ns_and_b32 {scnt}, {scnt}, 3\ns_cselect_b32 s3, s21, {hx(-3*SLOT)}")
    return [f"v_add_u32 v{r}, s3, v{r}" for r in regs]

ACC, SUM, SQ, CS, ONES = 64, 144, 160, 176, 196
def j1_consumer(g):
    e = g.e
    XA, WA, XB, WB = 200, 216, 8, 24
    g.pk_setup()
    e("s_cmp_eq_u32 s22, 3\ns_cbranch_scc1 Lp0")
    e(f"s_lshl_b32 s100, s22, 8\ns_add_u32 s100, s100, s2\ns_cmp_ge_u32 s100, 740\ns_cselect_b32 s3, 256, 0\ns_sub_u32 s100, s100, s3\ns_lshl_b32 s101, s22, 12\ns_add_u32 s101, s101, {MISC}")
    g.stamp("c", "i0")
    e("s_call_b64 s[70:71], Lpk_issue\ns_branch Lp0x\nLp0:")
    e("s_cmp_lg_u32 s2, 0\ns_cbranch_scc1 Lp0x")
    for i in range(8, 12): e(f"v_mov_b32 v{i}, 0")
    for i in range(32): e((f"s_mov_b32 s3, {hx(CNT+1024*i)}\n" if i % 4 == 0 else "") + f"buffer_store_dwordx4 v[8:11], v251, s[8:11], s3 offen offset:{1024*(i%4)} sc0 sc1")
    e("s_waitcnt vmcnt(0)\nv_mov_b32 v4, 1\nglobal_store_dword v8, v4, s[50:51] sc0 sc1")
    if g.o.get("p0", 0):
        e("s_lshr_b32 s29, s2, 3\ns_lshr_b32 s3, s23, 3\ns_lshl_b32 s3, s3, 5\ns_add_u32 s3, s3, s29\ns_mul_i32 s30, s3, 40960")
        e("v_and_b32 v4, 31, v1\nv_mul_u32_u24 v4, 1280, v4\nv_lshrrev_b32 v5, 5, v1\nv_lshl_add_u32 v4, v5, 7, v4")
        e("s_movk_i32 s60, 3840\ns_cmp_ge_u32 s24, 12\ns_cselect_b32 s60, 1280, s60\ns_cselect_b32 s3, 12, 0\ns_sub_u32 s3, s24, s3\ns_lshr_b32 s3, s3, 2\ns_mul_i32 s61, s3, 1280")
        e("s_lshl_b32 s3, s29, 1\ns_mul_i32 s3, s3, s60\ns_add_u32 s61, s61, s3\ns_mul_i32 s62, s60, 192")
        e("v_mul_u32_u24 v5, 6554, v1\nv_lshrrev_b32 v5, 16, v5\nv_mul_u32_u24 v6, 10, v5\nv_sub_u32 v6, v1, v6")
        e("v_lshrrev_b32 v7, 1, v5\nv_and_b32 v5, 1, v5\nv_lshl_add_u32 v5, v7, 6, v5\nv_mul_lo_u32 v5, v5, s60\nv_lshl_add_u32 v5, v6, 7, v5")
        for t in ("w0", "x0", "x1", "w1", "x2", "w2", "x3", "x4", "w3"):
            q = int(t[1])
            if t[0] == "x": e(f"buffer_load_dword v8, v4, s[4:7], s30 offen offset:{256*q}")
            else:
                e("s_mov_b32 exec_hi, 0x0fffffff" if q < 3 else "s_mov_b64 exec, 0xfffff")
                e("buffer_load_dword v8, v5, s[12:15], s61 offen\ns_add_u32 s61, s61, s62\ns_mov_b64 exec, -1")
    e("Lp0x:")
    g.stamp("c", "i0"); g.stamp("c", "i0")
    e("s_lshr_b32 s58, s22, 1\ns_and_b32 s59, s22, 1\ns_xor_b32 s60, s58, s59")
    e("v_and_b32 v4, 15, v1\nv_lshrrev_b32 v5, 4, v1")
    e("s_lshl_b32 s3, s60, 2\nv_add_u32 v6, s3, v5\nv_lshrrev_b32 v7, 1, v4\nv_xor_b32 v6, v6, v7\nv_lshlrev_b32 v6, 4, v6")
    e("s_lshl_b32 s3, s58, 13\nv_lshlrev_b32 v7, 7, v4\nv_add3_u32 v2, v6, v7, s3\nv_xor_b32 v3, 64, v2")
    e("s_cmp_ge_u32 s24, 12\ns_cselect_b32 s61, 32, 40\ns_cselect_b32 s62, 8, 40\ns_cselect_b32 s63, 32, 160\ns_cselect_b32 s3, 256, 32")
    e("s_mul_i32 s63, s63, s59\ns_add_u32 s63, s63, s3")
    e("v_lshlrev_b32 v6, 3, v5\nv_bfe_u32 v7, v1, 2, 2\nv_add_u32 v6, v6, v7\nv_mul_u32_u24 v6, 320, v6")
    e("v_and_b32 v7, 3, v1\nv_and_b32 v54, 1, v5\nv_lshlrev_b32 v54, 5, v54")
    e(f"s_mul_i32 s64, s60, 10240\ns_add_u32 s64, s64, {WOFF}\ns_sub_u32 s65, {2*WOFF+10240}, s64")
    for nt in range(5):
        if nt < 4:
            e(f"s_lshl_b32 s3, s59, 2\ns_add_u32 s3, s3, {nt}\ns_mul_i32 s3, s3, s61\nv_lshlrev_b32 v55, 3, v7\nv_add_u32 v55, s3, v55")
        else:
            e("v_mul_lo_u32 v55, v7, s62\nv_add_u32 v55, s63, v55")
        e(f"v_xor_b32 v55, v55, v54\nv_add_u32 v55, v55, v6\nv_add_u32 v{44+nt}, s64, v55\nv_add_u32 v{49+nt}, s65, v55")
    for r in range(ACC, ONES): e(f"v_mov_b32 v{r}, 0")
    for r in range(ONES, ONES + 4): e(f"v_mov_b32 v{r}, 0x3f803f80")
    if not g.o.get("j1unr", 1):
        for r in range(XB, WB + 20): e(f"v_mov_b32 v{r}, 0")
    e("s_mov_b32 s57, 0\ns_mov_b32 s56, 0")
    if g.o.get("inner") == 0: e("s_memrealtime s[54:55]\ns_waitcnt vmcnt(0)\ns_memrealtime s[14:15]")
    e("s_cmp_eq_u32 s22, 3\ns_cbranch_scc1 Lpk2b\ns_waitcnt vmcnt(0)\ns_call_b64 s[70:71], Lpk_fin\nLpk2b:")
    if g.o.get("inner") == 0: e("s_waitcnt lgkmcnt(0)\ns_mov_b64 s[82:83], s[54:55]\ns_mov_b64 s[84:85], s[14:15]"); g.nstamp["c"] += 2
    g.stamp("c", "i0")
    def reads(xa, wa0, X, W):
        L = []
        for rt in range(4): L.append(f"ds_read_b128 {R(X+4*rt)}, v{xa} offset:{rt*2048}")
        for nt in range(5):
            L.append(f"ds_read_b64_tr_b16 {R(W+4*nt,2)}, v{wa0+nt}")
            L.append(f"ds_read_b64_tr_b16 {R(W+4*nt+2,2)}, v{wa0+nt} offset:1280")
        return L
    def mf(X, W, vt, phaseA):
        L = []
        for nt in range(5):
            for rt in range(4):
                a, b = (R(X+4*rt), R(W+4*nt)) if vt else (R(W+4*nt), R(X+4*rt))
                L.append(f"{MF} {R(ACC+(rt*5+nt)*4)}, {a}, {b}, {R(ACC+(rt*5+nt)*4)}")
            if not phaseA: L.append(f"{MF} {R(CS+4*nt)}, {R(ONES)}, {R(W+4*nt)}, {R(CS+4*nt)}")
        if phaseA:
            for rt in range(4):
                L.append(f"{MF} {R(SUM+4*rt)}, {R(ONES)}, {R(X+4*rt)}, {R(SUM+4*rt)}")
                L.append(f"{MF} {R(SQ+4*rt)}, {R(X+4*rt)}, {R(X+4*rt)}, {R(SQ+4*rt)}")
        return L
    e("s_lshr_b32 s3, s24, 2\ns_cmp_eq_u32 s3, 2\ns_cbranch_scc1 Lj1v")
    DEN = g.o.get("j1den", 8)
    UNR = g.o.get("j1unr", 1)
    for vt in (0, 1):
        lp = "Lj1v" if vt else "Lj1n"
        e(f"{lp}:")
        mB = mf(XB, WB, vt, False); mA = mf(XA, WA, vt, True)
        for it in range(10 if UNR else 1):
            if it == g.o.get("ps", 1): e("s_waitcnt vmcnt(0)")
            if not UNR: e(f"s_cmp_eq_u32 s56, 0\ns_cbranch_scc1 {lp}w\ns_waitcnt vmcnt(0)\n{lp}w:")
            e("s_barrier")
            if vt and it == 0 and g.o.get("inner") == 1: g.nstamp["c"] -= 10
            if vt and it == 0 and g.o.get("inner") == 0: g.nstamp["c"] -= 2
            g.stamp("c", "i1" if it > 1 else "i01")
            if UNR and it == 0:
                for x in reads(2, 44, XA, WA): e(x)
            else:
                for x in interleave(mB[:DEN], reads(2, 44, XA, WA)) + mB[DEN:]: e(x)
            e("s_waitcnt lgkmcnt(0)")
            for x in interleave(mA[:DEN], reads(3, 49, XB, WB)): e(x)
            adv = slot_adv(g, [2, 3] + list(range(44, 54)))
            for x in interleave(mA[DEN:], adv): e(x)
            e("s_waitcnt lgkmcnt(0)")
        if not UNR: e(f"s_add_u32 s56, s56, 1\ns_cmp_lt_u32 s56, 10\ns_cbranch_scc1 {lp}")
        for x in mB: e(x)
        if not vt: e("s_branch Lj1done")
    e("Lj1done:")
    g.stamp("c", "16")
    e(f"s_lshl_b32 s3, s59, 9\ns_lshl_b32 s29, s58, 8\ns_add_u32 s3, s3, s29\ns_add_u32 s3, s3, {MISC}\nv_lshlrev_b32 v6, 2, v4\nv_add_u32 v6, s3, v6")
    e(f"s_mul_i32 s3, s58, 640\ns_mul_i32 s29, s59, 320\ns_add_u32 s3, s3, s29\ns_add_u32 s3, s3, {MISC+2048}\nv_lshlrev_b32 v7, 2, v4\nv_add_u32 v7, s3, v7")
    e("s_mov_b32 s60, 0x22222222\ns_mov_b32 s61, s60\ns_mov_b32 s62, 0x44444444\ns_mov_b32 s63, s62\ns_mov_b32 s64, 0x88888888\ns_mov_b32 s65, s64\ns_nop 3")
    for rt in range(4):
        q = SQ + 4 * rt
        e(f"v_cndmask_b32 v{q}, v{q}, v{q+1}, s[60:61]\nv_cndmask_b32 v{q}, v{q}, v{q+2}, s[62:63]\nv_cndmask_b32 v{q}, v{q}, v{q+3}, s[64:65]")
    e("s_mov_b32 exec_lo, 0x00f0000f\ns_mov_b32 exec_hi, 0xf0000f00")
    for rt in range(4):
        e(f"ds_write_b32 v6, v{SUM+4*rt} offset:{64*rt}\nds_write_b32 v6, v{SQ+4*rt} offset:{1024+64*rt}")
    for nt in range(5): e(f"ds_write_b32 v7, v{CS+4*nt} offset:{64*nt}")
    e("s_mov_b64 exec, -1\ns_waitcnt lgkmcnt(0)\ns_barrier")
    g.stamp("c", "i6")
    e("s_lshr_b32 s61, s24, 2\ns_and_b32 s62, s24, 3")
    e(f"s_mul_i32 s60, s61, {KF}\ns_mul_i32 s3, s62, 5120\ns_add_u32 s60, s60, s3\ns_lshl_b32 s3, s59, 11\ns_add_u32 s63, s60, s3")
    e("s_lshl_b32 s3, s59, 9\ns_add_u32 s64, s60, s3\ns_add_u32 s64, s64, 4096")
    e("v_lshrrev_b32 v3, 1, v5\nv_sub_u32 v3, v5, v3\nv_lshlrev_b32 v3, 8, v3\nv_and_b32 v2, 1, v5\nv_lshlrev_b32 v2, 3, v2\nv_sub_u32 v3, v3, v2")
    e("s_lshl_b32 s65, s23, 7\ns_lshl_b32 s3, s58, 6\ns_add_u32 s65, s65, s3")
    inv = hx(f2u(1.0 / 640)); eps = hx(f2u(1e-5))
    e(f"s_mov_b32 s66, {inv}\ns_mov_b32 s67, {eps}")
    e("s_cmp_eq_u32 s61, 2\ns_cbranch_scc1 Lj1ev")
    e(f"s_lshl_b32 s3, s58, 8\ns_add_u32 s3, s3, {MISC}\nv_lshlrev_b32 v6, 2, v4\nv_add_u32 v6, s3, v6")
    e(f"s_mul_i32 s3, s59, 320\ns_add_u32 s3, s3, {MISC+2048}\nv_lshlrev_b32 v7, 4, v5\nv_add_u32 v7, s3, v7")
    for rt in range(4):
        e(f"ds_read2_b32 {R(8+4*rt,2)}, v6 offset0:{16*rt} offset1:{128+16*rt}")
        e(f"ds_read_b32 v{10+4*rt}, v6 offset:{1024+64*rt}\nds_read_b32 v{11+4*rt}, v6 offset:{1536+64*rt}")
    for nt in range(5):
        e(f"ds_read_b128 {R(144+4*nt)}, v7 offset:{64*nt}\nds_read_b128 {R(164+4*nt)}, v7 offset:{640+64*nt}")
    e("s_lshr_b32 s3, s62, 1\ns_add_u32 s3, s3, 1\ns_sub_u32 s29, 0, s3\ns_bitcmp1_b32 s62, 0\ns_cselect_b32 s3, s29, s3\ns_cmp_eq_u32 s61, 3\ns_cselect_b32 s68, s3, 0")
    e("s_add_u32 s3, s65, s68\nv_add_u32 v24, s3, v4\ns_movk_i32 s69, 0x5000")
    for rt in range(4):
        e(f"v_add_u32 v25, {16*rt}, v24\nv_and_b32 v26, 0x7ff, v25\nv_cmp_eq_u32 s[{70+0}:{71}], v25, v26" if False else
          f"v_add_u32 v25, {16*rt}, v24\nv_and_b32 v26, 0x7ff, v25\nv_cmp_eq_u32 vcc, v25, v26")
        e(f"v_lshrrev_b32 v25, 4, v26\nv_and_b32 v26, 15, v26\nv_cndmask_b32 v{32+rt}, 0, 1.0, vcc")
        e(f"v_mul_lo_u32 v25, v25, s69\nv_lshl_add_u32 v26, v5, 4, v26\nv_lshl_add_u32 v{28+rt}, v26, 4, v25")
    e("s_waitcnt lgkmcnt(0)")
    for rt in range(4):
        b = 8 + 4 * rt
        e(f"v_add_f32 v{b}, v{b}, v{b+1}\nv_add_f32 v{b+2}, v{b+2}, v{b+3}\nv_mul_f32 v{b}, s66, v{b}\nv_mul_f32 v{b+2}, s66, v{b+2}")
        e(f"v_fma_f32 v{b+2}, -v{b}, v{b}, v{b+2}\nv_max_f32 v{b+2}, 0, v{b+2}\nv_add_f32 v{b+3}, s67, v{b+2}\nv_rsq_f32 v{b+1}, v{b+3}")
    for i in range(10): e(f"v_pk_add_f32 {R(144+2*i,2)}, {R(144+2*i,2)}, {R(164+2*i,2)}")
    e("s_cmp_lg_u32 s24, 12\ns_cbranch_scc1 Lj1nost\ns_cmp_lg_u32 s59, 0\ns_cbranch_scc1 Lj1nost")
    e(f"s_lshl_b32 s3, s65, 3\ns_add_u32 s3, s3, {hx(STAT)}\nv_lshlrev_b32 v6, 3, v4\ns_mov_b64 exec, 0xffff")
    for rt in range(4): e(f"buffer_store_dwordx2 {R(8+4*rt,2)}, v6, s[8:11], s3 offen offset:{128*rt} {PL}")
    e("s_mov_b64 exec, -1\nLj1nost:")
    e("s_cmp_lg_u32 s61, 3\ns_cbranch_scc1 Lj1nh")
    for rt in range(4):
        b = 8 + 4 * rt
        e(f"v_mul_f32 v{b+3}, v{b+1}, v{b+1}\nv_fma_f32 v{b+3}, v{b+3}, v{b+2}, s67\nv_rsq_f32 v{b+3}, v{b+3}\nv_mul_f32 v{b+2}, v{b+1}, v{32+rt}\nv_mul_f32 v{b+3}, v{b+2}, v{b+3}")
        e(f"v_mov_b32 v{b+2}, v{b}\n")
    e("s_branch Lj1nh2\nLj1nh:")
    for rt in range(4):
        b = 8 + 4 * rt
        e(f"v_mov_b32 v{b+2}, v{b}\nv_mov_b32 v{b+3}, v{b+1}")
    e("Lj1nh2:")
    g.stamp("c", "i6")
    e(f"s_mov_b32 s54, {hx(f2u(GELU_C1))}\ns_mov_b32 s55, s54\nv_mov_b32 v44, {hx(f2u(GELU_C0))}\nv_mov_b32 v45, v44")
    for rt in range(4):
        b = 8 + 4 * rt
        for nt in range(5):
            for h in range(2):
                a = ACC + (rt * 5 + nt) * 4 + 2 * h
                e(f"v_pk_fma_f32 {R(a,2)}, {R(144+4*nt+2*h,2)}, {R(b+2,2)}, {R(a,2)} op_sel_hi:[1,0,1] neg_lo:[1,0,0] neg_hi:[1,0,0]")
        for nt in range(5):
            for h in range(2):
                a = ACC + (rt * 5 + nt) * 4 + 2 * h
                e(f"v_pk_mul_f32 {R(a,2)}, {R(a,2)}, {R(b+2,2)} op_sel:[0,1] op_sel_hi:[1,1]")
        sk = g.lab("Lsk")
        e(f"s_cmp_lg_u32 s61, 3\ns_cbranch_scc1 {sk}")
        gelu_pairs(g, [ACC + rt * 20 + 2 * i for i in range(10)], 36)
        e(f"{sk}:")
        if not g.o.get("late1", 0): store_tile(g, ACC + rt * 20, 200 + 12 * (rt % 2), f"v{28+rt}", "s63", "s64", 0)
    g.stamp("c", "i6")
    if g.o.get("late1", 0):
        for rt in range(4): store_tile(g, ACC + rt * 20, ACC + rt * 20, f"v{28+rt}", "s63", "s64", 0)
    e("s_branch Lj1pub")
    e("Lj1ev:")
    e(f"s_lshl_b32 s3, s58, 8\ns_add_u32 s3, s3, {MISC}\nv_lshlrev_b32 v6, 4, v5\nv_add_u32 v6, s3, v6")
    e(f"s_mul_i32 s3, s59, 320\ns_add_u32 s3, s3, {MISC+2048}\nv_lshlrev_b32 v7, 2, v4\nv_add_u32 v7, s3, v7")
    for rt in range(4):
        e(f"ds_read_b128 {R(144+16*rt)}, v6 offset:{64*rt}\nds_read_b128 {R(148+16*rt)}, v6 offset:{512+64*rt}")
        e(f"ds_read_b128 {R(152+16*rt)}, v6 offset:{1024+64*rt}\nds_read_b128 {R(156+16*rt)}, v6 offset:{1536+64*rt}")
    for nt in range(5): e(f"ds_read2_b32 {R(8+2*nt,2)}, v7 offset0:{16*nt} offset1:{160+16*nt}")
    e("s_lshr_b32 s3, s65, 4\ns_mul_i32 s3, s3, 20480\nv_lshlrev_b32 v28, 4, v1\nv_add_u32 v28, s3, v28")
    for rt in range(1, 4): e(f"v_add_u32 v{28+rt}, {20480*rt}, v28")
    e("s_waitcnt lgkmcnt(0)")
    for nt in range(5): e(f"v_add_f32 v{8+2*nt}, v{8+2*nt}, v{9+2*nt}")
    for rt in range(4):
        for r in range(4):
            m, q = 144 + 16 * rt + r, 152 + 16 * rt + r
            e(f"v_add_f32 v{m}, v{m}, v{m+4}\nv_add_f32 v{q}, v{q}, v{q+4}\nv_mul_f32 v{m}, s66, v{m}\nv_mul_f32 v{q}, s66, v{q}")
            e(f"v_fma_f32 v{q}, -v{m}, v{m}, v{q}\nv_max_f32 v{q}, 0, v{q}\nv_add_f32 v{q}, s67, v{q}\nv_rsq_f32 v{q}, v{q}")
    e("s_nop 0")
    for rt in range(4):
        for nt in range(5):
            for h in range(2):
                a = ACC + (rt * 5 + nt) * 4 + 2 * h
                e(f"v_pk_fma_f32 {R(a,2)}, {R(144+16*rt+2*h,2)}, {R(8+2*nt,2)}, {R(a,2)} op_sel_hi:[1,0,1] neg_lo:[1,0,0] neg_hi:[1,0,0]")
        for nt in range(5):
            for h in range(2):
                a = ACC + (rt * 5 + nt) * 4 + 2 * h
                e(f"v_pk_mul_f32 {R(a,2)}, {R(a,2)}, {R(152+16*rt+2*h,2)}")
        store_tile(g, ACC + rt * 20, 212 + 12 * (rt % 2), f"v{28+rt}", "s63", "s64", 0)
    e("Lj1pub:")
    g.stamp("c", "16")
    g.flag_off(F_J1, "s23", 7, "s24"); e("s_waitcnt vmcnt(0)")
    g.stamp("c", "i6")
    g.wsignal(0, 1)
    g.stamp("c", "i6")

def store_tile(g, a, t, vo, spair, ssingle, off, npair=2, srd="s[8:11]", pstep=1024, pol=PL):
    n = npair * 4 + 2
    for i in range(n): g.e(f"v_cvt_pk_bf16_f32 v{t+i}, v{a+2*i}, v{a+2*i+1}")
    vop, vos = vo if isinstance(vo, tuple) else (vo, vo)
    if spair == "s63" and vos == "v30": vos = vop = "v30 "
    for p in range(npair): g.e(f"buffer_store_dwordx4 {R(t+4*p)}, {vop}, {srd}, {spair} offen offset:{off+pstep*p} {pol}")
    if vos == "v30": vos = "v2"
    elif vos == vop: g.e(f"v_sub_u32 v2, {vop}, v3"); vos = "v2"
    g.e(f"buffer_store_dwordx2 {R(t+4*npair,2)}, {vos}, {srd}, {ssingle} offen offset:{off} {pol}")


def packer_subs(g):
    e = g.e
    e("Lpk_issue:")
    e("s_mov_b32 s91, 0\ns_movk_i32 s85, 1280\ns_cmp_ge_u32 s100, 940\ns_cbranch_scc1 Lpk_w4")
    e("s_cmp_ge_u32 s100, 740\ns_cbranch_scc1 Lpk_wo\ns_cmp_ge_u32 s100, 200\ns_cbranch_scc1 Lpk_w3")
    e(f"s_mov_b64 s[92:93], s[42:43]\ns_mov_b32 s94, 819200\ns_mov_b32 s89, 0\ns_movk_i32 s90, 100\ns_mov_b32 s3, s100\ns_mov_b32 s31, 5\ns_branch Lpk_acc10")
    e(f"Lpk_w4:\ns_mov_b64 s[92:93], s[46:47]\ns_mov_b32 s94, 2211840\ns_mov_b32 s89, {(W4P-W2P)>>10}\ns_movk_i32 s90, 270\ns_sub_u32 s3, s100, 940\ns_mov_b32 s31, 7")
    e("Lpk_acc10:"); g.sdiv("s83", "s3", 10, 600)
    e("s_mul_i32 s84, s83, 10\ns_sub_u32 s84, s3, s84\ns_lshl_b32 s86, s83, 5\ns_mov_b32 s29, 0x4210\ns_bitset1_b32 s29, 19\ns_cmp_eq_u32 s31, 5\ns_cselect_b32 s30, s29, 0x81020408\ns_mov_b32 s31, 0x00102040")
    e("s_bitcmp1_b64 s[30:31], s83\ns_cselect_b32 s87, 4, 16\ns_cselect_b32 s88, 8, 4\ns_branch Lpk_go")
    e(f"Lpk_wo:\ns_mov_b64 s[92:93], s[36:37]\ns_mov_b32 s94, 819200\ns_mov_b32 s89, {(WOP-W2P)>>10}\ns_movk_i32 s90, 100\ns_sub_u32 s3, s100, 740")
    g.sdiv("s83", "s3", 10, 600)
    e("s_mul_i32 s84, s83, 10\ns_sub_u32 s84, s3, s84"); g.sdiv("s29", "s83", 5, 64)
    e("s_mul_i32 s30, s29, 5\ns_sub_u32 s30, s83, s30\ns_mul_i32 s86, s29, 160\ns_mul_i32 s3, s30, 40\ns_cmp_eq_u32 s30, 4")
    e("s_cselect_b32 s3, 16, s3\ns_mov_b32 s87, 20\ns_cselect_b32 s88, 40, 4\ns_add_u32 s86, s86, s3\ns_branch Lpk_go")
    e(f"Lpk_w3:\ns_mov_b64 s[92:93], s[44:45]\ns_mov_b32 s94, 2211840\ns_mov_b32 s89, {(W3P-W2P)>>10}\ns_movk_i32 s90, 140\ns_mov_b32 s91, 1\ns_movk_i32 s85, 3456\ns_sub_u32 s3, s100, 200")
    g.sdiv("s83", "s3", 27, 600)
    e("s_mul_i32 s84, s83, 27\ns_sub_u32 s84, s3, s84"); g.sdiv("s29", "s83", 5, 64)
    e("s_mul_i32 s30, s29, 5\ns_sub_u32 s30, s83, s30\ns_lshl_b32 s86, s83, 5\ns_mov_b32 s87, 4\ns_mov_b32 s88, 8")
    e("Lpk_go:")
    e("v_mul_lo_u32 v242, v236, s87\nv_add_u32 v242, v242, v237\nv_mul_lo_u32 v242, v242, s85\nv_add_u32 v242, v242, v238")
    e("s_mul_i32 s86, s86, s85\ns_lshl_b32 s3, s84, 7\ns_add_u32 s86, s86, s3\ns_mul_i32 s88, s88, s85")
    for d in range(4):
        e(f"s_add_u32 m0, s101, {d*1024}\ns_nop 0\nbuffer_load_dwordx4 v242, s[92:95], s86 offen lds")
        if d < 3: e("s_add_u32 s86, s86, s88")
    for fbl in range(2):
        lw3, ldn = g.lab("Lpkd"), g.lab("Lpkd")
        e(f"s_lshl_b32 s3, s84, 1\ns_add_u32 s3, s3, {fbl}\ns_cmp_lg_u32 s91, 0\ns_cbranch_scc1 {lw3}")
        g.sdiv("s29", "s3", 5, 64)
        e("s_mul_i32 s30, s29, 5\ns_sub_u32 s30, s3, s30\ns_lshl_b32 s29, s29, 1")
        e("s_lshr_b32 s3, s30, 1\ns_and_b32 s31, s30, 1\ns_lshl_b32 s31, s31, 1\ns_cmp_eq_u32 s30, 4")
        e("s_cselect_b32 s3, 0, s3\ns_cselect_b32 s31, 4, s31\ns_cselect_b32 s86, s90, 1\ns_cselect_b32 s87, 8, 16\ns_cselect_b32 s30, 32, 8")
        e("s_add_u32 s29, s29, s3\ns_mul_i32 s29, s29, s90\ns_mul_i32 s3, s83, 5")
        e(f"s_branch {ldn}\n{lw3}:")
        g.sdiv("s29", "s3", 7, 64)
        e("s_mul_i32 s30, s29, 7\ns_sub_u32 s30, s3, s30\ns_lshl_b32 s29, s29, 1")
        e("s_lshr_b32 s3, s30, 2\ns_and_b32 s31, s30, 3\ns_lshl_b32 s31, s31, 1\ns_cmp_eq_u32 s30, 3")
        e("s_cselect_b32 s86, s90, 1\ns_mov_b32 s87, 8\ns_mov_b32 s30, 32")
        e("s_add_u32 s29, s29, s3\ns_mul_i32 s29, s29, s90\ns_mul_i32 s3, s83, 7")
        e(f"{ldn}:")
        e(f"s_add_u32 s29, s29, s3\ns_add_u32 s29, s29, s31\ns_add_u32 s{96+2*fbl}, s29, s89\ns_add_u32 s{97+2*fbl}, s{96+2*fbl}, s86")
        e(f"v_mul_lo_u32 v{243+2*fbl}, v240, s87\nv_add3_u32 v{243+2*fbl}, v{243+2*fbl}, v239, s101\nv_add_u32 v{244+2*fbl}, s30, v{243+2*fbl}")
    e("s_setpc_b64 s[70:71]")
    e("Lpk_fin:")
    for q in range(4):
        e(f"ds_read_b64_tr_b16 {R(200+4*q,2)}, v{243+q} offset:{64*(q//2)}\nds_read_b64_tr_b16 {R(202+4*q,2)}, v{243+q} offset:{64*(q//2)+512}")
    e("s_waitcnt lgkmcnt(0)")
    for q in range(4): e(f"{MF} {R(216+4*q)}, {R(ONES)}, {R(200+4*q)}, 0")
    for q in range(4):
        e(f"s_lshl_b32 s3, s{96+q}, 10\ns_add_u32 s3, s3, {hx(W2P)}\nbuffer_store_dwordx4 {R(200+4*q)}, v251, s[8:11], s3 offen {PL}")
    e("s_mov_b64 exec, 0xffff")
    for q in range(4):
        e(f"s_lshl_b32 s3, s{96+q}, 6\ns_add_u32 s3, s3, {hx(CSP)}\nbuffer_store_dword v{216+4*q}, v241, s[8:11], s3 offen {PL}")
    e("s_mov_b64 exec, -1\ns_setpc_b64 s[70:71]")

def call(g, target):
    g.e(f"s_getpc_b64 s[30:31]\ns_add_u32 s30, s30, {target}-.+0\ns_addc_u32 s31, s31, 0\ns_swappc_b64 s[20:21], s[30:31]".replace("-.+0", "@"))

class VM:
    def __init__(s, g): s.g = g; s.ops = []
    def op(s, text, tag=None): s.g.e(text); s.ops.append(tag)
    def n_after(s, tag):
        idx = [i for i, t in enumerate(s.ops) if t == tag]
        return None if not idx else len(s.ops) - 1 - idx[-1]
    def wait(s, tag):
        n = s.n_after(tag)
        if n is None: return
        assert n <= 63, n
        s.g.e(f"s_waitcnt vmcnt({n})"); s.ops = s.ops[len(s.ops) - n:]
    def room(s, k):
        if len(s.ops) + k > 60:
            n = 60 - k - 4; s.g.e(f"s_waitcnt vmcnt({n})"); s.ops = s.ops[len(s.ops) - n:]
    def drained(s): s.ops = []

def lds_ref(off):
    b = off >> 16
    return f"v{30+b} offset:{off & 0xffff}"

def xgemm(g, vm, nks, nrt, nnt, acc, XW, WB, waddr, xload, pre_issued=0, barrier_at=None, hook=None, AH=2, st=None, pre=99, rotw=None):
    e = g.e; win = len(XW) // nrt; nb = len(WB)
    def xreg(ks, rt): return XW[(ks % win) * nrt + rt]
    def issue_x(ks):
        for rt, t in enumerate(xload(ks)): vm.op(t.replace("{r}", R(xreg(ks, rt))), ("x", ks))
    def rd(ks):
        L = ["s_barrier"] if barrier_at and ks in barrier_at else []
        if rotw:
            cs = 4 * nnt * 1024; p = ""
            if ks % 4 == 0:
                if ks: p = f"s_add_u32 {rotw}, {rotw}, {cs}\ns_cmp_ge_u32 {rotw}, {5*cs}\ns_cselect_b32 {rotw}, 0, {rotw}\n"
                p += f"v_add_u32 v33, {rotw}, v30\n"
            return L + [(p if nt == 0 else "") + f"ds_read_b128 {R(WB[ks % nb]+4*nt)}, v33 offset:{((ks % 4) * nnt + nt) * 1024}" for nt in range(nnt)]
        return L + [f"ds_read_b128 {R(WB[ks % nb]+4*nt)}, {waddr(ks, nt)}" for nt in range(nnt)]
    nx = pre_issued
    while nx < min(win, nks, pre): issue_x(nx); nx += 1
    if hook: hook(-1)
    for ks in range(min(AH, nks)):
        for x in rd(ks): e(x)
    for ks in range(nks):
        vm.wait(("x", ks))
        later = min(AH - 1, nks - 1 - ks) * nnt
        e(f"s_waitcnt lgkmcnt({later})")
        if st and ks in st[1] and str(g.o.get("inner", "")) and str(g.o.get("inner")) in st[0]: g.stamp("c", st[0]); e("s_waitcnt lgkmcnt(0)")
        m = []
        for nt in range(nnt):
            for rt in range(nrt):
                a = R(acc + (rt * nnt + nt) * 4)
                m.append(f"{MF} {a}, {R(WB[ks % nb]+4*nt)}, {R(xreg(ks, rt))}, {'0' if ks == 0 else a}")
        r = rd(ks + AH) if ks + AH < nks else []
        if nb > AH:
            h = max(1, len(m) * 2 // 3)
            seq = interleave(m[:h], r) + m[h:]
        else:
            j = 0; seq = []
            if r and r[0] == "s_barrier": seq.append(r[0]); r = r[1:]
            for i, x in enumerate(m):
                seq.append(x)
                if r and (i + 1) % nrt == 0: seq.append(r[j]); j += 1
        lds = []
        if g.o.get("spread", 1):
            for _ in range(2):
                if nx < nks and nx <= ks + win - 1:
                    for rt, t in enumerate(xload(nx)): lds.append(t.replace("{r}", R(xreg(nx, rt)))); vm.ops.append(("x", nx))
                    nx += 1
            n = len(seq); out = []; jj = 0
            for i, x in enumerate(seq):
                out.append(x)
                while jj < len(lds) and (2 * jj + 1) * n <= (i + 1) * 2 * len(lds): out.append(lds[jj]); jj += 1
            seq = out + lds[jj:]
        for x in seq: e(x)
        if not g.o.get("spread", 1):
            for _ in range(2):
                if nx < nks and nx <= ks + win: issue_x(nx); nx += 1
        if hook: hook(ks)

def rot_setup(g, idx, cs, sx, sw):
    if g.o.get("rot", 0):
        g.sdiv("s3", idx, 5, 16); g.e(f"s_mul_i32 s3, s3, 5\ns_sub_u32 s3, {idx}, s3")
    else: g.e("s_mov_b32 s3, 0")
    g.e(f"s_lshl_b32 {sx}, s3, 12\ns_mul_i32 {sw}, s3, {cs}")

def xl_rot(sb, sx, st, nrt=1):
    def f(ks):
        p = ""
        if ks % 4 == 0:
            if ks: p = f"s_add_u32 {sx}, {sx}, 4096\ns_cmp_ge_u32 {sx}, 20480\ns_cselect_b32 {sx}, 0, {sx}\n"
            p += f"s_add_u32 {st[0]}, {sb}, {sx}\n"
            if nrt == 2: p += f"s_add_u32 {st[1]}, {st[0]}, 20480\n"
        return [(p if rt == 0 else "") + f"buffer_load_dwordx4 {{r}}, v30, s[8:11], {st[rt]} offen offset:{(ks % 4) * 1024} {PL}" for rt in range(nrt)]
    return f

XK, X1K = 236, 246
AQ, AKC, AKP, AVC, AVP = 34, 44, 54, 224, 8
def tile_addr(g):
    e = g.e
    e("v_and_b32 v4, 15, v1\nv_lshrrev_b32 v5, 4, v1")
    e("s_lshl_b32 s65, s27, 6\ns_lshl_b32 s3, s22, 4\ns_add_u32 s65, s65, s3")
    e("s_lshr_b32 s58, s28, 1\ns_and_b32 s59, s28, 1")
    e("v_mul_u32_u24 v28, 1280, v4\nv_lshl_add_u32 v29, v5, 3, v28\nv_lshl_add_u32 v28, v5, 4, v28")
    e("s_mul_i32 s60, s65, 1280\ns_mul_i32 s3, s58, 320\ns_add_u32 s60, s60, s3\ns_lshl_b32 s3, s59, 5\ns_add_u32 s61, s60, s3\ns_add_u32 s61, s61, 256")
    e("s_lshl_b32 s3, s59, 7\ns_add_u32 s60, s60, s3")
    e("s_lshr_b32 s64, s65, 4\ns_mul_i32 s64, s64, 20480\ns_mul_i32 s3, s58, 5120\ns_add_u32 s62, s64, s3")
    e("s_lshl_b32 s3, s59, 9\ns_add_u32 s63, s62, s3\ns_add_u32 s63, s63, 4096\ns_lshl_b32 s3, s59, 11\ns_add_u32 s62, s62, s3")
    e("v_lshlrev_b32 v30, 4, v1\nv_add_u32 v31, 0x10000, v30\nv_add_u32 v32, 0x20000, v30\nv_sub_u32 v2, v30, v3")

def unpack(g, src, dst, n):
    for i in range(n): g.e(f"v_lshlrev_b32 v{dst+2*i}, 16, v{src+i}\nv_and_b32 v{dst+2*i+1}, 0xffff0000, v{src+i}")

def xl_lin(sreg):
    def f(ks):
        pre = f"s_add_u32 {sreg}, {sreg}, 4096\n" if ks and ks % 4 == 0 else ""
        return [pre + f"buffer_load_dwordx4 {{r}}, v30, s[8:11], {sreg} offen offset:{(ks % 4) * 1024} {PL}"]
    return f

def j2_consumer(g):
    e = g.e; vm = VM(g)
    tile_addr(g)
    e(f"buffer_load_dwordx4 {R(XK)}, v28, s[4:7], s60 offen\nbuffer_load_dwordx4 {R(XK+4)}, v28, s[4:7], s60 offen offset:64\nbuffer_load_dwordx2 {R(XK+8,2)}, v29, s[4:7], s61 offen")
    e(f"s_add_u32 s66, s64, {hx(HF)}\ns_lshl_b32 s67, s65, 3\ns_add_u32 s67, s67, {hx(STAT)}\nv_lshlrev_b32 v6, 3, v4")
    e("s_cmp_eq_u32 s65, 0\ns_cselect_b32 s3, 0, 20480\ns_sub_u32 s68, s62, s3\ns_sub_u32 s69, s63, s3")
    rot_setup(g, "s28", 20480, "s56", "s57")
    g.stamp("c", "i6")
    e("s_barrier")
    g.stamp("c", "26")
    att = []
    for (rr, base, sp, ss) in ((AQ, QF, "s62", "s63"), (AKC, KF, "s62", "s63"), (AKP, KF, "s68", "s69"), (AVC, VF, "s62", "s63"), (AVP, VF, "s68", "s69")):
        att.append(f"s_add_u32 s70, {sp}, {hx(base)}\ns_add_u32 s71, {ss}, {hx(base)}\nbuffer_load_dwordx4 {R(rr)}, v30, s[8:11], s70 offen {PL}")
        att.append(f"buffer_load_dwordx4 {R(rr+4)}, v30, s[8:11], s70 offen offset:1024 {PL}")
        att.append(f"buffer_load_dwordx2 {R(rr+8,2)}, v2, s[8:11], s71 offen {PL}")
    A0 = g.o.get("att0", 5)
    def hook(ks):
        if ks == A0 - 1: vm.op(f"buffer_load_dwordx2 v[18:19], v6, s[8:11], s67 offen {PL}", "st")

    xgemm(g, vm, 20, 1, 5, 64, [84 + 4 * i for i in range(20)], [164, 184, 204], None, xl_rot("s66", "s56", ["s20"]), hook=hook,
          st=("i2", (0, 1, 4, 8, 12, 16)), pre=g.o.get("pre2", 10), rotw="s57", barrier_at={g.o.get("m2", 8)})
    g.stamp("c", "2")
    vm.wait("st")
    unpack(g, XK, 84, 10)
    e("v_mul_f32 v20, v18, v19\nv_mov_b32 v21, v19")
    for i in range(10): e(f"v_pk_add_f32 {R(64+2*i,2)}, {R(64+2*i,2)}, v[20:21] op_sel_hi:[1,0] neg_lo:[0,1] neg_hi:[0,1]")
    for i in range(10): e(f"v_pk_fma_f32 {R(64+2*i,2)}, {R(84+2*i,2)}, v[20:21], {R(64+2*i,2)} op_sel:[0,1,0] op_sel_hi:[1,1,1]")
    e(f"s_add_u32 s66, s62, {hx(X1F)}\ns_add_u32 s67, s63, {hx(X1F)}")
    store_tile(g, 64, X1K, "v30", "s66", "s67", 0)
    e("v_pk_mul_f32 v[24:25], v[64:65], v[64:65]\nv_pk_add_f32 v[22:23], v[64:65], v[66:67]\nv_pk_fma_f32 v[24:25], v[66:67], v[66:67], v[24:25]")
    for i in range(2, 10):
        e(f"v_pk_add_f32 v[22:23], v[22:23], {R(64+2*i,2)}\nv_pk_fma_f32 v[24:25], {R(64+2*i,2)}, {R(64+2*i,2)}, v[24:25]")
    e("v_add_f32 v22, v22, v23\nv_add_f32 v23, v24, v25")
    for sw in ("v_permlane32_swap_b32", "v_permlane16_swap_b32"):
        e(f"v_mov_b32 v24, v22\nv_mov_b32 v25, v23\ns_nop 1\n{sw} v24, v22\n{sw} v25, v23\nv_pk_add_f32 v[22:23], v[22:23], v[24:25]")
    e(f"s_lshl_b32 s3, s65, 6\ns_lshl_b32 s29, s28, 7\ns_add_u32 s3, s3, s29\ns_add_u32 s3, s3, {hx(PST)}\nv_lshlrev_b32 v6, 3, v4")
    e(f"s_mov_b64 exec, 0xffff\nbuffer_store_dwordx2 v[22:23], v6, s[8:11], s3 offen {PL}\ns_mov_b64 exec, -1")
    g.stamp("c", "i2")
    e("s_barrier")
    g.stamp("c", "i2")
    for x in att: e(x)
    attention(g, 0)
    e("s_waitcnt vmcnt(15)")
    g.stamp("c", "i2")
    g.flag_off(F_X1, "s25", 7, "s26"); g.wsignal(1)
    g.stamp("c", "2")
    e("s_waitcnt vmcnt(1)\ns_cbranch_vccnz Latt\ns_waitcnt vmcnt(0)\nLatt:")
    attention(g, 1)

def attention(g, part):
    e = g.e
    Q, KP, KC, VP, VC = AQ, AKP, AKC, AVP, AVC
    BI, S, QM, P, VM_, O = 84, 96, 128, 136, 152, 168
    if part == 0:
        e("v_lshlrev_b32 v26, 2, v5\nv_sub_u32 v26, v4, v26\nv_mov_b32 v92, 0xf149f2ca\ns_cmp_eq_u32 s65, 0\ns_cselect_b32 s3, 1024, 16")
        for kt in range(2):
            for r in range(4):
                if kt == 0: e(f"v_add_u32 v27, s3, v26\nv_subrev_u32 v27, {r}, v27")
                else: e(f"v_subrev_u32 v27, {r}, v26")
                e(f"v_and_b32 v27, 0xfffffff1, v27\nv_cmp_eq_u32 vcc, 0, v27\ns_nop 1\nv_cndmask_b32 v{BI+4*kt+r}, v92, 0, vcc")
        return
    for h in range(4):
        lo = (0xffff << (16 * h)) & 0xffffffff; hi = (0xffff << (16 * h)) >> 32
        e(f"s_mov_b32 vcc_lo, {hx(lo)}\ns_mov_b32 vcc_hi, {hx(hi)}\ns_nop 0\nv_cndmask_b32 v{QM+2*h}, 0, v{Q+8}, vcc\nv_cndmask_b32 v{QM+2*h+1}, 0, v{Q+9}, vcc")
    e("s_nop 1")
    for h in range(4):
        for kt, K in enumerate((KP, KC)): e(f"{MF16} {R(S+8*h+4*kt)}, {R(K+2*h,2)}, {R(Q+2*h,2)}, {R(BI+4*kt)}")
    for h in range(4):
        for kt, K in enumerate((KP, KC)): e(f"{MF16} {R(S+8*h+4*kt)}, {R(K+8,2)}, {R(QM+2*h,2)}, {R(S+8*h+4*kt)}")
    for h in range(4):
        m = 0x000f000f << (4 * h)
        e(f"s_mov_b32 vcc_lo, {hx(m)}\ns_mov_b32 vcc_hi, {hx(m)}\ns_nop 0")
        for kt, V in enumerate((VP, VC)):
            e(f"v_cndmask_b32 v{VM_+4*h+2*kt}, 0, v{V+8}, vcc\nv_cndmask_b32 v{VM_+4*h+2*kt+1}, 0, v{V+9}, vcc")
    sc = (20 ** -0.5) * 1.4426950408889634
    e(f"s_mov_b32 s66, {hx(f2u(sc))}")
    for h in range(4):
        b = S + 8 * h
        e(f"v_max3_f32 v{20+h}, v{b}, v{b+1}, v{b+2}\nv_max3_f32 v{20+h}, v{20+h}, v{b+3}, v{b+4}\nv_max3_f32 v{20+h}, v{20+h}, v{b+5}, v{b+6}\nv_max_f32 v{20+h}, v{20+h}, v{b+7}")
    def red4(op):
        for sw in ("v_permlane32_swap_b32", "v_permlane16_swap_b32"):
            for h in range(4): e(f"v_mov_b32 v{24+h}, v{20+h}")
            e("s_nop 1")
            for h in range(4): e(f"{sw} v{24+h}, v{20+h}")
            for h in range(4): e(f"{op} v{20+h}, v{20+h}, v{24+h}")
    red4("v_max_f32")
    for h in range(4): e(f"v_mul_f32 v{20+h}, s66, v{20+h}")
    for h in range(4):
        for i in range(8): e(f"v_fma_f32 v{S+8*h+i}, v{S+8*h+i}, s66, -v{20+h}")
    for h in range(4):
        for i in range(8): e(f"v_exp_f32 v{S+8*h+i}, v{S+8*h+i}")
    e("s_nop 0")
    for h in range(4):
        b = S + 8 * h
        e(f"v_pk_add_f32 v[24:25], {R(b,2)}, {R(b+2,2)}\nv_pk_add_f32 v[26:27], {R(b+4,2)}, {R(b+6,2)}\nv_pk_add_f32 v[24:25], v[24:25], v[26:27]\nv_add_f32 v{20+h}, v24, v25")
    red4("v_add_f32")
    for h in range(4): e(f"v_rcp_f32 v{20+h}, v{20+h}")
    e("s_nop 0")
    for h in range(4):
        for i in range(8): e(f"v_mul_f32 v{S+8*h+i}, v{S+8*h+i}, v{20+h}")
        for i in range(4): e(f"v_cvt_pk_bf16_f32 v{P+4*h+i}, v{S+8*h+2*i}, v{S+8*h+2*i+1}")
    e("s_nop 1")
    for kt, V in enumerate((VP, VC)):
        for h in range(4):
            c = "0" if kt == 0 else R(O + 4 * h)
            e(f"{MF16} {R(O+4*h)}, {R(V+2*h,2)}, {R(P+4*h+2*kt,2)}, {c}")
    for h in range(4):
        for kt in range(2):
            c = "0" if (h == 0 and kt == 0) else R(O + 16)
            e(f"{MF16} {R(O+16)}, {R(VM_+4*h+2*kt,2)}, {R(P+4*h+2*kt,2)}, {c}")
    e(f"s_add_u32 s66, s62, {hx(OF)}\ns_add_u32 s67, s63, {hx(OF)}\ns_nop 7")
    store_tile(g, O, 84, "v30", "s66", "s67", 0)
    g.stamp("c")

def j345_consumer(g):
    e = g.e; vm = VM(g); stop = g.o.get("stop", 5)
    A3 = 64
    e(f"s_lshl_b32 s65, s25, 7\ns_lshl_b32 s3, s22, 5\ns_add_u32 s65, s65, s3\ns_lshl_b32 s68, s65, 6\ns_add_u32 s68, s68, {hx(PST)}")
    e(f"s_lshr_b32 s3, s65, 4\ns_mul_i32 s66, s3, 20480\ns_add_u32 s66, s66, {hx(X1F)}")
    rot_setup(g, "s26", 28672, "s56", "s57")
    e("v_lshlrev_b32 v6, 3, v4\nv_lshl_add_u32 v6, v5, 8, v6")
    e("s_barrier")
    g.stamp("c", "3")
    def hook(ks):
        if ks == -1:
            for i in range(4): vm.op(f"buffer_load_dwordx2 {R(12+2*i,2)}, v6, s[8:11], s68 offen offset:{(i>>1)*1024+(i&1)*128} {PL}")
        if ks == 0:
            e("s_lshl_b32 s71, s26, 2\ns_add_u32 s71, s71, s22"); g.flag_off(F_O, "s25", 8, "s71"); g.signal("v7"); vm.ops.append(None)
        if ks == 12:
            for rt in range(2):
                b = 12 + 4 * rt
                e(f"v_pk_add_f32 {R(b,2)}, {R(b,2)}, {R(b+2,2)}")
                for sw in ("v_permlane32_swap_b32", "v_permlane16_swap_b32"):
                    e(f"v_mov_b32 v{b+2}, v{b}\nv_mov_b32 v{b+3}, v{b+1}\ns_nop 1\n{sw} v{b+2}, v{b}\n{sw} v{b+3}, v{b+1}\nv_pk_add_f32 {R(b,2)}, {R(b,2)}, {R(b+2,2)}")
            e(f"s_mov_b32 s70, {hx(f2u(1.0/640))}\ns_mov_b32 s71, {hx(f2u(1e-5))}")
            for rt in range(2):
                b = 12 + 4 * rt
                e(f"v_mul_f32 v{b}, s70, v{b}\nv_mul_f32 v{b+1}, s70, v{b+1}\nv_fma_f32 v{b+1}, -v{b}, v{b}, v{b+1}\nv_max_f32 v{b+1}, 0, v{b+1}\nv_add_f32 v{b+1}, s71, v{b+1}\nv_rsq_f32 v{b+1}, v{b+1}")
    xgemm(g, vm, 20, 2, 7, A3, [120 + 4 * i for i in range(22)], [34, 208], None, xl_rot("s66", "s56", ["s20", "s21"], 2), hook=hook,
          st=("i3", (0, 1, 2, 4, 6, 8, 10, 12, 14, 17)), pre=g.o.get("pre3", 5), rotw="s57", barrier_at={g.o.get("m3", 10)} if stop >= 5 else None)
    e(f"v_lshlrev_b32 v6, 4, v5\nv_add_u32 v6, {CS3}, v6")
    for nt in range(7): e(f"ds_read_b128 {R(208+4*nt)}, v6 offset:{64*nt}")
    g.stamp("c", "i3")
    e("s_barrier")
    g.stamp("c", "3")
    X4 = [120 + 4 * i for i in range(20)]
    e(f"s_lshr_b32 s58, s26, 1\ns_and_b32 s59, s26, 1\ns_lshr_b32 s3, s65, 4\ns_mul_i32 s66, s3, {TSTR}\ns_mul_i32 s3, s58, 7168\ns_add_u32 s66, s66, s3")
    e(f"s_add_u32 s66, s66, {hx(TF)}\ns_lshl_b32 s3, s59, 9\ns_add_u32 s67, s66, s3\ns_add_u32 s67, s67, 3072\ns_lshl_b32 s3, s59, 12\ns_add_u32 s66, s66, s3")
    e(f"v_mov_b32 v44, {hx(f2u(GELU_C0))}\nv_mov_b32 v45, v44\ns_mov_b32 s54, {hx(f2u(GELU_C1))}\ns_mov_b32 s55, s54")
    e("s_waitcnt lgkmcnt(0)")
    for rt in range(2):
        b = 12 + 4 * rt
        for i in range(14):
            a = A3 + rt * 28 + 2 * i
            e(f"v_pk_fma_f32 {R(a,2)}, {R(208+2*i,2)}, {R(b,2)}, {R(a,2)} op_sel_hi:[1,0,1] neg_lo:[1,0,0] neg_hi:[1,0,0]")
        for i in range(14):
            a = A3 + rt * 28 + 2 * i
            e(f"v_pk_mul_f32 {R(a,2)}, {R(a,2)}, {R(b,2)} op_sel:[0,1] op_sel_hi:[1,1]")
        for p in range(4):
            a = A3 + rt * 28 + 8 * p; n = 4 if p < 3 else 2
            gelu_pairs(g, [a + 2 * i for i in range(n)], 36)
            for i in range(n): e(f"v_cvt_pk_bf16_f32 v{a+i}, v{a+2*i}, v{a+2*i+1}")
            if p < 3: e(f"buffer_store_dwordx4 {R(a)}, v30, s[8:11], s66 offen offset:{1024*p} {PL}")
            else: e(f"buffer_store_dwordx2 {R(a,2)}, v2, s[8:11], s67 offen {PL}")
        if rt == 0: e(f"s_add_u32 s66, s66, {TSTR}\ns_add_u32 s67, s67, {TSTR}")
    g.stamp("c")
    vm.ops.append("ts")
    if stop >= 5:
        e(f"s_add_u32 s68, s64, {hx(OF)}")
        rot_setup(g, "s28", 20480, "s56", "s57")
        f4 = xl_rot("s68", "s56", ["s20"])
        for ks in range(20): vm.op(f4(ks)[0].replace("{r}", R(X4[ks])), ("x", ks))
    vm.wait("ts")
    g.flag_off(F_T, "s25", 7, "s26"); g.wsignal(2)
    if stop < 5: return
    e("s_barrier")
    SA = 44
    xgemm(g, vm, 20, 1, 5, SA, X4, [64, 84, 200], None, None, pre_issued=20, rotw="s57")
    g.stamp("c")
    rot5(g)
    e(f"s_lshl_b32 s3, s27, 2\ns_add_u32 s3, s3, s22\ns_mul_i32 s68, s3, {TSTR}\ns_add_u32 s68, s68, {hx(TF)}\ns_and_b32 s58, s22, 1\ns_lshl_b32 s3, s58, 11\ns_add_u32 s68, s68, s3")
    e(f"s_add_u32 s67, s68, {13*4096}\ns_lshl_b32 s3, s59, 12\ns_add_u32 s66, s68, s3\ns_mul_i32 s69, s58, {-2*TSTR}\ns_add_u32 s69, s69, {TSTR}\ns_lshl_b32 s70, s58, 10\ns_sub_u32 s70, s67, s70")
    e(f"s_mul_i32 s3, s58, 10240\nv_add_u32 v4, s3, v30\nv_add_u32 v5, s3, v31\nv_add_u32 v6, s3, v32\ns_mul_i32 s3, s58, 5120\nv_add_u32 v7, s3, v31")
    def xl5(ks):
        pre = ""
        if ks == 26: pre = "s_mov_b32 s66, s70\n"
        elif ks and ks % 2 == 0: pre = "s_add_u32 s66, s66, 4096\ns_cmp_ge_u32 s66, s67\ns_cselect_b32 s66, s68, s66\n"
        if ks % 2 == 0: pre += "s_add_u32 s20, s66, s69\n"
        return [pre + f"buffer_load_dwordx4 {{r}}, v30, s[8:11], s66 offen offset:{(ks%2)*1024} {PL}", f"buffer_load_dwordx4 {{r}}, v30, s[8:11], s20 offen offset:{(ks%2)*1024} {PL}"]
    def wa5(ks, nt):
        off = ((ks // 2 + 5) % 7) * WSL + ((ks % 2) * 5 + nt) * 1024
        return f"v7 offset:{off & 0xffff}" if ks == 26 else f"v{4 + (off >> 16)} offset:{off & 0xffff}"
    e("s_barrier")
    g.stamp("c", "5")
    XW5 = [164 + 4 * i for i in range(18)] + [8, 12, 16, 20, 24, 36]
    xgemm(g, vm, 27, 2, 5, 64, XW5, [104, 124, 144], wa5, xl5,
          barrier_at=set(range(2, 22, 2)), st=("i5", (0, 1, 2, 4, 8, 12, 16, 20, 24)), pre=g.o.get("pre5", 5))
    e(f"s_xor_b32 s3, s22, 1\ns_mul_i32 s3, s3, 5120\nv_add_u32 v4, s3, v31\ns_mul_i32 s3, s22, 5120\nv_add_u32 v5, s3, v31\ns_nop 7")
    for nt in range(5): e(f"ds_write_b128 v4, {R(84+4*nt)} offset:{(5*WSL + nt*1024) & 0xffff}")
    e("s_waitcnt lgkmcnt(0)\ns_barrier")
    for nt in range(5): e(f"ds_read_b128 {R(8+4*nt)}, v5 offset:{(5*WSL + nt*1024) & 0xffff}")
    g.stamp("c", "5")
    unpack(g, XK, 84, 10)
    e("s_waitcnt lgkmcnt(0)")
    for i in range(10): e(f"v_pk_add_f32 {R(8+2*i,2)}, {R(8+2*i,2)}, {R(64+2*i,2)}")
    unpack(g, X1K, 64, 10)
    e(f"s_mov_b32 s54, {hx(f2u(-1.4426950408889634))}\ns_mov_b32 s55, s54")
    for i in range(10): e(f"v_pk_add_f32 {R(8+2*i,2)}, {R(8+2*i,2)}, {R(64+2*i,2)}")
    for i in range(10): e(f"v_pk_mul_f32 {R(64+2*i,2)}, {R(8+2*i,2)}, s[54:55]")
    for i in range(20): e(f"v_exp_f32 v{64+i}, v{64+i}")
    for i in range(10): e(f"v_pk_add_f32 {R(64+2*i,2)}, {R(64+2*i,2)}, 1.0 op_sel_hi:[1,0]")
    for i in range(20): e(f"v_rcp_f32 v{64+i}, v{64+i}")
    for i in range(10): e(f"v_pk_mul_f32 {R(8+2*i,2)}, {R(8+2*i,2)}, {R(SA+2*i,2)}")
    for i in range(10): e(f"v_pk_fma_f32 {R(8+2*i,2)}, {R(8+2*i,2)}, {R(64+2*i,2)}, {R(84+2*i,2)}")
    store_tile(g, 8, 128, ("v28", "v29"), "s60", "s61", 0, srd="s[16:19]", pstep=64, pol="")
    g.stamp("c")

def rot5(g):
    if g.o.get("rot", 0): g.e("s_lshr_b32 s3, s28, 1\ns_add_u32 s59, s28, s3")
    else: g.e("s_mov_b32 s59, 0")

def loader(g, kind):
    e = g.e; o = g.o; stop = o.get("stop", 5); vm = VM(g)
    wv = kind; kind = kind[0]
    e(f"L{wv}load:")
    e("s_and_b32 s58, s22, 1\nv_lshlrev_b32 v2, 4, v1")
    if kind == "x":
        e("v_lshrrev_b32 v4, 3, v1\nv_and_b32 v5, 7, v1\nv_lshrrev_b32 v6, 1, v4\nv_xor_b32 v5, v5, v6\nv_mul_u32_u24 v4, 1280, v4\nv_lshl_add_u32 v8, v5, 4, v4\nv_xor_b32 v9, 64, v8")
        e("s_lshl_b32 s3, s23, 1\ns_add_u32 s3, s3, s58\ns_mul_i32 s66, s3, 81920\ns_mov_b32 s64, 128")
    else:
        e("s_movk_i32 s60, 3840\ns_cmp_ge_u32 s24, 12\ns_cselect_b32 s60, 1280, s60\ns_cselect_b32 s3, 12, 0\ns_sub_u32 s3, s24, s3\ns_mul_i32 s61, s3, 320")
        for d in range(5):
            e(f"v_add_u32 v4, {64*d}, v1\nv_mul_u32_u24 v5, 3277, v4\nv_lshrrev_b32 v5, 16, v5\nv_mul_u32_u24 v6, 20, v5\nv_sub_u32 v6, v4, v6")
            e(f"v_lshrrev_b32 v7, 2, v5\nv_and_b32 v7, 2, v7\nv_xor_b32 v6, v6, v7\nv_mul_lo_u32 v5, v5, s60\nv_lshl_add_u32 v{8+d}, v6, 4, v5")
        e("s_lshl_b32 s3, s58, 5\ns_mul_i32 s66, s3, s60\ns_add_u32 s66, s66, s61\ns_lshl_b32 s64, s60, 6\ns_lshl_b32 s67, s60, 4")
    e("s_add_u32 s3, s23, s24\ns_mul_i32 s3, s3, 3"); g.sdiv("s29", "s3", 10, 128)
    e("s_mul_i32 s29, s29, 10\ns_sub_u32 s59, s3, s29")
    if not o.get("rot1", 1): e("s_mov_b32 s59, 0")
    e("s_mul_i32 s65, s64, 10\ns_add_u32 s63, s66, s65\ns_mul_i32 s3, s59, s64\ns_add_u32 s62, s66, s3")
    def dma(vo, srd, so, off, k, pol): vm.op(f"buffer_load_dwordx4 {vo}, {srd}, {so} offen offset:{off} {pol} lds", k)
    def adv(): e("s_add_u32 s62, s62, s64\ns_cmp_ge_u32 s62, s63\ns_cselect_b32 s3, s65, 0\ns_sub_u32 s62, s62, s3")
    def issue1(k):
        sl = (k % 4) * SLOT
        if kind == "x":
            e(f"s_lshl_b32 s3, s58, 13\ns_add_u32 s68, s3, {sl}\ns_mov_b32 s69, s62")
            for i in range(8):
                e(f"s_add_u32 m0, s68, {i*1024}"); e("s_add_u32 s69, s69, 10240" if i else "s_nop 0")
                dma(f"v{8+(i&1)}", "s[4:7]", "s69", 0, k, "")
        else:
            e(f"s_mul_i32 s3, s58, 10240\ns_add_u32 s68, s3, {sl+WOFF}\ns_add_u32 s69, s62, s67")
            for grp in range(2):
                for d in range(5):
                    e(f"s_add_u32 m0, s68, {grp*5120+d*1024}\ns_nop 0")
                    dma(f"v{8+d}", "s[12:15]", "s69" if grp else "s62", 0, k, "")
        adv()
    def only(w, fn):
        sk = g.lab("Lonly"); e(f"s_cmp_lg_u32 s22, {w}\ns_cbranch_scc1 {sk}"); fn(); e(f"{sk}:")
    PRE, PS, PLD, PC = o.get("pre1", 2), o.get("ps", 1), o.get("pld", 4), o.get("pc", 5)
    PSB = o.get("psb", 3); sched = [int(c, 36) for c in str(o.get("sch", "x66ccc"))[1:]]
    if wv == "x4": g.stamp("x", "i0")
    issue1(0)
    if wv == "x4":
        g.stamp("x", "i0")
        e(f"s_and_b32 s3, s2, 7\ns_lshl_b32 s3, s3, 10\ns_add_u32 s3, s3, {hx(F_PK)}\nv_add_u32 v16, s3, v2\nv_lshlrev_b32 v17, 10, v1\nv_mov_b32 v18, 1\nv_mov_b32 v15, 0\nv_mov_b32 v19, {LCNT}")
    else:
        e(f"s_sub_u32 s3, s22, 5\ns_lshl_b32 s100, s3, 8\ns_add_u32 s100, s100, s2\ns_cmp_ge_u32 s100, 740\ns_cselect_b32 s29, 256, 0\ns_sub_u32 s100, s100, s29\ns_add_u32 s100, s100, 740\ns_lshl_b32 s101, s3, 12\ns_add_u32 s101, s101, {3*SLOT}")
        g.pk_setup()
        e("s_call_b64 s[70:71], Lpk_issue"); vm.ops += ["pk"] * 4
        for rr in range(ONES, ONES + 4): e(f"v_mov_b32 v{rr}, 0x3f803f80")
    for k in range(1, PRE): issue1(k)
    if wv == "x4": g.stamp("x")
    e(f"s_sub_u32 s3, s22, 4\ns_mul_i32 s3, s3, 25600\ns_mul_i32 s56, s28, 102400\ns_add_u32 s56, s56, s3\ns_add_u32 s56, s56, {hx(W2P)}\nv_add_u32 v3, s3, v2")
    e(f"s_mul_i32 s57, s26, 143360\ns_add_u32 s57, s57, s3\ns_add_u32 s57, s57, {hx(W3P)}")
    todo = g.todo = []
    for (sr, r0, tag) in (("s56", 120, "w2"), ("s57", 20, "w3")):
        for q in range(25):
            todo.append(((f"s_add_u32 {sr}, {sr}, 4096\n" if q and q % 4 == 0 else "") + f"buffer_load_dwordx4 {R(r0+4*q)}, v2, s[8:11], {sr} offen offset:{(q % 4) * 1024} {PL}", tag))
    def flag(base):
        e(f"s_lshl_b32 s70, s2, 2\ns_add_u32 s70, s70, {hx(base)}\ns_mov_b64 exec, 0xff"); vm.op("buffer_store_dword v18, v17, s[8:11], s70 offen sc1"); e("s_mov_b64 exec, -1")
    for k in range(10):
        vm.wait(k)
        if k == PSB: vm.wait("pks")
        if wv == "x4" and k < 2: g.stamp("x", "i0")
        if k == PC and wv == "x4":
            vm.wait("pkc"); g.pk_check("v16", 224)
        e("s_barrier")
        if wv == "x4" and k == PS - 1: vm.op("global_load_dword v14, v15, s[50:51]", "ini")
        if wv == "x4" and k == PLD: vm.op("buffer_load_dwordx4 v[224:227], v16, s[8:11], 0 offen sc1", "pkc")
        if wv == "x4" and k == PS:
            vm.wait("ini")
            l0, l1 = g.lab("Lini"), g.lab("Linix")
            e(f"s_mov_b32 s31, 0\n{l0}:\nv_cmp_eq_u32 vcc, 0, v14\ns_cbranch_vccz {l1}\ns_add_u32 s31, s31, 1\ns_cmp_gt_u32 s31, 400000\ns_cbranch_scc1 {l1}")
            e(f"global_load_dword v14, v15, s[50:51] sc0 sc1\ns_waitcnt vmcnt(0)\ns_branch {l0}\n{l1}:")
            flag(F_PK)
        if wv == "x4" and k == PSB: flag(F_PKB)
        if k == 0:
            for kk in range(PRE, 3): issue1(kk)
            if wv != "x4": vm.wait("pk"); e("s_call_b64 s[70:71], Lpk_fin"); vm.ops += ["pks"] * 8
            else: e("v_mov_b32 v20, 0\nv_mov_b32 v21, 0\nds_write_b64 v19, v[20:21]\nds_write_b64 v19, v[20:21] offset:8\ns_waitcnt lgkmcnt(0)")
        if k == 1: issue1(3)
        if 1 <= k <= 6: vm.room(10); issue1(k + 3)
        if k >= PC:
            for _ in range(min(sched[k - PC], len(todo))):
                vm.room(1); vm.op(*todo.pop(0))
    assert getattr(g, 'tail_ops', vm.ops) == vm.ops
    g.tail_ops = [t for t in vm.ops]
    assert PSB > PS and PC > PSB - 1
    if wv != "w": e("s_branch Ltail")

def loader_tail(g):
    e = g.e; o = g.o; stop = o.get("stop", 5); vm = VM(g)
    e("Ltail:\ns_sub_u32 s58, s22, 4")
    def only(w, fn):
        sk = g.lab("Lonly"); e(f"s_cmp_lg_u32 s22, {w}\ns_cbranch_scc1 {sk}"); fn(); e(f"{sk}:")
    def lin(n, ssrc, ldsbase, tag):
        e(f"s_mul_i32 s68, s58, {n*1024}\ns_add_u32 s68, s68, {ldsbase}")
        for q in range(n):
            if q % 4 == 0:
                vm.room(4)
                e(f"s_add_u32 m0, s68, {q*1024}"); e(f"s_add_u32 {ssrc}, {ssrc}, 4096" if q else "s_nop 0")
            vm.op(f"buffer_load_dwordx4 v2, s[8:11], {ssrc} offen offset:{(q % 4) * 1024} {PL} lds", tag)
    def ldreg(n, ssrc, r0, tag):
        for q in range(n):
            if q % 4 == 0:
                vm.room(4)
                if q: e(f"s_add_u32 {ssrc}, {ssrc}, 4096")
            vm.op(f"buffer_load_dwordx4 {R(r0+4*q)}, v2, s[8:11], {ssrc} offen offset:{(q % 4) * 1024} {PL}", tag)
    def wreg(n, va, off, r0):
        for q in range(n): e(f"ds_write_b128 {va}, {R(r0+4*q)} offset:{off+q*1024}")
    vm.ops = list(g.tail_ops); todo = g.todo
    assert all(t in ("w2", "w3") for t in vm.ops), vm.ops
    def some(n):
        for _ in range(min(n, len(todo))):
            vm.room(1); vm.op(*todo.pop(0))
    e(f"s_mul_i32 s67, s26, 143360\ns_add_u32 s67, s67, {hx(W3P)}")
    e("s_barrier")
    g.stamp("x")
    if stop >= 2:
        some(99)
        e("s_mul_i32 s3, s58, 10240\ns_add_u32 s69, s67, s3\ns_add_u32 s69, s69, 102400"); lin(10, "s69", 102400, "w3")
        vm.wait("w2"); g.stamp("x"); wreg(25, "v3", 0, 120); e("s_waitcnt lgkmcnt(0)")
        if o.get("inner") == 6: e("s_waitcnt vmcnt(0)"); g.stamp("x")
        def poll_h():
            e("s_and_b32 s3, s27, 1\ns_lshl_b32 s3, s3, 1\ns_add_u32 s3, s3, s25\ns_add_u32 s3, s3, 15\ns_and_b32 s67, s3, 15")
            jpoll("s67", "v_and_b32 v5, 3, v1\nv_add_u32 v5, 12, v5")
        def jpoll(other, slot):
            e(f"v_mov_b32 v4, s25\ns_mov_b32 exec_lo, 0\nv_mov_b32 v4, {other}\ns_mov_b32 exec_lo, -1\n{slot}")
            e(f"v_lshlrev_b32 v5, 2, v5\nv_lshl_add_u32 v4, v4, 7, v5\ns_and_b32 s3, s26, 3\ns_lshl_b32 s3, s3, 11\ns_add_u32 s3, s3, {hx(F_J1)}\nv_add_u32 v4, s3, v4\nv_mov_b32 v5, 1")
            g.poll("v4", "v5", "v6")
        def poll_q():
            e("s_max_u32 s67, s25, 1\ns_sub_u32 s67, s67, 1")
            jpoll("s67", "v_and_b32 v5, 15, v1\nv_min_u32 v5, 11, v5")
        def cs3():
            e("s_waitcnt vmcnt(40)")
            e(f"s_mul_i32 s69, s26, 8960\ns_add_u32 s69, s69, {hx(CSP + ((W3P-W2P)>>4))}\nv_and_b32 v4, 31, v1\nv_lshlrev_b32 v4, 4, v4\nv_lshrrev_b32 v5, 5, v1\nv_mul_u32_u24 v5, 4480, v5\nv_add_u32 v5, v5, v4")
            for i in range(10): e(f"buffer_load_dwordx4 {R(168+4*i)}, v5, s[8:11], s69 offen offset:{(448*i)} {PL}")
            e("s_waitcnt vmcnt(0)")
            for i in range(1, 10): e(f"v_pk_add_f32 v[168:169], v[168:169], {R(168+4*i,2)}\nv_pk_add_f32 v[170:171], v[170:171], {R(170+4*i,2)}")
            for r in range(4): e(f"v_mov_b32 v{172+r}, v{168+r}")
            e("s_nop 1")
            for r in range(4): e(f"v_permlane32_swap_b32 v{172+r}, v{168+r}")
            e(f"v_pk_add_f32 v[168:169], v[168:169], v[172:173]\nv_pk_add_f32 v[170:171], v[170:171], v[174:175]\nv_add_u32 v4, {CS3}, v4\nds_write_b128 v4, v[168:171]\ns_waitcnt lgkmcnt(0)")
        def pkb():
            e(f"s_and_b32 s3, s2, 7\ns_lshl_b32 s3, s3, 10\ns_add_u32 s3, s3, {hx(F_PKB)}\nv_add_u32 v16, s3, v2"); g.pk_check("v16", 224, True)
        only(4, poll_h); only(5, cs3); only(6, pkb); g.stamp("x")
        e("s_barrier")
        def W4R(c): return 120 + 20 * (c - 2) if c < 7 else (20 + 20 * (c - 7) if c < 12 else 220)
        def adv(): e("s_add_u32 s62, s62, s64\ns_cmp_ge_u32 s62, s63\ns_cselect_b32 s3, s65, 0\ns_sub_u32 s62, s62, s3")
        C2 = 2 + o.get("nc2", 5)
        if stop >= 5:
            rot5(g)
            e(f"s_mul_i32 s66, s28, 276480\ns_mul_i32 s3, s58, 5120\ns_add_u32 s61, s66, {hx(W4P)}\ns_add_u32 s66, s61, s3\ns_movk_i32 s64, 20480\nv_add_u32 v11, s3, v2")
            e("s_mul_i32 s65, s64, 13\ns_add_u32 s63, s66, s65\ns_mul_i32 s3, s59, s64\ns_add_u32 s62, s66, s3\nv_add_u32 v12, 0x10000, v11\nv_add_u32 v13, 0x20000, v11")
            e("s_mov_b32 s56, s62"); adv(); e("s_mov_b32 s57, s62"); adv()
            e(f"s_add_u32 s61, s61, s65\ns_lshl_b32 s3, s58, 11\ns_add_u32 s60, s61, s3\nv_add_u32 v14, s3, v2\ns_and_b32 s3, s58, 1\ns_lshl_b32 s3, s3, 10\ns_add_u32 s3, s3, 8192\ns_add_u32 s61, s61, s3\nv_add_u32 v15, s3, v2")
            e(f"v_add_u32 v14, {4*WSL}, v14\nv_add_u32 v15, {4*WSL}, v15")
        e("s_waitcnt vmcnt(0)\ns_barrier"); vm.drained()
        only(4, poll_q)
        if stop >= 5:
            for c in range(2, C2):
                e("s_mov_b32 s69, s62"); ldreg(5, "s69", W4R(c), c); adv()
        e("s_barrier")
    if stop >= 3:
        wreg(25, "v3", 0, 20)
        if stop >= 5 and o.get("nc3", 5):
            e("s_waitcnt lgkmcnt(0)")
            for c in range(C2, C2 + o.get("nc3", 5)):
                e("s_mov_b32 s69, s62"); ldreg(5, "s69", W4R(c), c); adv()
            C2 += o.get("nc3", 5)
        only(4, lambda: g.pollg(F_X1, 7, 15)); g.stamp("x")
        e("s_waitcnt lgkmcnt(0)\ns_barrier")
        if stop >= 5:
            e("s_barrier")
            def fo(): g.pollg(F_O, 8, 63)
            only(4, fo); g.stamp("x")
            for c in range(C2, 13):
                e("s_mov_b32 s69, s62"); ldreg(5, "s69", W4R(c), c); adv()
            ldreg(2, "s60", 240, 13); ldreg(1, "s61", 248, 13)
        e("s_barrier")
    if stop >= 5:
        e(f"s_mul_i32 s69, s28, 102400\ns_mul_i32 s3, s58, 25600\ns_add_u32 s69, s69, s3\ns_add_u32 s69, s69, {hx(WOP)}")
        lin(25, "s69", 0, "w"); lin(5, "s56", 5 * WSL, 0); lin(5, "s57", 6 * WSL, 1); vm.wait("w")
        g.stamp("x")
        e("s_barrier")
        def w5(c):
            if c == 13: e("ds_write_b128 v14, v[240:243]\nds_write_b128 v14, v[244:247] offset:1024\nds_write_b128 v15, v[248:251]"); return
            off = ((c + 5) % 7) * WSL
            for q in range(5):
                a = off + q * 1024
                e(f"ds_write_b128 v{11+(a>>16)}, {R(W4R(c)+4*q)} offset:{a & 0xffff}")
        def ft(): g.pollg(F_T, 7, 15)
        only(4, ft); g.stamp("x")
        e("s_waitcnt vmcnt(0)")
        for c in range(11):
            e(f"s_waitcnt lgkmcnt({0 if c == 10 or not o.get('lag', 1) else 15})\ns_barrier")
            if c == 0:
                for cc in range(2, 7): w5(cc)
            if 7 <= c + 5 <= 13: w5(c + 5)
    if o.get("stamps"):
        e("s_cmp_lg_u32 s22, 4\ns_cbranch_scc1 Lend"); g.dump_stamps("x", 1)
    e("s_endpgm")

def main(opt):
    g = G(opt); e = g.e; stop = opt.get("stop", 5)
    hdr = open("cdna_kernels/" + NAME + ".s.ref").read().split("\n")
    hdr = [l for l in hdr if l.startswith(";") and "@launch" not in l]
    out = hdr + ["; @launch grid=(256,1,1) block=(512,1,1) lds=163840",
        '.amdgcn_target "amdgcn-amd-amdhsa--gfx950"', ".text", f".globl {NAME}_kernel", ".p2align 8",
        f".type {NAME}_kernel,@function", f"{NAME}_kernel:"]
    prologue(g); j1_consumer(g)
    if stop >= 2: j2_consumer(g)
    if stop >= 3: j345_consumer(g)
    if opt.get("stamps"):
        e("s_cmp_lg_u32 s22, 0\ns_cbranch_scc1 Lend"); g.dump_stamps("c", 0)
    e("Lend:\ns_endpgm")
    packer_subs(g); loader(g, "x4"); loader(g, "x5"); loader(g, "w"); loader_tail(g)
    if "ldpol" in opt: g.L = [l.replace(" sc1", (" " + opt["ldpol"]) if opt["ldpol"] != "none" else "") if ("buffer_load_dwordx" in l and "v[224:227], v16" not in l) else l for l in g.L]
    if "stpol" in opt: g.L = [l.replace(" sc1", (" " + opt["stpol"]) if opt["stpol"] != "none" else "") if ("buffer_store_dwordx" in l and "sc0" not in l) else l for l in g.L]
    out += g.L
    out += ['.section .rodata,"a"', ".p2align 6", f".amdhsa_kernel {NAME}_kernel", "  .amdhsa_next_free_vgpr 256", "  .amdhsa_next_free_sgpr 102",
        "  .amdhsa_accum_offset 256", "  .amdhsa_group_segment_fixed_size 0", "  .amdhsa_kernarg_size 88", "  .amdhsa_user_sgpr_count 2",
        "  .amdhsa_user_sgpr_kernarg_segment_ptr 1", "  .amdhsa_system_sgpr_workgroup_id_x 1", ".end_amdhsa_kernel"]
    return "\n".join(out) + "\n"

if __name__ == "__main__":
    opt = {}
    for a in sys.argv[2:]:
        k, v = a.split("=")
        opt[k] = int(v) if v.lstrip("-").isdigit() else v.replace("_", " ")
    open(sys.argv[1], "w").write(main(opt))
```

```python
import sys, struct
NAME = "recurrent_scan__sliding_local_dilated__mixer_s_mlp__prompt"
def f2u(x): return struct.unpack("<I", struct.pack("<f", x))[0]
def hx(x): return "0x%x" % (x & 0xffffffff)

QF, KF, VF, HF = 0x0, 0x280000, 0x500000, 0x780000
X1F, OF, TF = 0xA00000, 0xC80000, 0xF00000
TSTR = 57344 + int([a for a in sys.argv if a.startswith('tpad=')][0][5:]) if any(a.startswith('tpad=') for a in sys.argv) else 57344
W2P, WOP, W3P, W4P = 0x1600000, 0x16C8000, 0x1790000, 0x19C0000
STAT, PST, CNT, CSP = 0x1C00000, 0x1C10000, 0x1C40000, 0x1C80000
WS_REC = 0x2000000
STAMP_OFF = 0x8000000
C_PKB = 8
WSL = 20480
C_PK, C_H, C_QKV, C_X1, C_O, C_T = 0, 16, 32, 48, 64, 80
SLOT, WOFF, MISC = 36864, 16384, 147456
F_PK, F_J1, F_X1, F_T, F_O = CNT, CNT + 8192, CNT + 16384, CNT + 18432, CNT + 20480
F_PKB = CNT + 24576
LCNT, CS3 = MISC + 3328, MISC + 3584
PL = "sc1"

class G:
    def __init__(s, opt):
        s.L = []; s.o = opt; s.nlab = 0; s.nstamp = {}
    def e(s, t):
        for x in t.split("\n"): s.L.append("    " + x.strip() if not x.strip().endswith(":") else x.strip())
    def lab(s, p="L"):
        s.nlab += 1; return f"{p}{s.nlab}"
    def stamp(s, role, name="."):
        if not s.o.get("stamps"): return
        inner = str(s.o.get("inner", ""))
        if role == "x" and name.startswith("i") and inner != "0": return
        if role == "c" and s.nstamp.get(role, 0) > 0:
            if inner and inner not in name: return
            if not inner and name.startswith("i"): return
        i = s.nstamp.get(role, 0); s.nstamp[role] = i + 1
        assert i < 14
        s.e(f"s_memrealtime s[{72+2*i}:{73+2*i}]")
    def dump_stamps(s, role, slot):
        if not s.o.get("stamps"): return
        n = s.nstamp.get(role, 0)
        s.e(f"s_waitcnt lgkmcnt(0)\ns_add_u32 s52, s52, {hx(STAMP_OFF)}\ns_addc_u32 s53, s53, 0")
        s.e(f"s_mul_i32 s3, s2, 224\ns_add_u32 s3, s3, {slot*112}\nv_mov_b32 v2, s3\ns_mov_b64 exec, 1")
        for i in range(14):
            j = min(i, n - 1)
            s.e(f"v_mov_b32 v4, s{72+2*j}\nv_mov_b32 v5, s{73+2*j}\nglobal_store_dwordx2 v2, v[4:5], s[52:53] offset:{8*i}\ns_nop 1")
        s.e("s_mov_b64 exec, -1")
    def poll(s, vaddr, vexp, vtmp):
        l0, l1 = s.lab("Lpoll"), s.lab("Lpollx")
        s.e(f"s_mov_b32 s31, 0\n{l0}:")
        s.e(f"buffer_load_dword {vtmp}, {vaddr}, s[8:11], 0 offen {s.o.get('pollpol', 'sc1')}")
        s.e(f"s_add_u32 s31, s31, 1\ns_cmp_gt_u32 s31, 400000\ns_cbranch_scc1 {l1}")
        s.e(f"s_waitcnt vmcnt(0)\nv_cmp_lt_u32 vcc, {vtmp}, {vexp}\ns_cbranch_vccnz {l0}\n{l1}:\ns_waitcnt vmcnt(0)")
    def pollg(s, base, sh, mask, va="v4", vb="v5", vc="v6", rb="s25"):
        s.e(f"s_lshl_b32 s29, {rb}, {sh}\ns_add_u32 s29, s29, {hx(base)}\nv_and_b32 {va}, {mask}, v1\nv_lshl_add_u32 {va}, {va}, 2, s29\nv_mov_b32 {vb}, 1")
        s.poll(va, vb, vc)
    def pk_check(s, va, r, first=False):
        l0, l1, l2 = s.lab("Lpk"), s.lab("Lpkok"), s.lab("Lpkld")
        s.e("s_mov_b32 s31, 0" + (f"\ns_branch {l2}" if first else ""))
        s.e(f"{l0}:\nv_min_u32 v{r}, v{r}, v{r+1}\nv_min3_u32 v{r}, v{r}, v{r+2}, v{r+3}\nv_cmp_eq_u32 vcc, 0, v{r}\ns_cbranch_vccz {l1}\ns_add_u32 s31, s31, 1\ns_cmp_gt_u32 s31, 400000\ns_cbranch_scc1 {l1}")
        s.e(f"{l2}:\nbuffer_load_dwordx4 v[{r}:{r+3}], {va}, s[8:11], 0 offen sc1\ns_waitcnt vmcnt(0)\ns_branch {l0}\n{l1}:")
    def flag_off(s, base, srb, sh, sslot):
        s.e(f"s_lshl_b32 s70, {srb}, {sh}\ns_lshl_b32 s3, {sslot}, 2\ns_add_u32 s70, s70, s3\ns_add_u32 s70, s70, {hx(base)}")
    def signal(s, vt="v4"):
        s.e(f"v_mov_b32 {vt}, 1\ns_mov_b64 exec, 1\nbuffer_store_dword {vt}, off, s[8:11], s70 sc1\ns_mov_b64 exec, -1")
    def wsignal(s, k, rep=0, vt="v33"):
        l = s.lab("Lws")
        s.e(f"s_mov_b64 exec, 1\nv_mov_b32 v7, 1\nv_mov_b32 {vt}, {LCNT+4*k}\nds_add_rtn_u32 {vt}, {vt}, v7")
        s.e(f"s_waitcnt lgkmcnt(0)\nv_cmp_eq_u32 vcc, 3, {vt}\ns_cbranch_vccz {l}\n" + (f"s_mov_b64 exec, 15\nv_mov_b32 v7, 1\nv_lshlrev_b32 {vt}, 11, v1\nbuffer_store_dword v7, {vt}, s[8:11], s70 offen sc1" if rep else "buffer_store_dword v7, off, s[8:11], s70 sc1") + f"\n{l}:\ns_mov_b64 exec, -1")
    def pk_setup(s):
        s.e("s_mov_b32 s95, 0x20000\nv_lshrrev_b32 v236, 5, v1\nv_bfe_u32 v237, v1, 3, 2\nv_and_b32 v238, 7, v1\nv_lshlrev_b32 v238, 4, v238")
        s.e("v_lshrrev_b32 v239, 4, v1\nv_lshlrev_b32 v239, 3, v239\nv_bfe_u32 v240, v1, 2, 2\nv_add_u32 v239, v239, v240\nv_lshlrev_b32 v239, 7, v239\nv_and_b32 v240, 3, v1\nv_lshlrev_b32 v241, 2, v1\nv_lshlrev_b32 v251, 4, v1")
    def prefetch(s, vm, base, nlines, va, vd):
        s.e(f"s_lshr_b32 s3, s2, 3\ns_mul_i32 s3, s3, {nlines*128}\ns_add_u32 s3, s3, {hx(base)}\nv_lshlrev_b32 {va}, 7, v1")
        for q in range((nlines + 63) // 64):
            n = min(64, nlines - 64 * q)
            if n < 64: s.e(f"s_mov_b32 exec_lo, {hx((1 << min(n, 32)) - 1)}\ns_mov_b32 exec_hi, {hx((1 << max(n - 32, 0)) - 1)}")
            vm.op(f"buffer_load_dword {vd}, {va}, s[8:11], s3 offen", "pf")
            s.e("s_add_u32 s3, s3, 8192")
        s.e("s_mov_b64 exec, -1")
    def sdiv(s, dst, src, d, maxv):
        sh = 16; m = (1 << sh) // d + 1
        assert all((x * m) >> sh == x // d for x in range(maxv)), (d, maxv)
        s.e(f"s_mul_i32 {dst}, {src}, {m}\ns_lshr_b32 {dst}, {dst}, {sh}")
    def redg(s, v, t, op):
        s.e(f"v_mov_b32 {t}, {v}\ns_nop 1\nv_permlane32_swap_b32 {t}, {v}\n{op} {v}, {v}, {t}")
        s.e(f"v_mov_b32 {t}, {v}\ns_nop 1\nv_permlane16_swap_b32 {t}, {v}\n{op} {v}, {v}, {t}")

def R(b, n=4): return f"v[{b}:{b+n-1}]"
MF = "v_mfma_f32_16x16x32_bf16"
MF16 = "v_mfma_f32_16x16x16_bf16"
JOBS = [("J1", 10), ("J2", 5), ("J3", 10), ("J4", 5), ("J5", 14)]

def interleave(a, b):
    out = []; na, nb = len(a), len(b); j = 0
    for i, x in enumerate(a):
        out.append(x)
        while j < nb and (j + 1) * na <= (i + 1) * nb: out.append(b[j]); j += 1
    return out + b[j:]

GELU_C0 = -2 * 0.7978845608028654 * 1.4426950408889634
GELU_C1 = GELU_C0 * 0.044715
def gelu_pairs(g, regs, t0):
    c0 = R(t0 + 8, 2)
    for k in range(0, len(regs), 4):
        grp = regs[k:k + 4]
        T = [t0 + 2 * i for i in range(len(grp))]
        for y, t in zip(grp, T): g.e(f"v_pk_mul_f32 {R(t,2)}, {R(y,2)}, {R(y,2)}")
        for y, t in zip(grp, T): g.e(f"v_pk_fma_f32 {R(t,2)}, {R(t,2)}, s[54:55], {c0}")
        for y, t in zip(grp, T): g.e(f"v_pk_mul_f32 {R(t,2)}, {R(t,2)}, {R(y,2)}")
        for y, t in zip(grp, T): g.e(f"v_exp_f32 v{t}, v{t}\nv_exp_f32 v{t+1}, v{t+1}")
        if len(grp) < 2: g.e("s_nop 0")
        for y, t in zip(grp, T): g.e(f"v_pk_add_f32 {R(t,2)}, {R(t,2)}, 1.0 op_sel_hi:[1,0]")
        for y, t in zip(grp, T): g.e(f"v_rcp_f32 v{t}, v{t}\nv_rcp_f32 v{t+1}, v{t+1}")
        if len(grp) < 2: g.e("s_nop 0")
        for y, t in zip(grp, T): g.e(f"v_pk_mul_f32 {R(y,2)}, {R(y,2)}, {R(t,2)}")

def prologue(g):
    e = g.e; o = g.o
    e("s_cmp_ge_u32 s2, 256\ns_cbranch_scc1 Lend")
    g.stamp("c"); g.nstamp["x"] = g.nstamp.get("c", 0)
    e("s_load_dwordx16 s[32:47], s[0:1], 0\ns_load_dwordx4 s[48:51], s[0:1], 64\ns_load_dwordx2 s[52:53], s[0:1], 80")
    e("v_lshrrev_b32 v2, 6, v0\nv_and_b32 v1, 63, v0\ns_and_b32 s29, s2, 7\ns_lshr_b32 s30, s2, 3\nv_readfirstlane_b32 s22, v2")
    e("s_lshl_b32 s25, s29, 1\ns_lshr_b32 s3, s30, 4\ns_add_u32 s25, s25, s3\ns_and_b32 s26, s30, 15")
    e("s_lshl_b32 s27, s25, 1\ns_lshr_b32 s3, s26, 3\ns_add_u32 s27, s27, s3\ns_and_b32 s28, s26, 7")
    if o.get("map1", 3) == 3:
        e("s_lshr_b32 s23, s29, 2\ns_lshl_b32 s23, s23, 3\ns_lshr_b32 s3, s30, 2\ns_add_u32 s23, s23, s3")
        e("s_and_b32 s24, s29, 3\ns_lshl_b32 s24, s24, 2\ns_and_b32 s3, s30, 3\ns_add_u32 s24, s24, s3")
    elif o.get("map1", 3) == 2:
        e("s_lshr_b32 s23, s29, 1\ns_lshl_b32 s23, s23, 2\ns_lshr_b32 s3, s30, 3\ns_add_u32 s23, s23, s3")
        e("s_and_b32 s24, s29, 1\ns_lshl_b32 s24, s24, 3\ns_and_b32 s3, s30, 7\ns_add_u32 s24, s24, s3")
    elif o.get("map1", 3) == 1:
        e("s_lshr_b32 s23, s29, 1\ns_lshl_b32 s23, s23, 2\ns_lshr_b32 s3, s30, 3\ns_add_u32 s23, s23, s3")
        e("s_and_b32 s24, s30, 7\ns_lshl_b32 s24, s24, 1\ns_and_b32 s3, s29, 1\ns_add_u32 s24, s24, s3")
    else:
        e("s_mov_b32 s23, s25\ns_mov_b32 s24, s26")
    e("s_mov_b32 s6, 2621440\ns_mov_b32 s7, 0x20000\ns_mov_b32 s10, %s\ns_mov_b32 s11, 0x20000" % hx(WS_REC))
    e("s_mov_b32 s15, 0x20000\ns_mov_b32 s18, 2621440\ns_mov_b32 s19, 0x20000")
    e("s_waitcnt lgkmcnt(0)")
    g.stamp("c", "i0"); g.nstamp["x"] = g.nstamp.get("c", 0)
    e("s_mov_b32 s4, s32\ns_mov_b32 s5, s33\ns_mov_b32 s8, s52\ns_mov_b32 s9, s53\ns_mov_b32 s16, s48\ns_mov_b32 s17, s49")
    if o.get("map3", 0): e("s_lshr_b32 s38, s29, 1\ns_lshl_b32 s38, s38, 2\ns_lshr_b32 s3, s30, 3\ns_add_u32 s38, s38, s3\ns_and_b32 s39, s29, 1\ns_lshl_b32 s39, s39, 3\ns_add_u32 s39, s39, s28")
    else: e("s_mov_b32 s38, s25\ns_mov_b32 s39, s26")
    e("s_mov_b32 s14, 2457600\ns_mov_b32 s21, %d\ns_cmp_ge_u32 s24, 12\ns_cselect_b64 s[12:13], s[40:41], s[34:35]\ns_cselect_b32 s14, 819200, s14" % SLOT + "")
    e("s_cmp_ge_u32 s22, 6\ns_cbranch_scc1 Lwload\ns_cmp_eq_u32 s22, 5\ns_cbranch_scc1 Lx5load\ns_cmp_eq_u32 s22, 4\ns_cbranch_scc1 Lx4load")

def slot_adv(g, regs, scnt="s57"):
    g.e(f"s_add_u32 {scnt}, {scnt}, 1\ns_and_b32 {scnt}, {scnt}, 3\ns_cselect_b32 s3, s21, {hx(-3*SLOT)}")
    return [f"v_add_u32 v{r}, s3, v{r}" for r in regs]

ACC, SUM, SQ, CS, ONES = 64, 144, 160, 176, 196
def j1_consumer(g):
    e = g.e
    XA, WA, XB, WB = 200, 216, 8, 24
    if g.o.get("prio", 2): e("s_setprio 2")
    g.pk_setup()
    e("s_cmp_eq_u32 s22, 3\ns_cbranch_scc1 Lp0")
    e(f"s_lshl_b32 s100, s22, 8\ns_add_u32 s100, s100, s2\ns_cmp_ge_u32 s100, 740\ns_cselect_b32 s3, 256, 0\ns_sub_u32 s100, s100, s3\ns_lshl_b32 s101, s22, 12\ns_add_u32 s101, s101, {MISC}")
    g.stamp("c", "i0")
    e("s_call_b64 s[70:71], Lpk_issue\ns_branch Lp0x\nLp0:")
    e("s_cmp_lg_u32 s2, 0\ns_cbranch_scc1 Lp0x")
    for i in range(8, 12): e(f"v_mov_b32 v{i}, 0")
    for i in range(32): e((f"s_mov_b32 s3, {hx(CNT+1024*i)}\n" if i % 4 == 0 else "") + f"buffer_store_dwordx4 v[8:11], v251, s[8:11], s3 offen offset:{1024*(i%4)} sc0 sc1")
    e("s_waitcnt vmcnt(0)\nv_mov_b32 v4, 1\nglobal_store_dword v8, v4, s[50:51] sc0 sc1")
    if g.o.get("p0", 0):
        e("s_lshr_b32 s29, s2, 3\ns_lshr_b32 s3, s23, 3\ns_lshl_b32 s3, s3, 5\ns_add_u32 s3, s3, s29\ns_mul_i32 s30, s3, 40960")
        e("v_and_b32 v4, 31, v1\nv_mul_u32_u24 v4, 1280, v4\nv_lshrrev_b32 v5, 5, v1\nv_lshl_add_u32 v4, v5, 7, v4")
        e("s_movk_i32 s60, 3840\ns_cmp_ge_u32 s24, 12\ns_cselect_b32 s60, 1280, s60\ns_cselect_b32 s3, 12, 0\ns_sub_u32 s3, s24, s3\ns_lshr_b32 s3, s3, 2\ns_mul_i32 s61, s3, 1280")
        e("s_lshl_b32 s3, s29, 1\ns_mul_i32 s3, s3, s60\ns_add_u32 s61, s61, s3\ns_mul_i32 s62, s60, 192")
        e("v_mul_u32_u24 v5, 6554, v1\nv_lshrrev_b32 v5, 16, v5\nv_mul_u32_u24 v6, 10, v5\nv_sub_u32 v6, v1, v6")
        e("v_lshrrev_b32 v7, 1, v5\nv_and_b32 v5, 1, v5\nv_lshl_add_u32 v5, v7, 6, v5\nv_mul_lo_u32 v5, v5, s60\nv_lshl_add_u32 v5, v6, 7, v5")
        for t in ("w0", "x0", "x1", "w1", "x2", "w2", "x3", "x4", "w3"):
            q = int(t[1])
            if t[0] == "x": e(f"buffer_load_dword v8, v4, s[4:7], s30 offen offset:{256*q}")
            else:
                e("s_mov_b32 exec_hi, 0x0fffffff" if q < 3 else "s_mov_b64 exec, 0xfffff")
                e("buffer_load_dword v8, v5, s[12:15], s61 offen\ns_add_u32 s61, s61, s62\ns_mov_b64 exec, -1")
    e("Lp0x:")
    g.stamp("c", "i0"); g.stamp("c", "i0")
    e("s_lshr_b32 s58, s22, 1\ns_and_b32 s59, s22, 1\ns_xor_b32 s60, s58, s59")
    e("v_and_b32 v4, 15, v1\nv_lshrrev_b32 v5, 4, v1")
    e("s_lshl_b32 s3, s60, 2\nv_add_u32 v6, s3, v5\nv_lshrrev_b32 v7, 1, v4\nv_xor_b32 v6, v6, v7\nv_lshlrev_b32 v6, 4, v6")
    e("s_lshl_b32 s3, s58, 13\nv_lshlrev_b32 v7, 7, v4\nv_add3_u32 v2, v6, v7, s3\nv_xor_b32 v3, 64, v2")
    e("s_cmp_ge_u32 s24, 12\ns_cselect_b32 s61, 32, 40\ns_cselect_b32 s62, 8, 40\ns_cselect_b32 s63, 32, 160\ns_cselect_b32 s3, 256, 32")
    e("s_mul_i32 s63, s63, s59\ns_add_u32 s63, s63, s3")
    e("v_lshlrev_b32 v6, 3, v5\nv_bfe_u32 v7, v1, 2, 2\nv_add_u32 v6, v6, v7\nv_mul_u32_u24 v6, 320, v6")
    e("v_and_b32 v7, 3, v1\nv_and_b32 v54, 1, v5\nv_lshlrev_b32 v54, 5, v54")
    e(f"s_mul_i32 s64, s60, 10240\ns_add_u32 s64, s64, {WOFF}\ns_sub_u32 s65, {2*WOFF+10240}, s64")
    for nt in range(5):
        if nt < 4:
            e(f"s_lshl_b32 s3, s59, 2\ns_add_u32 s3, s3, {nt}\ns_mul_i32 s3, s3, s61\nv_lshlrev_b32 v55, 3, v7\nv_add_u32 v55, s3, v55")
        else:
            e("v_mul_lo_u32 v55, v7, s62\nv_add_u32 v55, s63, v55")
        e(f"v_xor_b32 v55, v55, v54\nv_add_u32 v55, v55, v6\nv_add_u32 v{44+nt}, s64, v55\nv_add_u32 v{49+nt}, s65, v55")
    for r in range(ACC, ONES): e(f"v_mov_b32 v{r}, 0")
    for r in range(ONES, ONES + 4): e(f"v_mov_b32 v{r}, 0x3f803f80")
    if not g.o.get("j1unr", 1):
        for r in range(XB, WB + 20): e(f"v_mov_b32 v{r}, 0")
    e("s_mov_b32 s57, 0\ns_mov_b32 s56, 0")
    if g.o.get("inner") == 0: e("s_memrealtime s[54:55]\ns_waitcnt vmcnt(0)\ns_memrealtime s[14:15]")
    e("s_cmp_eq_u32 s22, 3\ns_cbranch_scc1 Lpk2b\ns_waitcnt vmcnt(0)\ns_call_b64 s[70:71], Lpk_fin\nLpk2b:")
    if g.o.get("inner") == 0: e("s_waitcnt lgkmcnt(0)\ns_mov_b64 s[82:83], s[54:55]\ns_mov_b64 s[84:85], s[14:15]"); g.nstamp["c"] += 2
    g.stamp("c", "i0")
    IMM = g.o.get("imm", 1) and g.o.get("j1unr", 1)
    if IMM:
        for i, r in enumerate([2, 3] + list(range(44, 54))): e(f"v_add_u32 v{236+i}, {2*SLOT}, v{r}")
    def reads(xa, wa0, X, W, it=0):
        L = []; o = 0
        if IMM:
            o = (it & 1) * SLOT
            if it & 2: xa += 234; wa0 += 194
        for rt in range(4): L.append(f"ds_read_b128 {R(X+4*rt)}, v{xa} offset:{o+rt*2048}")
        for nt in range(5):
            L.append(f"ds_read_b64_tr_b16 {R(W+4*nt,2)}, v{wa0+nt} offset:{o}")
            L.append(f"ds_read_b64_tr_b16 {R(W+4*nt+2,2)}, v{wa0+nt} offset:{o+1280}")
        return L
    DOT = g.o.get("dot", 0)
    def mf(X, W, vt, phaseA):
        L = []
        for nt in range(5):
            for rt in range(4):
                a, b = (R(X+4*rt), R(W+4*nt)) if vt else (R(W+4*nt), R(X+4*rt))
                L.append(f"{MF} {R(ACC+(rt*5+nt)*4)}, {a}, {b}, {R(ACC+(rt*5+nt)*4)}")
            if not phaseA and not DOT: L.append(f"{MF} {R(CS+4*nt)}, {R(ONES)}, {R(W+4*nt)}, {R(CS+4*nt)}")
        if DOT:
            V = []
            for r in range(4):
                if phaseA:
                    for rt in range(4): V += [f"v_dot2c_f32_bf16 v{SUM+4*rt}, v{X+4*rt+r}, v{ONES}", f"v_dot2c_f32_bf16 v{SQ+4*rt}, v{X+4*rt+r}, v{X+4*rt+r}"]
                else:
                    for nt in range(5): V.append(f"v_dot2c_f32_bf16 v{CS+4*nt}, v{W+4*nt+r}, v{ONES}")
            d0 = g.o.get("dot0", 4)
            per = [[] for _ in L]
            for i, v in enumerate(V): per[d0 + i * (len(L) - d0) // len(V)].append(v)
            L = ["\n".join([m] + p) for m, p in zip(L, per)]
        elif phaseA:
            for rt in range(4):
                L.append(f"{MF} {R(SUM+4*rt)}, {R(ONES)}, {R(X+4*rt)}, {R(SUM+4*rt)}")
                L.append(f"{MF} {R(SQ+4*rt)}, {R(X+4*rt)}, {R(X+4*rt)}, {R(SQ+4*rt)}")
        return L
    e("s_lshr_b32 s3, s24, 2\ns_cmp_eq_u32 s3, 2\ns_cbranch_scc1 Lj1v")
    DEN = g.o.get("j1den", 14)
    UNR = g.o.get("j1unr", 1)
    for vt in (0, 1):
        lp = "Lj1v" if vt else "Lj1n"
        e(f"{lp}:")
        mB = mf(XB, WB, vt, False); mA = mf(XA, WA, vt, True)
        for it in range(10 if UNR else 1):
            if it == g.o.get("ps", 1): e("s_waitcnt vmcnt(0)")
            if not UNR: e(f"s_cmp_eq_u32 s56, 0\ns_cbranch_scc1 {lp}w\ns_waitcnt vmcnt(0)\n{lp}w:")
            e("s_barrier")
            if vt and it == 0 and g.o.get("inner") == 1: g.nstamp["c"] -= 10
            if vt and it == 0 and g.o.get("inner") == 0: g.nstamp["c"] -= 2
            g.stamp("c", "i1" if it > 1 else "i01")
            if UNR and it == 0:
                for x in reads(2, 44, XA, WA, it): e(x)
            else:
                for x in interleave(mB[:DEN], reads(2, 44, XA, WA, it)) + mB[DEN:]: e(x)
            e("s_waitcnt lgkmcnt(0)")
            for x in interleave(mA[:DEN], reads(3, 49, XB, WB, it)): e(x)
            adv = [] if IMM else slot_adv(g, [2, 3] + list(range(44, 54)))
            for x in interleave(mA[DEN:], adv): e(x)
            e("s_waitcnt lgkmcnt(0)")
        if not UNR: e(f"s_add_u32 s56, s56, 1\ns_cmp_lt_u32 s56, 10\ns_cbranch_scc1 {lp}")
        for x in mB: e(x)
        if not vt: e("s_branch Lj1done")
    e("Lj1done:")
    g.stamp("c", "16")
    e(f"s_lshl_b32 s3, s59, 9\ns_lshl_b32 s29, s58, 8\ns_add_u32 s3, s3, s29\ns_add_u32 s3, s3, {MISC}\nv_lshlrev_b32 v6, 2, v4\nv_add_u32 v6, s3, v6")
    e(f"s_mul_i32 s3, s58, 640\ns_mul_i32 s29, s59, 320\ns_add_u32 s3, s3, s29\ns_add_u32 s3, s3, {MISC+2048}\nv_lshlrev_b32 v7, 2, v4\nv_add_u32 v7, s3, v7")
    if DOT:
        vals = [SUM + 4 * i for i in range(13)]
        for sw in ("v_permlane32_swap_b32", "v_permlane16_swap_b32"):
            for v in vals: e(f"v_mov_b32 v{v+1}, v{v}")
            for v in vals: e(f"{sw} v{v+1}, v{v}")
            for v in vals: e(f"v_add_f32 v{v}, v{v}, v{v+1}")
    else:
        e("s_mov_b32 s60, 0x22222222\ns_mov_b32 s61, s60\ns_mov_b32 s62, 0x44444444\ns_mov_b32 s63, s62\ns_mov_b32 s64, 0x88888888\ns_mov_b32 s65, s64\ns_nop 3")
        for rt in range(4):
            q = SQ + 4 * rt
            e(f"v_cndmask_b32 v{q}, v{q}, v{q+1}, s[60:61]\nv_cndmask_b32 v{q}, v{q}, v{q+2}, s[62:63]\nv_cndmask_b32 v{q}, v{q}, v{q+3}, s[64:65]")
    e("s_mov_b32 exec_lo, 0x00f0000f\ns_mov_b32 exec_hi, 0xf0000f00")
    for rt in range(4):
        e(f"ds_write_b32 v6, v{SUM+4*rt} offset:{64*rt}\nds_write_b32 v6, v{SQ+4*rt} offset:{1024+64*rt}")
    for nt in range(5): e(f"ds_write_b32 v7, v{CS+4*nt} offset:{64*nt}")
    e("s_mov_b64 exec, -1\ns_waitcnt lgkmcnt(0)\ns_barrier")
    g.stamp("c", "i6")
    e("s_lshr_b32 s61, s24, 2\ns_and_b32 s62, s24, 3")
    e(f"s_mul_i32 s60, s61, {KF}\ns_mul_i32 s3, s62, 5120\ns_add_u32 s60, s60, s3\ns_lshl_b32 s3, s59, 11\ns_add_u32 s63, s60, s3")
    e("s_lshl_b32 s3, s59, 9\ns_add_u32 s64, s60, s3\ns_add_u32 s64, s64, 4096")
    e("v_lshrrev_b32 v3, 1, v5\nv_sub_u32 v3, v5, v3\nv_lshlrev_b32 v3, 8, v3\nv_and_b32 v2, 1, v5\nv_lshlrev_b32 v2, 3, v2\nv_sub_u32 v3, v3, v2")
    e("s_lshl_b32 s65, s23, 7\ns_lshl_b32 s3, s58, 6\ns_add_u32 s65, s65, s3")
    inv = hx(f2u(1.0 / 640)); eps = hx(f2u(1e-5))
    e(f"s_mov_b32 s66, {inv}\ns_mov_b32 s67, {eps}")
    e("s_cmp_eq_u32 s61, 2\ns_cbranch_scc1 Lj1ev")
    e(f"s_lshl_b32 s3, s58, 8\ns_add_u32 s3, s3, {MISC}\nv_lshlrev_b32 v6, 2, v4\nv_add_u32 v6, s3, v6")
    e(f"s_mul_i32 s3, s59, 320\ns_add_u32 s3, s3, {MISC+2048}\nv_lshlrev_b32 v7, 4, v5\nv_add_u32 v7, s3, v7")
    for rt in range(4):
        e(f"ds_read2_b32 {R(8+4*rt,2)}, v6 offset0:{16*rt} offset1:{128+16*rt}")
        e(f"ds_read_b32 v{10+4*rt}, v6 offset:{1024+64*rt}\nds_read_b32 v{11+4*rt}, v6 offset:{1536+64*rt}")
    for nt in range(5):
        e(f"ds_read_b128 {R(144+4*nt)}, v7 offset:{64*nt}\nds_read_b128 {R(164+4*nt)}, v7 offset:{640+64*nt}")
    e("s_lshr_b32 s3, s62, 1\ns_add_u32 s3, s3, 1\ns_sub_u32 s29, 0, s3\ns_bitcmp1_b32 s62, 0\ns_cselect_b32 s3, s29, s3\ns_cmp_eq_u32 s61, 3\ns_cselect_b32 s68, s3, 0")
    e("s_add_u32 s3, s65, s68\nv_add_u32 v24, s3, v4\ns_movk_i32 s69, 0x5000")
    for rt in range(4):
        e(f"v_add_u32 v25, {16*rt}, v24\nv_and_b32 v26, 0x7ff, v25\nv_cmp_eq_u32 s[{70+0}:{71}], v25, v26" if False else
          f"v_add_u32 v25, {16*rt}, v24\nv_and_b32 v26, 0x7ff, v25\nv_cmp_eq_u32 vcc, v25, v26")
        e(f"v_lshrrev_b32 v25, 4, v26\nv_and_b32 v26, 15, v26\nv_cndmask_b32 v{32+rt}, 0, 1.0, vcc")
        e(f"v_mul_lo_u32 v25, v25, s69\nv_lshl_add_u32 v26, v5, 4, v26\nv_lshl_add_u32 v{28+rt}, v26, 4, v25")
    e("s_waitcnt lgkmcnt(0)")
    for rt in range(4):
        b = 8 + 4 * rt
        e(f"v_add_f32 v{b}, v{b}, v{b+1}\nv_add_f32 v{b+2}, v{b+2}, v{b+3}\nv_mul_f32 v{b}, s66, v{b}\nv_mul_f32 v{b+2}, s66, v{b+2}")
        e(f"v_fma_f32 v{b+2}, -v{b}, v{b}, v{b+2}\nv_max_f32 v{b+2}, 0, v{b+2}\nv_add_f32 v{b+3}, s67, v{b+2}\nv_rsq_f32 v{b+1}, v{b+3}")
    for i in range(10): e(f"v_pk_add_f32 {R(144+2*i,2)}, {R(144+2*i,2)}, {R(164+2*i,2)}")
    e("s_cmp_lg_u32 s24, 12\ns_cbranch_scc1 Lj1nost\ns_cmp_lg_u32 s59, 0\ns_cbranch_scc1 Lj1nost")
    e(f"s_lshl_b32 s3, s65, 3\ns_add_u32 s3, s3, {hx(STAT)}\nv_lshlrev_b32 v6, 3, v4\ns_mov_b64 exec, 0xffff")
    for rt in range(4): e(f"buffer_store_dwordx2 {R(8+4*rt,2)}, v6, s[8:11], s3 offen offset:{128*rt} {PL}")
    e("s_mov_b64 exec, -1\nLj1nost:")
    e("s_cmp_lg_u32 s61, 3\ns_cbranch_scc1 Lj1nh")
    for rt in range(4):
        b = 8 + 4 * rt
        e(f"v_mul_f32 v{b+3}, v{b+1}, v{b+1}\nv_fma_f32 v{b+3}, v{b+3}, v{b+2}, s67\nv_rsq_f32 v{b+3}, v{b+3}\nv_mul_f32 v{b+2}, v{b+1}, v{32+rt}\nv_mul_f32 v{b+3}, v{b+2}, v{b+3}")
        e(f"v_mov_b32 v{b+2}, v{b}\n")
    e("s_branch Lj1nh2\nLj1nh:")
    for rt in range(4):
        b = 8 + 4 * rt
        e(f"v_mov_b32 v{b+2}, v{b}\nv_mov_b32 v{b+3}, v{b+1}")
    e("Lj1nh2:")
    g.stamp("c", "i6")
    e(f"s_mov_b32 s54, {hx(f2u(GELU_C1))}\ns_mov_b32 s55, s54\nv_mov_b32 v44, {hx(f2u(GELU_C0))}\nv_mov_b32 v45, v44")
    for rt in range(4):
        b = 8 + 4 * rt
        for nt in range(5):
            for h in range(2):
                a = ACC + (rt * 5 + nt) * 4 + 2 * h
                e(f"v_pk_fma_f32 {R(a,2)}, {R(144+4*nt+2*h,2)}, {R(b+2,2)}, {R(a,2)} op_sel_hi:[1,0,1] neg_lo:[1,0,0] neg_hi:[1,0,0]")
        for nt in range(5):
            for h in range(2):
                a = ACC + (rt * 5 + nt) * 4 + 2 * h
                e(f"v_pk_mul_f32 {R(a,2)}, {R(a,2)}, {R(b+2,2)} op_sel:[0,1] op_sel_hi:[1,1]")
        sk = g.lab("Lsk")
        e(f"s_cmp_lg_u32 s61, 3\ns_cbranch_scc1 {sk}")
        gelu_pairs(g, [ACC + rt * 20 + 2 * i for i in range(10)], 36)
        e(f"{sk}:")
        if not g.o.get("late1", 0): store_tile(g, ACC + rt * 20, 200 + 12 * (rt % 2), f"v{28+rt}", "s63", "s64", 0)
    g.stamp("c", "i6")
    if g.o.get("late1", 0):
        for rt in range(4): store_tile(g, ACC + rt * 20, ACC + rt * 20, f"v{28+rt}", "s63", "s64", 0)
    e("s_branch Lj1pub")
    e("Lj1ev:")
    e(f"s_lshl_b32 s3, s58, 8\ns_add_u32 s3, s3, {MISC}\nv_lshlrev_b32 v6, 4, v5\nv_add_u32 v6, s3, v6")
    e(f"s_mul_i32 s3, s59, 320\ns_add_u32 s3, s3, {MISC+2048}\nv_lshlrev_b32 v7, 2, v4\nv_add_u32 v7, s3, v7")
    for rt in range(4):
        e(f"ds_read_b128 {R(144+16*rt)}, v6 offset:{64*rt}\nds_read_b128 {R(148+16*rt)}, v6 offset:{512+64*rt}")
        e(f"ds_read_b128 {R(152+16*rt)}, v6 offset:{1024+64*rt}\nds_read_b128 {R(156+16*rt)}, v6 offset:{1536+64*rt}")
    for nt in range(5): e(f"ds_read2_b32 {R(8+2*nt,2)}, v7 offset0:{16*nt} offset1:{160+16*nt}")
    e("s_lshr_b32 s3, s65, 4\ns_mul_i32 s3, s3, 20480\nv_lshlrev_b32 v28, 4, v1\nv_add_u32 v28, s3, v28")
    for rt in range(1, 4): e(f"v_add_u32 v{28+rt}, {20480*rt}, v28")
    e("s_waitcnt lgkmcnt(0)")
    for nt in range(5): e(f"v_add_f32 v{8+2*nt}, v{8+2*nt}, v{9+2*nt}")
    for rt in range(4):
        for r in range(4):
            m, q = 144 + 16 * rt + r, 152 + 16 * rt + r
            e(f"v_add_f32 v{m}, v{m}, v{m+4}\nv_add_f32 v{q}, v{q}, v{q+4}\nv_mul_f32 v{m}, s66, v{m}\nv_mul_f32 v{q}, s66, v{q}")
            e(f"v_fma_f32 v{q}, -v{m}, v{m}, v{q}\nv_max_f32 v{q}, 0, v{q}\nv_add_f32 v{q}, s67, v{q}\nv_rsq_f32 v{q}, v{q}")
    e("s_nop 0")
    for rt in range(4):
        for nt in range(5):
            for h in range(2):
                a = ACC + (rt * 5 + nt) * 4 + 2 * h
                e(f"v_pk_fma_f32 {R(a,2)}, {R(144+16*rt+2*h,2)}, {R(8+2*nt,2)}, {R(a,2)} op_sel_hi:[1,0,1] neg_lo:[1,0,0] neg_hi:[1,0,0]")
        for nt in range(5):
            for h in range(2):
                a = ACC + (rt * 5 + nt) * 4 + 2 * h
                e(f"v_pk_mul_f32 {R(a,2)}, {R(a,2)}, {R(152+16*rt+2*h,2)}")
        store_tile(g, ACC + rt * 20, 212 + 12 * (rt % 2), f"v{28+rt}", "s63", "s64", 0)
    e("Lj1pub:")
    g.stamp("c", "16")
    g.flag_off(F_J1, "s23", 7, "s24"); e("s_waitcnt vmcnt(0)")
    g.stamp("c", "i6")
    g.wsignal(0, 1)
    g.stamp("c", "i6")

def store_tile(g, a, t, vo, spair, ssingle, off, npair=2, srd="s[8:11]", pstep=1024, pol=PL):
    n = npair * 4 + 2
    for i in range(n): g.e(f"v_cvt_pk_bf16_f32 v{t+i}, v{a+2*i}, v{a+2*i+1}")
    vop, vos = vo if isinstance(vo, tuple) else (vo, vo)
    if spair == "s63" and vos == "v30": vos = vop = "v30 "
    for p in range(npair): g.e(f"buffer_store_dwordx4 {R(t+4*p)}, {vop}, {srd}, {spair} offen offset:{off+pstep*p} {pol}")
    if vos == "v30": vos = "v2"
    elif vos == vop: g.e(f"v_sub_u32 v2, {vop}, v3"); vos = "v2"
    g.e(f"buffer_store_dwordx2 {R(t+4*npair,2)}, {vos}, {srd}, {ssingle} offen offset:{off} {pol}")


def packer_subs(g):
    e = g.e
    e("Lpk_issue:")
    e("s_mov_b32 s91, 0\ns_movk_i32 s85, 1280\ns_cmp_ge_u32 s100, 940\ns_cbranch_scc1 Lpk_w4")
    e("s_cmp_ge_u32 s100, 740\ns_cbranch_scc1 Lpk_wo\ns_cmp_ge_u32 s100, 200\ns_cbranch_scc1 Lpk_w3")
    e(f"s_mov_b64 s[92:93], s[42:43]\ns_mov_b32 s94, 819200\ns_mov_b32 s89, 0\ns_movk_i32 s90, 100\ns_mov_b32 s3, s100\ns_mov_b32 s31, 5\ns_branch Lpk_acc10")
    e(f"Lpk_w4:\ns_mov_b64 s[92:93], s[46:47]\ns_mov_b32 s94, 2211840\ns_mov_b32 s89, {(W4P-W2P)>>10}\ns_movk_i32 s90, 270\ns_sub_u32 s3, s100, 940\ns_mov_b32 s31, 7")
    e("Lpk_acc10:"); g.sdiv("s83", "s3", 10, 600)
    e("s_mul_i32 s84, s83, 10\ns_sub_u32 s84, s3, s84\ns_lshl_b32 s86, s83, 5\ns_mov_b32 s29, 0x4210\ns_bitset1_b32 s29, 19\ns_cmp_eq_u32 s31, 5\ns_cselect_b32 s30, s29, 0x81020408\ns_mov_b32 s31, 0x00102040")
    e("s_bitcmp1_b64 s[30:31], s83\ns_cselect_b32 s87, 4, 16\ns_cselect_b32 s88, 8, 4\ns_branch Lpk_go")
    e(f"Lpk_wo:\ns_mov_b64 s[92:93], s[36:37]\ns_mov_b32 s94, 819200\ns_mov_b32 s89, {(WOP-W2P)>>10}\ns_movk_i32 s90, 100\ns_sub_u32 s3, s100, 740")
    g.sdiv("s83", "s3", 10, 600)
    e("s_mul_i32 s84, s83, 10\ns_sub_u32 s84, s3, s84"); g.sdiv("s29", "s83", 5, 64)
    e("s_mul_i32 s30, s29, 5\ns_sub_u32 s30, s83, s30\ns_mul_i32 s86, s29, 160\ns_mul_i32 s3, s30, 40\ns_cmp_eq_u32 s30, 4")
    e("s_cselect_b32 s3, 16, s3\ns_mov_b32 s87, 20\ns_cselect_b32 s88, 40, 4\ns_add_u32 s86, s86, s3\ns_branch Lpk_go")
    e(f"Lpk_w3:\ns_mov_b64 s[92:93], s[44:45]\ns_mov_b32 s94, 2211840\ns_mov_b32 s89, {(W3P-W2P)>>10}\ns_movk_i32 s90, 140\ns_mov_b32 s91, 1\ns_movk_i32 s85, 3456\ns_sub_u32 s3, s100, 200")
    g.sdiv("s83", "s3", 27, 600)
    e("s_mul_i32 s84, s83, 27\ns_sub_u32 s84, s3, s84"); g.sdiv("s29", "s83", 5, 64)
    e("s_mul_i32 s30, s29, 5\ns_sub_u32 s30, s83, s30\ns_lshl_b32 s86, s83, 5\ns_mov_b32 s87, 4\ns_mov_b32 s88, 8")
    e("Lpk_go:")
    e("v_mul_lo_u32 v242, v236, s87\nv_add_u32 v242, v242, v237\nv_mul_lo_u32 v242, v242, s85\nv_add_u32 v242, v242, v238")
    e("s_mul_i32 s86, s86, s85\ns_lshl_b32 s3, s84, 7\ns_add_u32 s86, s86, s3\ns_mul_i32 s88, s88, s85")
    for d in range(4):
        e(f"s_add_u32 m0, s101, {d*1024}\ns_nop 0\nbuffer_load_dwordx4 v242, s[92:95], s86 offen lds")
        if d < 3: e("s_add_u32 s86, s86, s88")
    for fbl in range(2):
        lw3, ldn = g.lab("Lpkd"), g.lab("Lpkd")
        e(f"s_lshl_b32 s3, s84, 1\ns_add_u32 s3, s3, {fbl}\ns_cmp_lg_u32 s91, 0\ns_cbranch_scc1 {lw3}")
        g.sdiv("s29", "s3", 5, 64)
        e("s_mul_i32 s30, s29, 5\ns_sub_u32 s30, s3, s30\ns_lshl_b32 s29, s29, 1")
        e("s_lshr_b32 s3, s30, 1\ns_and_b32 s31, s30, 1\ns_lshl_b32 s31, s31, 1\ns_cmp_eq_u32 s30, 4")
        e("s_cselect_b32 s3, 0, s3\ns_cselect_b32 s31, 4, s31\ns_cselect_b32 s86, s90, 1\ns_cselect_b32 s87, 8, 16\ns_cselect_b32 s30, 32, 8")
        e("s_add_u32 s29, s29, s3\ns_mul_i32 s29, s29, s90\ns_mul_i32 s3, s83, 5")
        e(f"s_branch {ldn}\n{lw3}:")
        g.sdiv("s29", "s3", 7, 64)
        e("s_mul_i32 s30, s29, 7\ns_sub_u32 s30, s3, s30\ns_lshl_b32 s29, s29, 1")
        e("s_lshr_b32 s3, s30, 2\ns_and_b32 s31, s30, 3\ns_lshl_b32 s31, s31, 1\ns_cmp_eq_u32 s30, 3")
        e("s_cselect_b32 s86, s90, 1\ns_mov_b32 s87, 8\ns_mov_b32 s30, 32")
        e("s_add_u32 s29, s29, s3\ns_mul_i32 s29, s29, s90\ns_mul_i32 s3, s83, 7")
        e(f"{ldn}:")
        e(f"s_add_u32 s29, s29, s3\ns_add_u32 s29, s29, s31\ns_add_u32 s{96+2*fbl}, s29, s89\ns_add_u32 s{97+2*fbl}, s{96+2*fbl}, s86")
        e(f"v_mul_lo_u32 v{243+2*fbl}, v240, s87\nv_add3_u32 v{243+2*fbl}, v{243+2*fbl}, v239, s101\nv_add_u32 v{244+2*fbl}, s30, v{243+2*fbl}")
    e("s_setpc_b64 s[70:71]")
    e("Lpk_fin:")
    for q in range(4):
        e(f"ds_read_b64_tr_b16 {R(200+4*q,2)}, v{243+q} offset:{64*(q//2)}\nds_read_b64_tr_b16 {R(202+4*q,2)}, v{243+q} offset:{64*(q//2)+512}")
    e("s_waitcnt lgkmcnt(0)")
    for q in range(4): e(f"{MF} {R(216+4*q)}, {R(ONES)}, {R(200+4*q)}, 0")
    for q in range(4):
        e(f"s_lshl_b32 s3, s{96+q}, 10\ns_add_u32 s3, s3, {hx(W2P)}\nbuffer_store_dwordx4 {R(200+4*q)}, v251, s[8:11], s3 offen {PL}")
    e("s_mov_b64 exec, 0xffff")
    for q in range(4):
        e(f"s_lshl_b32 s3, s{96+q}, 6\ns_add_u32 s3, s3, {hx(CSP)}\nbuffer_store_dword v{216+4*q}, v241, s[8:11], s3 offen {PL}")
    e("s_mov_b64 exec, -1\ns_setpc_b64 s[70:71]")

def call(g, target):
    g.e(f"s_getpc_b64 s[30:31]\ns_add_u32 s30, s30, {target}-.+0\ns_addc_u32 s31, s31, 0\ns_swappc_b64 s[20:21], s[30:31]".replace("-.+0", "@"))

class VM:
    def __init__(s, g): s.g = g; s.ops = []
    def op(s, text, tag=None): s.g.e(text); s.ops.append(tag)
    def n_after(s, tag):
        idx = [i for i, t in enumerate(s.ops) if t == tag]
        return None if not idx else len(s.ops) - 1 - idx[-1]
    def wait(s, tag):
        n = s.n_after(tag)
        if n is None: return
        assert n <= 63, n
        s.g.e(f"s_waitcnt vmcnt({n})"); s.ops = s.ops[len(s.ops) - n:]
    def room(s, k):
        if len(s.ops) + k > 60:
            n = 60 - k - 4; s.g.e(f"s_waitcnt vmcnt({n})"); s.ops = s.ops[len(s.ops) - n:]
    def drained(s): s.ops = []

def lds_ref(off):
    b = off >> 16
    return f"v{30+b} offset:{off & 0xffff}"

def xgemm(g, vm, nks, nrt, nnt, acc, XW, WB, waddr, xload, pre_issued=0, barrier_at=None, hook=None, AH=2, st=None, pre=99, rotw=None):
    e = g.e; win = len(XW) // nrt; nb = len(WB)
    def xreg(ks, rt): return XW[(ks % win) * nrt + rt]
    def issue_x(ks):
        for rt, t in enumerate(xload(ks)): vm.op(t.replace("{r}", R(xreg(ks, rt))), ("x", ks))
    def rd(ks):
        L = ["s_barrier"] if barrier_at and ks in barrier_at else []
        if rotw:
            cs = 4 * nnt * 1024; p = ""
            if ks % 4 == 0:
                if ks: p = f"s_add_u32 {rotw}, {rotw}, {cs}\ns_cmp_ge_u32 {rotw}, {5*cs}\ns_cselect_b32 {rotw}, 0, {rotw}\n"
                p += f"v_add_u32 v33, {rotw}, v30\n"
            return L + [(p if nt == 0 else "") + f"ds_read_b128 {R(WB[ks % nb]+4*nt)}, v33 offset:{((ks % 4) * nnt + nt) * 1024}" for nt in range(nnt)]
        return L + [f"ds_read_b128 {R(WB[ks % nb]+4*nt)}, {waddr(ks, nt)}" for nt in range(nnt)]
    nx = pre_issued
    while nx < min(win, nks, pre): issue_x(nx); nx += 1
    if hook: hook(-1)
    for ks in range(min(AH, nks)):
        for x in rd(ks): e(x)
    for ks in range(nks):
        vm.wait(("x", ks))
        later = min(AH - 1, nks - 1 - ks) * nnt
        e(f"s_waitcnt lgkmcnt({later})")
        if st and ks in st[1] and str(g.o.get("inner", "")) and str(g.o.get("inner")) in st[0]: g.stamp("c", st[0]); e("s_waitcnt lgkmcnt(0)")
        m = []
        for nt in range(nnt):
            for rt in range(nrt):
                a = R(acc + (rt * nnt + nt) * 4)
                m.append(f"{MF} {a}, {R(WB[ks % nb]+4*nt)}, {R(xreg(ks, rt))}, {'0' if ks == 0 else a}")
        r = rd(ks + AH) if ks + AH < nks else []
        if nb > AH:
            h = max(1, len(m) * 2 // 3)
            seq = interleave(m[:h], r) + m[h:]
        else:
            j = 0; seq = []
            if r and r[0] == "s_barrier": seq.append(r[0]); r = r[1:]
            for i, x in enumerate(m):
                seq.append(x)
                if r and (i + 1) % nrt == 0: seq.append(r[j]); j += 1
        lds = []
        if g.o.get("spread", 1):
            for _ in range(2):
                if nx < nks and nx <= ks + win - 1:
                    for rt, t in enumerate(xload(nx)): lds.append(t.replace("{r}", R(xreg(nx, rt)))); vm.ops.append(("x", nx))
                    nx += 1
            n = len(seq); out = []; jj = 0
            for i, x in enumerate(seq):
                out.append(x)
                while jj < len(lds) and (2 * jj + 1) * n <= (i + 1) * 2 * len(lds): out.append(lds[jj]); jj += 1
            seq = out + lds[jj:]
        for x in seq: e(x)
        if not g.o.get("spread", 1):
            for _ in range(2):
                if nx < nks and nx <= ks + win: issue_x(nx); nx += 1
        if hook: hook(ks)

def rot_setup(g, idx, cs, sx, sw):
    if g.o.get("rot", 0):
        g.sdiv("s3", idx, 5, 16); g.e(f"s_mul_i32 s3, s3, 5\ns_sub_u32 s3, {idx}, s3")
    else: g.e("s_mov_b32 s3, 0")
    g.e(f"s_lshl_b32 {sx}, s3, 12\ns_mul_i32 {sw}, s3, {cs}")

def xl_rot(sb, sx, st, nrt=1):
    def f(ks):
        p = ""
        if ks % 4 == 0:
            if ks: p = f"s_add_u32 {sx}, {sx}, 4096\ns_cmp_ge_u32 {sx}, 20480\ns_cselect_b32 {sx}, 0, {sx}\n"
            p += f"s_add_u32 {st[0]}, {sb}, {sx}\n"
            if nrt == 2: p += f"s_add_u32 {st[1]}, {st[0]}, 20480\n"
        return [(p if rt == 0 else "") + f"buffer_load_dwordx4 {{r}}, v30, s[8:11], {st[rt]} offen offset:{(ks % 4) * 1024} {PL}" for rt in range(nrt)]
    return f

XK, X1K = 236, 246
AQ, AKC, AKP, AVC, AVP = 34, 44, 54, 224, 8
def tile_addr(g):
    e = g.e
    e("v_and_b32 v4, 15, v1\nv_lshrrev_b32 v5, 4, v1")
    e("s_lshl_b32 s65, s27, 6\ns_lshl_b32 s3, s22, 4\ns_add_u32 s65, s65, s3")
    e("s_lshr_b32 s58, s28, 1\ns_and_b32 s59, s28, 1")
    e("v_mul_u32_u24 v28, 1280, v4\nv_lshl_add_u32 v29, v5, 3, v28\nv_lshl_add_u32 v28, v5, 4, v28")
    e("s_mul_i32 s60, s65, 1280\ns_mul_i32 s3, s58, 320\ns_add_u32 s60, s60, s3\ns_lshl_b32 s3, s59, 5\ns_add_u32 s61, s60, s3\ns_add_u32 s61, s61, 256")
    e("s_lshl_b32 s3, s59, 7\ns_add_u32 s60, s60, s3")
    e("s_lshr_b32 s64, s65, 4\ns_mul_i32 s64, s64, 20480\ns_mul_i32 s3, s58, 5120\ns_add_u32 s62, s64, s3")
    e("s_lshl_b32 s3, s59, 9\ns_add_u32 s63, s62, s3\ns_add_u32 s63, s63, 4096\ns_lshl_b32 s3, s59, 11\ns_add_u32 s62, s62, s3")
    e("v_lshlrev_b32 v30, 4, v1\nv_add_u32 v31, 0x10000, v30\nv_add_u32 v32, 0x20000, v30\nv_sub_u32 v2, v30, v3")

def unpack(g, src, dst, n):
    for i in range(n): g.e(f"v_lshlrev_b32 v{dst+2*i}, 16, v{src+i}\nv_and_b32 v{dst+2*i+1}, 0xffff0000, v{src+i}")

def xl_lin(sreg):
    def f(ks):
        pre = f"s_add_u32 {sreg}, {sreg}, 4096\n" if ks and ks % 4 == 0 else ""
        return [pre + f"buffer_load_dwordx4 {{r}}, v30, s[8:11], {sreg} offen offset:{(ks % 4) * 1024} {PL}"]
    return f

def j2_consumer(g):
    e = g.e; vm = VM(g)
    tile_addr(g)
    e(f"buffer_load_dwordx4 {R(XK)}, v28, s[4:7], s60 offen\nbuffer_load_dwordx4 {R(XK+4)}, v28, s[4:7], s60 offen offset:64\nbuffer_load_dwordx2 {R(XK+8,2)}, v29, s[4:7], s61 offen")
    e(f"s_add_u32 s66, s64, {hx(HF)}\ns_lshl_b32 s67, s65, 3\ns_add_u32 s67, s67, {hx(STAT)}\nv_lshlrev_b32 v6, 3, v4")
    e("s_cmp_eq_u32 s65, 0\ns_cselect_b32 s3, 0, 20480\ns_sub_u32 s68, s62, s3\ns_sub_u32 s69, s63, s3")
    rot_setup(g, "s28", 20480, "s56", "s57")
    g.stamp("c", "i6")
    e("s_barrier")
    g.stamp("c", "26")
    att = []
    for (rr, base, sp, ss) in ((AQ, QF, "s62", "s63"), (AKC, KF, "s62", "s63"), (AKP, KF, "s68", "s69"), (AVC, VF, "s62", "s63"), (AVP, VF, "s68", "s69")):
        att.append(f"s_add_u32 s70, {sp}, {hx(base)}\ns_add_u32 s71, {ss}, {hx(base)}\nbuffer_load_dwordx4 {R(rr)}, v30, s[8:11], s70 offen {PL}")
        att.append(f"buffer_load_dwordx4 {R(rr+4)}, v30, s[8:11], s70 offen offset:1024 {PL}")
        att.append(f"buffer_load_dwordx2 {R(rr+8,2)}, v2, s[8:11], s71 offen {PL}")
    A0 = g.o.get("att0", 5)
    def hook(ks):
        if ks == A0 - 1: vm.op(f"buffer_load_dwordx2 v[18:19], v6, s[8:11], s67 offen {PL}", "st")
        for _ in range(2):
            if ks >= g.o.get("m2", 8) - 2 and att: vm.op(att.pop(0))

    xgemm(g, vm, 20, 1, 5, 64, [84 + 4 * i for i in range(20)], [164, 184, 204], None, xl_rot("s66", "s56", ["s20"]), hook=hook,
          st=("i2", (0, 1, 4, 8, 12, 16)), pre=g.o.get("pre2", 6), rotw="s57", barrier_at={g.o.get("m2", 8)})
    g.stamp("c", "2")
    vm.wait("st")
    unpack(g, XK, 84, 10)
    e("v_mul_f32 v20, v18, v19\nv_mov_b32 v21, v19")
    for i in range(10): e(f"v_pk_add_f32 {R(64+2*i,2)}, {R(64+2*i,2)}, v[20:21] op_sel_hi:[1,0] neg_lo:[0,1] neg_hi:[0,1]")
    for i in range(10): e(f"v_pk_fma_f32 {R(64+2*i,2)}, {R(84+2*i,2)}, v[20:21], {R(64+2*i,2)} op_sel:[0,1,0] op_sel_hi:[1,1,1]")
    e(f"s_add_u32 s66, s62, {hx(X1F)}\ns_add_u32 s67, s63, {hx(X1F)}")
    store_tile(g, 64, X1K, "v30", "s66", "s67", 0)
    e("v_pk_mul_f32 v[24:25], v[64:65], v[64:65]\nv_pk_add_f32 v[22:23], v[64:65], v[66:67]\nv_pk_fma_f32 v[24:25], v[66:67], v[66:67], v[24:25]")
    for i in range(2, 10):
        e(f"v_pk_add_f32 v[22:23], v[22:23], {R(64+2*i,2)}\nv_pk_fma_f32 v[24:25], {R(64+2*i,2)}, {R(64+2*i,2)}, v[24:25]")
    e("v_add_f32 v22, v22, v23\nv_add_f32 v23, v24, v25")
    for sw in ("v_permlane32_swap_b32", "v_permlane16_swap_b32"):
        e(f"v_mov_b32 v24, v22\nv_mov_b32 v25, v23\ns_nop 1\n{sw} v24, v22\n{sw} v25, v23\nv_pk_add_f32 v[22:23], v[22:23], v[24:25]")
    e(f"s_lshl_b32 s3, s65, 6\ns_lshl_b32 s29, s28, 7\ns_add_u32 s3, s3, s29\ns_add_u32 s3, s3, {hx(PST)}\nv_lshlrev_b32 v6, 3, v4")
    e(f"s_mov_b64 exec, 0xffff\nbuffer_store_dwordx2 v[22:23], v6, s[8:11], s3 offen {PL}\ns_mov_b64 exec, -1")
    g.stamp("c", "i2")
    e("s_barrier")
    g.stamp("c", "i2")
    assert not att
    attention(g, 0)
    e("s_waitcnt vmcnt(4)")
    attention(g, 1)

def attention(g, part):
    e = g.e
    Q, KP, KC, VP, VC = AQ, AKP, AKC, AVP, AVC
    BI, S, QM, P, VM_, O = 84, 96, 128, 136, 152, 168
    if part == 0:
        e("v_lshlrev_b32 v26, 2, v5\nv_sub_u32 v26, v4, v26\nv_mov_b32 v92, 0xf149f2ca\ns_cmp_eq_u32 s65, 0\ns_cselect_b32 s3, 1024, 16")
        for kt in range(2):
            for r in range(4):
                if kt == 0: e(f"v_add_u32 v27, s3, v26\nv_subrev_u32 v27, {r}, v27")
                else: e(f"v_subrev_u32 v27, {r}, v26")
                e(f"v_and_b32 v27, 0xfffffff1, v27\nv_cmp_eq_u32 vcc, 0, v27\ns_nop 1\nv_cndmask_b32 v{BI+4*kt+r}, v92, 0, vcc")
        return
    for h in range(4):
        lo = (0xffff << (16 * h)) & 0xffffffff; hi = (0xffff << (16 * h)) >> 32
        e(f"s_mov_b32 vcc_lo, {hx(lo)}\ns_mov_b32 vcc_hi, {hx(hi)}\ns_nop 0\nv_cndmask_b32 v{QM+2*h}, 0, v{Q+8}, vcc\nv_cndmask_b32 v{QM+2*h+1}, 0, v{Q+9}, vcc")
    e("s_nop 1")
    for h in range(4):
        for kt, K in enumerate((KP, KC)): e(f"{MF16} {R(S+8*h+4*kt)}, {R(K+2*h,2)}, {R(Q+2*h,2)}, {R(BI+4*kt)}")
    for h in range(4):
        for kt, K in enumerate((KP, KC)): e(f"{MF16} {R(S+8*h+4*kt)}, {R(K+8,2)}, {R(QM+2*h,2)}, {R(S+8*h+4*kt)}")
    for h in range(4):
        m = 0x000f000f << (4 * h)
        e(f"s_mov_b32 vcc_lo, {hx(m)}\ns_mov_b32 vcc_hi, {hx(m)}\ns_nop 0")
        for kt, V in enumerate((VP, VC)):
            e(f"v_cndmask_b32 v{VM_+4*h+2*kt}, 0, v{V+8}, vcc\nv_cndmask_b32 v{VM_+4*h+2*kt+1}, 0, v{V+9}, vcc")
    sc = (20 ** -0.5) * 1.4426950408889634
    e(f"s_mov_b32 s66, {hx(f2u(sc))}")
    for h in range(4):
        b = S + 8 * h
        e(f"v_max3_f32 v{20+h}, v{b}, v{b+1}, v{b+2}\nv_max3_f32 v{20+h}, v{20+h}, v{b+3}, v{b+4}\nv_max3_f32 v{20+h}, v{20+h}, v{b+5}, v{b+6}\nv_max_f32 v{20+h}, v{20+h}, v{b+7}")
    def red4(op):
        for sw in ("v_permlane32_swap_b32", "v_permlane16_swap_b32"):
            for h in range(4): e(f"v_mov_b32 v{24+h}, v{20+h}")
            e("s_nop 1")
            for h in range(4): e(f"{sw} v{24+h}, v{20+h}")
            for h in range(4): e(f"{op} v{20+h}, v{20+h}, v{24+h}")
    red4("v_max_f32")
    for h in range(4): e(f"v_mul_f32 v{20+h}, s66, v{20+h}")
    for h in range(4):
        for i in range(8): e(f"v_fma_f32 v{S+8*h+i}, v{S+8*h+i}, s66, -v{20+h}")
    for h in range(4):
        for i in range(8): e(f"v_exp_f32 v{S+8*h+i}, v{S+8*h+i}")
    e("s_nop 0")
    for h in range(4):
        b = S + 8 * h
        e(f"v_pk_add_f32 v[24:25], {R(b,2)}, {R(b+2,2)}\nv_pk_add_f32 v[26:27], {R(b+4,2)}, {R(b+6,2)}\nv_pk_add_f32 v[24:25], v[24:25], v[26:27]\nv_add_f32 v{20+h}, v24, v25")
    red4("v_add_f32")
    e("s_waitcnt vmcnt(0)")
    g.flag_off(F_X1, "s25", 7, "s26"); g.wsignal(1)
    g.stamp("c", "2")
    for h in range(4): e(f"v_rcp_f32 v{20+h}, v{20+h}")
    e("s_nop 0")
    for h in range(4):
        for i in range(8): e(f"v_mul_f32 v{S+8*h+i}, v{S+8*h+i}, v{20+h}")
        for i in range(4): e(f"v_cvt_pk_bf16_f32 v{P+4*h+i}, v{S+8*h+2*i}, v{S+8*h+2*i+1}")
    e("s_nop 1")
    for kt, V in enumerate((VP, VC)):
        for h in range(4):
            c = "0" if kt == 0 else R(O + 4 * h)
            e(f"{MF16} {R(O+4*h)}, {R(V+2*h,2)}, {R(P+4*h+2*kt,2)}, {c}")
    for h in range(4):
        for kt in range(2):
            c = "0" if (h == 0 and kt == 0) else R(O + 16)
            e(f"{MF16} {R(O+16)}, {R(VM_+4*h+2*kt,2)}, {R(P+4*h+2*kt,2)}, {c}")
    e(f"s_add_u32 s66, s62, {hx(OF)}\ns_add_u32 s67, s63, {hx(OF)}\ns_nop 7")
    store_tile(g, O, 84, "v30", "s66", "s67", 0)
    g.stamp("c")

def j345_consumer(g):
    e = g.e; vm = VM(g); stop = g.o.get("stop", 5)
    A3 = 64
    e(f"s_lshl_b32 s65, s38, 7\ns_lshl_b32 s3, s22, 5\ns_add_u32 s65, s65, s3\ns_lshl_b32 s68, s65, 6\ns_add_u32 s68, s68, {hx(PST)}")
    e(f"s_lshr_b32 s3, s65, 4\ns_mul_i32 s66, s3, 20480\ns_add_u32 s66, s66, {hx(X1F)}")
    rot_setup(g, "s39", 28672, "s56", "s57")
    e("v_lshlrev_b32 v6, 3, v4\nv_lshl_add_u32 v6, v5, 8, v6")
    e("s_barrier")
    g.stamp("c", "3")
    def hook(ks):
        if ks == -1:
            for i in range(4): vm.op(f"buffer_load_dwordx2 {R(12+2*i,2)}, v6, s[8:11], s68 offen offset:{(i>>1)*1024+(i&1)*128} {PL}")
        if ks == 0:
            e("s_lshl_b32 s71, s26, 2\ns_add_u32 s71, s71, s22"); g.flag_off(F_O, "s25", 8, "s71"); g.signal("v7"); vm.ops.append(None)
        if ks == 12:
            for rt in range(2):
                b = 12 + 4 * rt
                e(f"v_pk_add_f32 {R(b,2)}, {R(b,2)}, {R(b+2,2)}")
                for sw in ("v_permlane32_swap_b32", "v_permlane16_swap_b32"):
                    e(f"v_mov_b32 v{b+2}, v{b}\nv_mov_b32 v{b+3}, v{b+1}\ns_nop 1\n{sw} v{b+2}, v{b}\n{sw} v{b+3}, v{b+1}\nv_pk_add_f32 {R(b,2)}, {R(b,2)}, {R(b+2,2)}")
            e(f"s_mov_b32 s70, {hx(f2u(1.0/640))}\ns_mov_b32 s71, {hx(f2u(1e-5))}")
            for rt in range(2):
                b = 12 + 4 * rt
                e(f"v_mul_f32 v{b}, s70, v{b}\nv_mul_f32 v{b+1}, s70, v{b+1}\nv_fma_f32 v{b+1}, -v{b}, v{b}, v{b+1}\nv_max_f32 v{b+1}, 0, v{b+1}\nv_add_f32 v{b+1}, s71, v{b+1}\nv_rsq_f32 v{b+1}, v{b+1}")
    xgemm(g, vm, 20, 2, 7, A3, [120 + 4 * i for i in range(22)], [34, 208], None, xl_rot("s66", "s56", ["s20", "s21"], 2), hook=hook,
          st=("i3", (0, 1, 2, 4, 6, 8, 10, 12, 14, 17)), pre=g.o.get("pre3", 3), rotw="s57", barrier_at={g.o.get("m3", 10)} if stop >= 5 else None)
    e(f"v_lshlrev_b32 v6, 4, v5\nv_add_u32 v6, {CS3}, v6")
    for nt in range(7): e(f"ds_read_b128 {R(208+4*nt)}, v6 offset:{64*nt}")
    g.stamp("c", "i3")
    e("s_barrier")
    g.stamp("c", "3")
    X4 = [120 + 4 * i for i in range(20)]
    e(f"s_add_u32 s68, s64, {hx(OF)}")
    rot_setup(g, "s28", 20480, "s56", "s57")
    f4 = xl_rot("s68", "s56", ["s20"]); o4 = [f4(ks)[0].replace("{r}", R(X4[ks])) for ks in range(20)]
    e(f"s_lshr_b32 s58, s39, 1\ns_and_b32 s59, s39, 1\ns_lshr_b32 s3, s65, 4\ns_mul_i32 s66, s3, {TSTR}\ns_mul_i32 s3, s58, 7168\ns_add_u32 s66, s66, s3")
    e(f"s_add_u32 s66, s66, {hx(TF)}\ns_lshl_b32 s3, s59, 9\ns_add_u32 s67, s66, s3\ns_add_u32 s67, s67, 3072\ns_lshl_b32 s3, s59, 12\ns_add_u32 s66, s66, s3")
    e(f"v_mov_b32 v44, {hx(f2u(GELU_C0))}\nv_mov_b32 v45, v44\ns_mov_b32 s54, {hx(f2u(GELU_C1))}\ns_mov_b32 s55, s54")
    e("s_waitcnt lgkmcnt(0)")
    for rt in range(2):
        b = 12 + 4 * rt
        for i in range(14):
            a = A3 + rt * 28 + 2 * i
            e(f"v_pk_fma_f32 {R(a,2)}, {R(208+2*i,2)}, {R(b,2)}, {R(a,2)} op_sel_hi:[1,0,1] neg_lo:[1,0,0] neg_hi:[1,0,0]")
        for i in range(14):
            a = A3 + rt * 28 + 2 * i
            e(f"v_pk_mul_f32 {R(a,2)}, {R(a,2)}, {R(b,2)} op_sel:[0,1] op_sel_hi:[1,1]")
        for p in range(4):
            a = A3 + rt * 28 + 8 * p; n = 4 if p < 3 else 2
            gelu_pairs(g, [a + 2 * i for i in range(n)], 36)
            for i in range(n): e(f"v_cvt_pk_bf16_f32 v{a+i}, v{a+2*i}, v{a+2*i+1}")
            if p < 3: e(f"buffer_store_dwordx4 {R(a)}, v30, s[8:11], s66 offen offset:{1024*p} {PL}")
            else: e(f"buffer_store_dwordx2 {R(a,2)}, v2, s[8:11], s67 offen {PL}")
        if rt == 0: e(f"s_add_u32 s66, s66, {TSTR}\ns_add_u32 s67, s67, {TSTR}")
    g.stamp("c")
    vm.drained(); vm.ops.append("ts")
    for ks in range(20): vm.op(o4[ks], ("x", ks))
    vm.wait("ts")
    g.flag_off(F_T, "s38", 7, "s39"); g.wsignal(2)
    e("s_barrier")
    SA = 44
    xgemm(g, vm, 20, 1, 5, SA, X4, [8, 200] if g.o.get("j4wb", 0) else [64, 84, 200], None, None, pre_issued=20, rotw="s57")
    g.stamp("c")
    rot5(g)
    e(f"s_lshl_b32 s3, s27, 2\ns_add_u32 s3, s3, s22\ns_mul_i32 s68, s3, {TSTR}\ns_add_u32 s68, s68, {hx(TF)}\ns_and_b32 s58, s22, 1\ns_lshl_b32 s3, s58, 11\ns_add_u32 s68, s68, s3")
    e(f"s_add_u32 s67, s68, {13*4096}\ns_lshl_b32 s3, s59, 12\ns_add_u32 s66, s68, s3\ns_mul_i32 s69, s58, {-2*TSTR}\ns_add_u32 s69, s69, {TSTR}\ns_lshl_b32 s70, s58, 10\ns_sub_u32 s70, s67, s70")
    e(f"s_mul_i32 s3, s58, 10240\nv_add_u32 v4, s3, v30\nv_add_u32 v5, s3, v31\nv_add_u32 v6, s3, v32\ns_mul_i32 s3, s58, 5120\nv_add_u32 v7, s3, v31")
    def xl5(ks):
        pre = ""
        if ks == 26: pre = "s_mov_b32 s66, s70\n"
        elif ks and ks % 2 == 0: pre = "s_add_u32 s66, s66, 4096\ns_cmp_ge_u32 s66, s67\ns_cselect_b32 s66, s68, s66\n"
        if ks % 2 == 0: pre += "s_add_u32 s20, s66, s69\n"
        return [pre + f"buffer_load_dwordx4 {{r}}, v30, s[8:11], s66 offen offset:{(ks%2)*1024} {PL}", f"buffer_load_dwordx4 {{r}}, v30, s[8:11], s20 offen offset:{(ks%2)*1024} {PL}"]
    def wa5(ks, nt):
        off = ((ks // 2 + 5) % 7) * WSL + ((ks % 2) * 5 + nt) * 1024
        return f"v7 offset:{off & 0xffff}" if ks == 26 else f"v{4 + (off >> 16)} offset:{off & 0xffff}"
    e("s_barrier")
    g.stamp("c", "5")
    XW5 = [164 + 4 * i for i in range(18)] + [8, 12, 16, 20, 24, 36]
    xgemm(g, vm, 27, 2, 5, 64, XW5, [104, 124, 144], wa5, xl5,
          barrier_at=set(range(2, 22, 2)), st=("i5", (0, 1, 2, 4, 8, 12, 16, 20, 24)), pre=g.o.get("pre5", 3))
    e(f"s_xor_b32 s3, s22, 1\ns_mul_i32 s3, s3, 5120\nv_add_u32 v4, s3, v31\ns_mul_i32 s3, s22, 5120\nv_add_u32 v5, s3, v31\ns_nop 7")
    for nt in range(5): e(f"ds_write_b128 v4, {R(84+4*nt)} offset:{(5*WSL + nt*1024) & 0xffff}")
    e("s_waitcnt lgkmcnt(0)\ns_barrier")
    for nt in range(5): e(f"ds_read_b128 {R(8+4*nt)}, v5 offset:{(5*WSL + nt*1024) & 0xffff}")
    g.stamp("c", "5")
    unpack(g, XK, 84, 10)
    e("s_waitcnt lgkmcnt(0)")
    for i in range(10): e(f"v_pk_add_f32 {R(8+2*i,2)}, {R(8+2*i,2)}, {R(64+2*i,2)}")
    unpack(g, X1K, 64, 10)
    e(f"s_mov_b32 s54, {hx(f2u(-1.4426950408889634))}\ns_mov_b32 s55, s54")
    for i in range(10): e(f"v_pk_add_f32 {R(8+2*i,2)}, {R(8+2*i,2)}, {R(64+2*i,2)}")
    for i in range(10): e(f"v_pk_mul_f32 {R(64+2*i,2)}, {R(8+2*i,2)}, s[54:55]")
    for i in range(20): e(f"v_exp_f32 v{64+i}, v{64+i}")
    for i in range(10): e(f"v_pk_add_f32 {R(64+2*i,2)}, {R(64+2*i,2)}, 1.0 op_sel_hi:[1,0]")
    for i in range(20): e(f"v_rcp_f32 v{64+i}, v{64+i}")
    for i in range(10): e(f"v_pk_mul_f32 {R(8+2*i,2)}, {R(8+2*i,2)}, {R(SA+2*i,2)}")
    for i in range(10): e(f"v_pk_fma_f32 {R(8+2*i,2)}, {R(8+2*i,2)}, {R(64+2*i,2)}, {R(84+2*i,2)}")
    store_tile(g, 8, 128, ("v28", "v29"), "s60", "s61", 0, srd="s[16:19]", pstep=64, pol="")
    g.stamp("c")

def rot5(g):
    if g.o.get("rot", 0): g.e("s_lshr_b32 s3, s28, 1\ns_add_u32 s59, s28, s3")
    else: g.e("s_mov_b32 s59, 0")

def loader(g, kind):
    e = g.e; o = g.o; stop = o.get("stop", 5); vm = VM(g)
    wv = kind; kind = kind[0]
    e(f"L{wv}load:")
    if o.get("lprio", 0): e(f"s_setprio {o['lprio']}")
    e("s_and_b32 s58, s22, 1\nv_lshlrev_b32 v2, 4, v1")
    if kind == "x":
        e("v_lshrrev_b32 v4, 3, v1\nv_and_b32 v5, 7, v1\nv_lshrrev_b32 v6, 1, v4\nv_xor_b32 v5, v5, v6\nv_mul_u32_u24 v4, 1280, v4\nv_lshl_add_u32 v8, v5, 4, v4\nv_xor_b32 v9, 64, v8")
        e("s_lshl_b32 s3, s23, 1\ns_add_u32 s3, s3, s58\ns_mul_i32 s66, s3, 81920\ns_mov_b32 s64, 128")
    else:
        e("s_movk_i32 s60, 3840\ns_cmp_ge_u32 s24, 12\ns_cselect_b32 s60, 1280, s60\ns_cselect_b32 s3, 12, 0\ns_sub_u32 s3, s24, s3\ns_mul_i32 s61, s3, 320")
        for d in range(5):
            e(f"v_add_u32 v4, {64*d}, v1\nv_mul_u32_u24 v5, 3277, v4\nv_lshrrev_b32 v5, 16, v5\nv_mul_u32_u24 v6, 20, v5\nv_sub_u32 v6, v4, v6")
            e(f"v_lshrrev_b32 v7, 2, v5\nv_and_b32 v7, 2, v7\nv_xor_b32 v6, v6, v7\nv_mul_lo_u32 v5, v5, s60\nv_lshl_add_u32 v{8+d}, v6, 4, v5")
        e("s_lshl_b32 s3, s58, 5\ns_mul_i32 s66, s3, s60\ns_add_u32 s66, s66, s61\ns_lshl_b32 s64, s60, 6\ns_lshl_b32 s67, s60, 4")
    e("s_add_u32 s3, s23, s24\ns_mul_i32 s3, s3, 3"); g.sdiv("s29", "s3", 10, 128)
    e("s_mul_i32 s29, s29, 10\ns_sub_u32 s59, s3, s29")
    if not o.get("rot1", 1): e("s_mov_b32 s59, 0")
    e("s_mul_i32 s65, s64, 10\ns_add_u32 s63, s66, s65\ns_mul_i32 s3, s59, s64\ns_add_u32 s62, s66, s3")
    def dma(vo, srd, so, off, k, pol): vm.op(f"buffer_load_dwordx4 {vo}, {srd}, {so} offen offset:{off} {pol} lds", k)
    def adv(): e("s_add_u32 s62, s62, s64\ns_cmp_ge_u32 s62, s63\ns_cselect_b32 s3, s65, 0\ns_sub_u32 s62, s62, s3")
    def issue1(k):
        sl = (k % 4) * SLOT
        if kind == "x":
            e(f"s_lshl_b32 s3, s58, 13\ns_add_u32 s68, s3, {sl}\ns_mov_b32 s69, s62")
            for i in range(8):
                e(f"s_add_u32 m0, s68, {i*1024}"); e("s_add_u32 s69, s69, 10240" if i else "s_nop 0")
                dma(f"v{8+(i&1)}", "s[4:7]", "s69", 0, k, "")
        else:
            e(f"s_mul_i32 s3, s58, 10240\ns_add_u32 s68, s3, {sl+WOFF}\ns_add_u32 s69, s62, s67")
            for grp in range(2):
                for d in range(5):
                    e(f"s_add_u32 m0, s68, {grp*5120+d*1024}\ns_nop 0")
                    dma(f"v{8+d}", "s[12:15]", "s69" if grp else "s62", 0, k, "")
        adv()
    def only(w, fn):
        sk = g.lab("Lonly"); e(f"s_cmp_lg_u32 s22, {w}\ns_cbranch_scc1 {sk}"); fn(); e(f"{sk}:")
    PRE, PS, PLD, PC = o.get("pre1", 2), o.get("ps", 1), o.get("pld", 4), o.get("pc", 5)
    PI2, PF2 = o.get("pi2", 2), o.get("pf2", 5); PSB = o.get("psb", 7 if PI2 >= 0 else 3); sched = [int(c, 36) for c in str(o.get("sch", "x8aaaa"))[1:]]
    if wv == "x4": g.stamp("x", "i0")
    issue1(0)
    if wv == "x4":
        g.stamp("x", "i0")
        e(f"s_and_b32 s3, s2, 7\ns_lshl_b32 s3, s3, 10\ns_add_u32 s3, s3, {hx(F_PK)}\nv_add_u32 v16, s3, v2\nv_lshlrev_b32 v17, 10, v1\nv_mov_b32 v18, 1\nv_mov_b32 v15, 0\nv_mov_b32 v19, {LCNT}")
    else:
        e(f"s_sub_u32 s3, s22, 5\ns_lshl_b32 s100, s3, 8\ns_add_u32 s100, s100, s2\ns_cmp_ge_u32 s100, 740\ns_cselect_b32 s29, 256, 0\ns_sub_u32 s100, s100, s29\ns_add_u32 s100, s100, 740\ns_lshl_b32 s101, s3, 12\ns_add_u32 s101, s101, {3*SLOT if PI2 < 0 else MISC+4096}")
        if PI2 < 0: g.pk_setup(); e("s_call_b64 s[70:71], Lpk_issue"); vm.ops += ["pk"] * 4
    for k in range(1, PRE): issue1(k)
    if wv != "x4":
        if PI2 >= 0: g.pk_setup()
        for rr in range(ONES, ONES + 4): e(f"v_mov_b32 v{rr}, 0x3f803f80")
    if wv == "x4": g.stamp("x")
    e(f"s_sub_u32 s3, s22, 4\ns_mul_i32 s3, s3, 25600\ns_mul_i32 s56, s28, 102400\ns_add_u32 s56, s56, s3\ns_add_u32 s56, s56, {hx(W2P)}\nv_add_u32 v3, s3, v2")
    e(f"s_mul_i32 s57, s39, 143360\ns_add_u32 s57, s57, s3\ns_add_u32 s57, s57, {hx(W3P)}")
    todo = g.todo = []
    for (sr, r0, tag) in (("s56", 120, "w2"), ("s57", 20, "w3")):
        for q in range(25):
            todo.append(((f"s_add_u32 {sr}, {sr}, 4096\n" if q and q % 4 == 0 else "") + f"buffer_load_dwordx4 {R(r0+4*q)}, v2, s[8:11], {sr} offen offset:{(q % 4) * 1024} {PL}", tag))
    def flag(base):
        e(f"s_lshl_b32 s70, s2, 2\ns_add_u32 s70, s70, {hx(base)}\ns_mov_b64 exec, 0xff"); vm.op("buffer_store_dword v18, v17, s[8:11], s70 offen sc1"); e("s_mov_b64 exec, -1")
    for k in range(10):
        vm.wait(k)
        if k == PSB: vm.wait("pks")
        if wv == "x4" and k < 2: g.stamp("x", "i0")
        if k == PC and wv == "x4":
            vm.wait("pkc"); g.pk_check("v16", 224)
        e("s_barrier")
        if wv == "x4" and k == PS - 1: vm.op("global_load_dword v14, v15, s[50:51]", "ini")
        if wv == "x4" and k == PLD: vm.op("buffer_load_dwordx4 v[224:227], v16, s[8:11], 0 offen sc1", "pkc")
        if wv == "x4" and k == PS:
            vm.wait("ini")
            l0, l1 = g.lab("Lini"), g.lab("Linix")
            e(f"s_mov_b32 s31, 0\n{l0}:\nv_cmp_eq_u32 vcc, 0, v14\ns_cbranch_vccz {l1}\ns_add_u32 s31, s31, 1\ns_cmp_gt_u32 s31, 400000\ns_cbranch_scc1 {l1}")
            e(f"global_load_dword v14, v15, s[50:51] sc0 sc1\ns_waitcnt vmcnt(0)\ns_branch {l0}\n{l1}:")
            flag(F_PK)
        if wv == "x4" and k == PSB: flag(F_PKB); vm.ops.pop()
        if k == 0:
            for kk in range(PRE, 3 if PI2 < 0 else 4): issue1(kk)
            if wv != "x4" and PI2 < 0: vm.wait("pk"); e("s_call_b64 s[70:71], Lpk_fin"); vm.ops += ["pks"] * 8
            if wv == "x4": e("v_mov_b32 v20, 0\nv_mov_b32 v21, 0\nds_write_b64 v19, v[20:21]\nds_write_b64 v19, v[20:21] offset:8\ns_waitcnt lgkmcnt(0)")
        if k == 1 and PI2 < 0: issue1(3)
        if 1 <= k <= 6: vm.room(10); issue1(k + 3)
        if wv != "x4" and k == PI2: e("s_call_b64 s[70:71], Lpk_issue"); vm.ops += ["pk"] * 4
        if wv != "x4" and k == PF2 and PI2 >= 0: vm.wait("pk"); vm.room(8); e("s_call_b64 s[70:71], Lpk_fin"); vm.ops += ["pks"] * 8
        if k >= PC:
            for _ in range(min(sched[k - PC], len(todo))):
                vm.room(1); vm.op(*todo.pop(0))
    assert getattr(g, 'tail_ops', vm.ops) == vm.ops
    g.tail_ops = [t for t in vm.ops]
    assert PSB > PS and PF2 < 6
    if wv != "w": e("s_branch Ltail")

def loader_tail(g):
    e = g.e; o = g.o; stop = o.get("stop", 5); vm = VM(g)
    e("Ltail:\ns_sub_u32 s58, s22, 4")
    if o.get("lprio", 0): e("s_setprio 0")
    def only(w, fn):
        sk = g.lab("Lonly"); e(f"s_cmp_lg_u32 s22, {w}\ns_cbranch_scc1 {sk}"); fn(); e(f"{sk}:")
    def lin(n, ssrc, ldsbase, tag):
        e(f"s_mul_i32 s68, s58, {n*1024}\ns_add_u32 s68, s68, {ldsbase}")
        for q in range(n):
            if q % 4 == 0:
                vm.room(4)
                e(f"s_add_u32 m0, s68, {q*1024}"); e(f"s_add_u32 {ssrc}, {ssrc}, 4096" if q else "s_nop 0")
            vm.op(f"buffer_load_dwordx4 v2, s[8:11], {ssrc} offen offset:{(q % 4) * 1024} {PL} lds", tag)
    def ldreg(n, ssrc, r0, tag):
        for q in range(n):
            if q % 4 == 0:
                vm.room(4)
                if q: e(f"s_add_u32 {ssrc}, {ssrc}, 4096")
            vm.op(f"buffer_load_dwordx4 {R(r0+4*q)}, v2, s[8:11], {ssrc} offen offset:{(q % 4) * 1024} {PL}", tag)
    def wreg(n, va, off, r0):
        for q in range(n): e(f"ds_write_b128 {va}, {R(r0+4*q)} offset:{off+q*1024}")
    vm.ops = list(g.tail_ops); todo = g.todo
    assert all(t in ("w2", "w3") for t in vm.ops), vm.ops
    def some(n):
        for _ in range(min(n, len(todo))):
            vm.room(1); vm.op(*todo.pop(0))
    e(f"s_mul_i32 s67, s39, 143360\ns_add_u32 s67, s67, {hx(W3P)}")
    e("s_barrier")
    g.stamp("x")
    if stop >= 2:
        some(99)
        e("s_mul_i32 s3, s58, 10240\ns_add_u32 s69, s67, s3\ns_add_u32 s69, s69, 102400"); lin(10, "s69", 102400, "w3")
        vm.wait("w2"); g.stamp("x"); wreg(25, "v3", 0, 120); e("s_waitcnt lgkmcnt(0)")
        if o.get("inner") == 6: e("s_waitcnt vmcnt(0)"); g.stamp("x")
        def poll_h():
            e("s_and_b32 s3, s27, 1\ns_lshl_b32 s3, s3, 1\ns_add_u32 s3, s3, s25\ns_add_u32 s3, s3, 15\ns_and_b32 s67, s3, 15")
            jpoll("s67", "v_and_b32 v5, 3, v1\nv_add_u32 v5, 12, v5")
        def jpoll(other, slot):
            e(f"v_mov_b32 v4, s25\ns_mov_b32 exec_lo, 0\nv_mov_b32 v4, {other}\ns_mov_b32 exec_lo, -1\n{slot}")
            e(f"v_lshlrev_b32 v5, 2, v5\nv_lshl_add_u32 v4, v4, 7, v5\ns_and_b32 s3, s26, 3\ns_lshl_b32 s3, s3, 11\ns_add_u32 s3, s3, {hx(F_J1)}\nv_add_u32 v4, s3, v4\nv_mov_b32 v5, 1")
            g.poll("v4", "v5", "v6")
        def poll_q():
            e("s_max_u32 s67, s25, 1\ns_sub_u32 s67, s67, 1")
            jpoll("s67", "v_and_b32 v5, 15, v1\nv_min_u32 v5, 11, v5")
        def cs3():
            e("s_waitcnt vmcnt(40)")
            e(f"s_mul_i32 s69, s39, 8960\ns_add_u32 s69, s69, {hx(CSP + ((W3P-W2P)>>4))}\nv_and_b32 v4, 31, v1\nv_lshlrev_b32 v4, 4, v4\nv_lshrrev_b32 v5, 5, v1\nv_mul_u32_u24 v5, 4480, v5\nv_add_u32 v5, v5, v4")
            for i in range(10): e(f"buffer_load_dwordx4 {R(168+4*i)}, v5, s[8:11], s69 offen offset:{(448*i)} {PL}")
            e("s_waitcnt vmcnt(0)")
            for i in range(1, 10): e(f"v_pk_add_f32 v[168:169], v[168:169], {R(168+4*i,2)}\nv_pk_add_f32 v[170:171], v[170:171], {R(170+4*i,2)}")
            for r in range(4): e(f"v_mov_b32 v{172+r}, v{168+r}")
            e("s_nop 1")
            for r in range(4): e(f"v_permlane32_swap_b32 v{172+r}, v{168+r}")
            e(f"v_pk_add_f32 v[168:169], v[168:169], v[172:173]\nv_pk_add_f32 v[170:171], v[170:171], v[174:175]\nv_add_u32 v4, {CS3}, v4\nds_write_b128 v4, v[168:171]\ns_waitcnt lgkmcnt(0)")
        def pkb():
            e(f"s_and_b32 s3, s2, 7\ns_lshl_b32 s3, s3, 10\ns_add_u32 s3, s3, {hx(F_PKB)}\nv_add_u32 v16, s3, v2"); g.pk_check("v16", 224, True)
        only(5, cs3); pkb(); vm.drained()
        if o.get("wo", 2) == 2:
            e(f"s_mul_i32 s69, s28, 102400\ns_mul_i32 s3, s58, 25600\ns_add_u32 s69, s69, s3\ns_add_u32 s69, s69, {hx(WOP)}\nv_mov_b32 v4, {LCNT}\ns_mov_b32 s31, 0")
            e("Lspin:\nds_read_b32 v5, v4\ns_add_u32 s31, s31, 1\ns_cmp_gt_u32 s31, 400000\ns_cbranch_scc1 Lspinx\ns_waitcnt lgkmcnt(0)\nv_cmp_gt_u32 vcc, 4, v5\ns_cbranch_vccnz Lspin\nLspinx:")
            ldreg(25, "s69", 120, "wo")
        only(4, poll_h); g.stamp("x")
        e("s_barrier")
        def W4R(c): return 120 + 20 * (c - 2) if c < 7 else (20 + 20 * (c - 7) if c < 12 else 220)
        def adv(): e("s_add_u32 s62, s62, s64\ns_cmp_ge_u32 s62, s63\ns_cselect_b32 s3, s65, 0\ns_sub_u32 s62, s62, s3")
        C2 = 2 + o.get("nc2", 5)
        if stop >= 5:
            rot5(g)
            e(f"s_mul_i32 s66, s28, 276480\ns_mul_i32 s3, s58, 5120\ns_add_u32 s61, s66, {hx(W4P)}\ns_add_u32 s66, s61, s3\ns_movk_i32 s64, 20480\nv_add_u32 v11, s3, v2")
            e("s_mul_i32 s65, s64, 13\ns_add_u32 s63, s66, s65\ns_mul_i32 s3, s59, s64\ns_add_u32 s62, s66, s3\nv_add_u32 v12, 0x10000, v11\nv_add_u32 v13, 0x20000, v11")
            e("s_mov_b32 s56, s62"); adv(); e("s_mov_b32 s57, s62"); adv()
            e(f"s_add_u32 s61, s61, s65\ns_lshl_b32 s3, s58, 11\ns_add_u32 s60, s61, s3\nv_add_u32 v14, s3, v2\ns_and_b32 s3, s58, 1\ns_lshl_b32 s3, s3, 10\ns_add_u32 s3, s3, 8192\ns_add_u32 s61, s61, s3\nv_add_u32 v15, s3, v2")
            e(f"v_add_u32 v14, {4*WSL}, v14\nv_add_u32 v15, {4*WSL}, v15")
        only(4, poll_q)
        e("s_waitcnt vmcnt(0)\ns_barrier"); vm.drained()
        WO = o.get("wo", 2)
        if WO:
            e(f"s_mul_i32 s69, s28, 102400\ns_mul_i32 s3, s58, 25600\ns_add_u32 s69, s69, s3\ns_add_u32 s69, s69, {hx(WOP)}\ns_mov_b32 s55, s62")
            if WO == 1: ldreg(25, "s69", 120, "wo")
            C2 = 7
            for c in range(5): adv()
        elif stop >= 5:
            for c in range(2, C2):
                e("s_mov_b32 s69, s62"); ldreg(5, "s69", W4R(c), c); adv()
        e("s_barrier")
    if stop >= 3:
        wreg(25, "v3", 0, 20)
        if stop >= 5 and o.get("nc3", 5):
            e("s_waitcnt lgkmcnt(0)")
            for c in range(C2, C2 + o.get("nc3", 5)):
                e("s_mov_b32 s69, s62"); ldreg(5, "s69", W4R(c), c); adv()
            C2 += o.get("nc3", 5)
        only(4, lambda: g.pollg(F_X1, 7, 15, rb="s38")); g.stamp("x")
        e("s_waitcnt lgkmcnt(0)\ns_barrier")
        if stop >= 5:
            e("s_barrier")
            def fo(): g.pollg(F_O, 8, 63)
            only(4, fo); g.stamp("x")
            for c in range(C2, 13):
                e("s_mov_b32 s69, s62"); ldreg(5, "s69", W4R(c), c); adv()
            ldreg(2, "s60", 240, 13); ldreg(1, "s61", 248, 13)
        e("s_barrier")
    if stop >= 5:
        e(f"s_mul_i32 s69, s28, 102400\ns_mul_i32 s3, s58, 25600\ns_add_u32 s69, s69, s3\ns_add_u32 s69, s69, {hx(WOP)}")
        if WO: vm.wait("wo"); wreg(25, "v3", 0, 120)
        else: lin(25, "s69", 0, "w")
        lin(5, "s56", 5 * WSL, 0); lin(5, "s57", 6 * WSL, 1); vm.wait("w")
        g.stamp("x")
        e("s_waitcnt lgkmcnt(0)\ns_barrier")
        if WO:
            e("s_mov_b32 s62, s55")
            for c in range(2, 7):
                e("s_mov_b32 s69, s62"); ldreg(5, "s69", W4R(c), c); adv()
        def w5(c):
            if c == 13: e("ds_write_b128 v14, v[240:243]\nds_write_b128 v14, v[244:247] offset:1024\nds_write_b128 v15, v[248:251]"); return
            off = ((c + 5) % 7) * WSL
            for q in range(5):
                a = off + q * 1024
                e(f"ds_write_b128 v{11+(a>>16)}, {R(W4R(c)+4*q)} offset:{a & 0xffff}")
        def ft(): g.pollg(F_T, 7, 15)
        only(4, ft); g.stamp("x")
        vm.wait(1)
        for c in range(11):
            e(f"s_waitcnt lgkmcnt({0 if c == 10 or not o.get('lag', 1) else 15})\ns_barrier")
            if c == 0:
                for cc in range(2, 7 if not WO else 4): vm.wait(cc); w5(cc)
            if c == 1 and WO:
                for cc in range(4, 7): vm.wait(cc); w5(cc)
            if 7 <= c + 5 <= 13: w5(c + 5)
    if o.get("stamps"):
        e("s_cmp_lg_u32 s22, 4\ns_cbranch_scc1 Lend"); g.dump_stamps("x", 1)
    e("s_endpgm")

def main(opt):
    g = G(opt); e = g.e; stop = opt.get("stop", 5)
    hdr = open("cdna_kernels/" + NAME + ".s.ref").read().split("\n")
    hdr = [l for l in hdr if l.startswith(";") and "@launch" not in l]
    out = hdr + ["; @launch grid=(256,1,1) block=(512,1,1) lds=163840",
        '.amdgcn_target "amdgcn-amd-amdhsa--gfx950"', ".text", f".globl {NAME}_kernel", ".p2align 8",
        f".type {NAME}_kernel,@function", f"{NAME}_kernel:"]
    prologue(g); j1_consumer(g)
    if stop >= 2: j2_consumer(g)
    if stop >= 3: j345_consumer(g)
    if opt.get("stamps"):
        e("s_cmp_lg_u32 s22, 0\ns_cbranch_scc1 Lend"); g.dump_stamps("c", 0)
    e("Lend:\ns_endpgm")
    packer_subs(g); loader(g, "x4"); loader(g, "x5"); loader(g, "w"); loader_tail(g)
    if "ldpol" in opt: g.L = [l.replace(" sc1", (" " + opt["ldpol"]) if opt["ldpol"] != "none" else "") if ("buffer_load_dwordx" in l and "v[224:227], v16" not in l) else l for l in g.L]
    if "stpol" in opt: g.L = [l.replace(" sc1", (" " + opt["stpol"]) if opt["stpol"] != "none" else "") if ("buffer_store_dwordx" in l and "sc0" not in l) else l for l in g.L]
    out += g.L
    out += ['.section .rodata,"a"', ".p2align 6", f".amdhsa_kernel {NAME}_kernel", "  .amdhsa_next_free_vgpr 256", "  .amdhsa_next_free_sgpr 102",
        "  .amdhsa_accum_offset 256", "  .amdhsa_group_segment_fixed_size 0", "  .amdhsa_kernarg_size 88", "  .amdhsa_user_sgpr_count 2",
        "  .amdhsa_user_sgpr_kernarg_segment_ptr 1", "  .amdhsa_system_sgpr_workgroup_id_x 1", ".end_amdhsa_kernel"]
    return "\n".join(out) + "\n"

if __name__ == "__main__":
    opt = {}
    for a in sys.argv[2:]:
        k, v = a.split("=")
        opt[k] = int(v) if v.lstrip("-").isdigit() else v.replace("_", " ")
    open(sys.argv[1], "w").write(main(opt))
```

```python
import sys, struct
NAME = "recurrent_scan__sliding_local_dilated__mixer_s_mlp__prompt"
def f2u(x): return struct.unpack("<I", struct.pack("<f", x))[0]
def hx(x): return "0x%x" % (x & 0xffffffff)

QF, KF, VF, HF = 0x0, 0x280000, 0x500000, 0x780000
X1F, OF, TF = 0xA00000, 0xC80000, 0xF00000
TSTR = 57344 + int([a for a in sys.argv if a.startswith('tpad=')][0][5:]) if any(a.startswith('tpad=') for a in sys.argv) else 57344
W2P, WOP, W3P, W4P = 0x1600000, 0x16C8000, 0x1790000, 0x19C0000
STAT, PST, CNT, CSP = 0x1C00000, 0x1C10000, 0x1C40000, 0x1C80000
WS_REC = 0x2000000
STAMP_OFF = 0x8000000
C_PKB = 8
WSL = 20480
C_PK, C_H, C_QKV, C_X1, C_O, C_T = 0, 16, 32, 48, 64, 80
SLOT, WOFF, MISC = 36864, 16384, 147456
F_PK, F_J1, F_X1, F_T, F_O = CNT, CNT + 8192, CNT + 16384, CNT + 18432, CNT + 20480
F_PKB = CNT + 24576
LCNT, CS3 = MISC + 3328, MISC + 3584
PL = "sc1"

class G:
    def __init__(s, opt):
        s.L = []; s.o = opt; s.nlab = 0; s.nstamp = {}
    def e(s, t):
        for x in t.split("\n"): s.L.append("    " + x.strip() if not x.strip().endswith(":") else x.strip())
    def lab(s, p="L"):
        s.nlab += 1; return f"{p}{s.nlab}"
    def stamp(s, role, name="."):
        if not s.o.get("stamps"): return
        inner = str(s.o.get("inner", ""))
        if role == "x" and name.startswith("i") and inner != "0": return
        if role == "c" and s.nstamp.get(role, 0) > 0:
            if inner and inner not in name: return
            if not inner and name.startswith("i"): return
        i = s.nstamp.get(role, 0); s.nstamp[role] = i + 1
        assert i < 14
        s.e(f"s_memrealtime s[{72+2*i}:{73+2*i}]")
    def dump_stamps(s, role, slot):
        if not s.o.get("stamps"): return
        n = s.nstamp.get(role, 0)
        s.e(f"s_waitcnt lgkmcnt(0)\ns_add_u32 s52, s52, {hx(STAMP_OFF)}\ns_addc_u32 s53, s53, 0")
        s.e(f"s_mul_i32 s3, s2, 224\ns_add_u32 s3, s3, {slot*112}\nv_mov_b32 v2, s3\ns_mov_b64 exec, 1")
        for i in range(14):
            j = min(i, n - 1)
            s.e(f"v_mov_b32 v4, s{72+2*j}\nv_mov_b32 v5, s{73+2*j}\nglobal_store_dwordx2 v2, v[4:5], s[52:53] offset:{8*i}\ns_nop 1")
        s.e("s_mov_b64 exec, -1")
    def poll(s, vaddr, vexp, vtmp):
        l0, l1 = s.lab("Lpoll"), s.lab("Lpollx")
        s.e(f"s_mov_b32 s31, 0\n{l0}:")
        s.e(f"buffer_load_dword {vtmp}, {vaddr}, s[8:11], 0 offen {s.o.get('pollpol', 'sc1')}")
        s.e(f"s_add_u32 s31, s31, 1\ns_cmp_gt_u32 s31, 400000\ns_cbranch_scc1 {l1}")
        s.e(f"s_waitcnt vmcnt(0)\nv_cmp_lt_u32 vcc, {vtmp}, {vexp}\ns_cbranch_vccnz {l0}\n{l1}:\ns_waitcnt vmcnt(0)")
    def pollg(s, base, sh, mask, va="v4", vb="v5", vc="v6", rb="s25"):
        s.e(f"s_lshl_b32 s29, {rb}, {sh}\ns_add_u32 s29, s29, {hx(base)}\nv_and_b32 {va}, {mask}, v1\nv_lshl_add_u32 {va}, {va}, 2, s29\nv_mov_b32 {vb}, 1")
        s.poll(va, vb, vc)
    def pk_check(s, va, r, first=False):
        l0, l1, l2 = s.lab("Lpk"), s.lab("Lpkok"), s.lab("Lpkld")
        s.e("s_mov_b32 s31, 0" + (f"\ns_branch {l2}" if first else ""))
        s.e(f"{l0}:\nv_min_u32 v{r}, v{r}, v{r+1}\nv_min3_u32 v{r}, v{r}, v{r+2}, v{r+3}\nv_cmp_eq_u32 vcc, 0, v{r}\ns_cbranch_vccz {l1}\ns_add_u32 s31, s31, 1\ns_cmp_gt_u32 s31, 400000\ns_cbranch_scc1 {l1}")
        s.e(f"{l2}:\nbuffer_load_dwordx4 v[{r}:{r+3}], {va}, s[8:11], 0 offen sc1\ns_waitcnt vmcnt(0)\ns_branch {l0}\n{l1}:")
    def flag_off(s, base, srb, sh, sslot):
        s.e(f"s_lshl_b32 s70, {srb}, {sh}\ns_lshl_b32 s3, {sslot}, 2\ns_add_u32 s70, s70, s3\ns_add_u32 s70, s70, {hx(base)}")
    def signal(s, vt="v4"):
        s.e(f"v_mov_b32 {vt}, 1\ns_mov_b64 exec, 1\nbuffer_store_dword {vt}, off, s[8:11], s70 sc1\ns_mov_b64 exec, -1")
    def wsignal(s, k, rep=0, vt="v33"):
        l = s.lab("Lws")
        s.e(f"s_mov_b64 exec, 1\nv_mov_b32 v7, 1\nv_mov_b32 {vt}, {LCNT+4*k}\nds_add_rtn_u32 {vt}, {vt}, v7")
        s.e(f"s_waitcnt lgkmcnt(0)\nv_cmp_eq_u32 vcc, 3, {vt}\ns_cbranch_vccz {l}\n" + (f"s_mov_b64 exec, 15\nv_mov_b32 v7, 1\nv_lshlrev_b32 {vt}, 11, v1\nbuffer_store_dword v7, {vt}, s[8:11], s70 offen sc1" if rep else "buffer_store_dword v7, off, s[8:11], s70 sc1") + f"\n{l}:\ns_mov_b64 exec, -1")
    def pk_setup(s):
        s.e("s_mov_b32 s95, 0x20000\nv_lshrrev_b32 v236, 5, v1\nv_bfe_u32 v237, v1, 3, 2\nv_and_b32 v238, 7, v1\nv_lshlrev_b32 v238, 4, v238")
        s.e("v_lshrrev_b32 v239, 4, v1\nv_lshlrev_b32 v239, 3, v239\nv_bfe_u32 v240, v1, 2, 2\nv_add_u32 v239, v239, v240\nv_lshlrev_b32 v239, 7, v239\nv_and_b32 v240, 3, v1\nv_lshlrev_b32 v241, 2, v1\nv_lshlrev_b32 v251, 4, v1")
    def prefetch(s, vm, base, nlines, va, vd):
        s.e(f"s_lshr_b32 s3, s2, 3\ns_mul_i32 s3, s3, {nlines*128}\ns_add_u32 s3, s3, {hx(base)}\nv_lshlrev_b32 {va}, 7, v1")
        for q in range((nlines + 63) // 64):
            n = min(64, nlines - 64 * q)
            if n < 64: s.e(f"s_mov_b32 exec_lo, {hx((1 << min(n, 32)) - 1)}\ns_mov_b32 exec_hi, {hx((1 << max(n - 32, 0)) - 1)}")
            vm.op(f"buffer_load_dword {vd}, {va}, s[8:11], s3 offen", "pf")
            s.e("s_add_u32 s3, s3, 8192")
        s.e("s_mov_b64 exec, -1")
    def sdiv(s, dst, src, d, maxv):
        sh = 16; m = (1 << sh) // d + 1
        assert all((x * m) >> sh == x // d for x in range(maxv)), (d, maxv)
        s.e(f"s_mul_i32 {dst}, {src}, {m}\ns_lshr_b32 {dst}, {dst}, {sh}")
    def redg(s, v, t, op):
        s.e(f"v_mov_b32 {t}, {v}\ns_nop 1\nv_permlane32_swap_b32 {t}, {v}\n{op} {v}, {v}, {t}")
        s.e(f"v_mov_b32 {t}, {v}\ns_nop 1\nv_permlane16_swap_b32 {t}, {v}\n{op} {v}, {v}, {t}")

def R(b, n=4): return f"v[{b}:{b+n-1}]"
MF = "v_mfma_f32_16x16x32_bf16"
MF16 = "v_mfma_f32_16x16x16_bf16"
JOBS = [("J1", 10), ("J2", 5), ("J3", 10), ("J4", 5), ("J5", 14)]

def interleave(a, b):
    out = []; na, nb = len(a), len(b); j = 0
    for i, x in enumerate(a):
        out.append(x)
        while j < nb and (j + 1) * na <= (i + 1) * nb: out.append(b[j]); j += 1
    return out + b[j:]

GELU_C0 = -2 * 0.7978845608028654 * 1.4426950408889634
GELU_C1 = GELU_C0 * 0.044715
def gelu_pairs(g, regs, t0):
    c0 = R(t0 + 8, 2)
    for k in range(0, len(regs), 4):
        grp = regs[k:k + 4]
        T = [t0 + 2 * i for i in range(len(grp))]
        for y, t in zip(grp, T): g.e(f"v_pk_mul_f32 {R(t,2)}, {R(y,2)}, {R(y,2)}")
        for y, t in zip(grp, T): g.e(f"v_pk_fma_f32 {R(t,2)}, {R(t,2)}, s[54:55], {c0}")
        for y, t in zip(grp, T): g.e(f"v_pk_mul_f32 {R(t,2)}, {R(t,2)}, {R(y,2)}")
        for y, t in zip(grp, T): g.e(f"v_exp_f32 v{t}, v{t}\nv_exp_f32 v{t+1}, v{t+1}")
        if len(grp) < 2: g.e("s_nop 0")
        for y, t in zip(grp, T): g.e(f"v_pk_add_f32 {R(t,2)}, {R(t,2)}, 1.0 op_sel_hi:[1,0]")
        for y, t in zip(grp, T): g.e(f"v_rcp_f32 v{t}, v{t}\nv_rcp_f32 v{t+1}, v{t+1}")
        if len(grp) < 2: g.e("s_nop 0")
        for y, t in zip(grp, T): g.e(f"v_pk_mul_f32 {R(y,2)}, {R(y,2)}, {R(t,2)}")

def prologue(g):
    e = g.e; o = g.o
    e("s_cmp_ge_u32 s2, 256\ns_cbranch_scc1 Lend")
    g.stamp("c"); g.nstamp["x"] = g.nstamp.get("c", 0)
    e("s_load_dwordx16 s[32:47], s[0:1], 0\ns_load_dwordx4 s[48:51], s[0:1], 64\ns_load_dwordx2 s[52:53], s[0:1], 80")
    e("v_lshrrev_b32 v2, 6, v0\nv_and_b32 v1, 63, v0\ns_and_b32 s29, s2, 7\ns_lshr_b32 s30, s2, 3\nv_readfirstlane_b32 s22, v2")
    if o.get("scr"): e("s_lshr_b32 s29, s2, 5\ns_and_b32 s30, s2, 31")
    e("s_lshl_b32 s25, s29, 1\ns_lshr_b32 s3, s30, 4\ns_add_u32 s25, s25, s3\ns_and_b32 s26, s30, 15")
    e("s_lshl_b32 s27, s25, 1\ns_lshr_b32 s3, s26, 3\ns_add_u32 s27, s27, s3\ns_and_b32 s28, s26, 7")
    if o.get("map1", 3) == 3:
        e("s_lshr_b32 s23, s29, 2\ns_lshl_b32 s23, s23, 3\ns_lshr_b32 s3, s30, 2\ns_add_u32 s23, s23, s3")
        e("s_and_b32 s24, s29, 3\ns_lshl_b32 s24, s24, 2\ns_and_b32 s3, s30, 3\ns_add_u32 s24, s24, s3")
    elif o.get("map1", 3) == 2:
        e("s_lshr_b32 s23, s29, 1\ns_lshl_b32 s23, s23, 2\ns_lshr_b32 s3, s30, 3\ns_add_u32 s23, s23, s3")
        e("s_and_b32 s24, s29, 1\ns_lshl_b32 s24, s24, 3\ns_and_b32 s3, s30, 7\ns_add_u32 s24, s24, s3")
    elif o.get("map1", 3) == 1:
        e("s_lshr_b32 s23, s29, 1\ns_lshl_b32 s23, s23, 2\ns_lshr_b32 s3, s30, 3\ns_add_u32 s23, s23, s3")
        e("s_and_b32 s24, s30, 7\ns_lshl_b32 s24, s24, 1\ns_and_b32 s3, s29, 1\ns_add_u32 s24, s24, s3")
    else:
        e("s_mov_b32 s23, s25\ns_mov_b32 s24, s26")
    e("s_mov_b32 s6, 2621440\ns_mov_b32 s7, 0x20000\ns_mov_b32 s10, %s\ns_mov_b32 s11, 0x20000" % hx(WS_REC))
    e("s_mov_b32 s15, 0x20000\ns_mov_b32 s18, 2621440\ns_mov_b32 s19, 0x20000")
    e("s_waitcnt lgkmcnt(0)")
    g.stamp("c", "i0"); g.nstamp["x"] = g.nstamp.get("c", 0)
    e("s_mov_b32 s4, s32\ns_mov_b32 s5, s33\ns_mov_b32 s8, s52\ns_mov_b32 s9, s53\ns_mov_b32 s16, s48\ns_mov_b32 s17, s49")
    if o.get("map3", 0): e("s_lshr_b32 s38, s29, 1\ns_lshl_b32 s38, s38, 2\ns_lshr_b32 s3, s30, 3\ns_add_u32 s38, s38, s3\ns_and_b32 s39, s29, 1\ns_lshl_b32 s39, s39, 3\ns_add_u32 s39, s39, s28")
    else: e("s_mov_b32 s38, s25\ns_mov_b32 s39, s26")
    e("s_mov_b32 s14, 2457600\ns_mov_b32 s21, %d\ns_cmp_ge_u32 s24, 12\ns_cselect_b64 s[12:13], s[40:41], s[34:35]\ns_cselect_b32 s14, 819200, s14" % SLOT + "")
    e("s_cmp_ge_u32 s22, 6\ns_cbranch_scc1 Lwload\ns_cmp_eq_u32 s22, 5\ns_cbranch_scc1 Lx5load\ns_cmp_eq_u32 s22, 4\ns_cbranch_scc1 Lx4load")

def slot_adv(g, regs, scnt="s57"):
    g.e(f"s_add_u32 {scnt}, {scnt}, 1\ns_and_b32 {scnt}, {scnt}, 3\ns_cselect_b32 s3, s21, {hx(-3*SLOT)}")
    return [f"v_add_u32 v{r}, s3, v{r}" for r in regs]

ACC, SUM, SQ, CS, ONES = 64, 144, 160, 176, 196
def j1_consumer(g):
    e = g.e
    XA, WA, XB, WB = 200, 216, 8, 24
    if g.o.get("prio", 2): e("s_setprio 2")
    g.pk_setup()
    e("s_cmp_eq_u32 s22, 3\ns_cbranch_scc1 Lp0")
    e(f"s_lshl_b32 s100, s22, 8\ns_add_u32 s100, s100, s2\ns_cmp_ge_u32 s100, 740\ns_cselect_b32 s3, 256, 0\ns_sub_u32 s100, s100, s3\ns_lshl_b32 s101, s22, 12\ns_add_u32 s101, s101, {MISC}")
    g.stamp("c", "i0")
    e("s_call_b64 s[70:71], Lpk_issue\ns_branch Lp0x\nLp0:")
    e("s_cmp_lg_u32 s2, 0\ns_cbranch_scc1 Lp0x")
    for i in range(8, 12): e(f"v_mov_b32 v{i}, 0")
    for i in range(32): e((f"s_mov_b32 s3, {hx(CNT+1024*i)}\n" if i % 4 == 0 else "") + f"buffer_store_dwordx4 v[8:11], v251, s[8:11], s3 offen offset:{1024*(i%4)} sc0 sc1")
    e("s_waitcnt vmcnt(0)\nv_mov_b32 v4, 1\nglobal_store_dword v8, v4, s[50:51] sc0 sc1")
    if g.o.get("p0", 0):
        e("s_lshr_b32 s29, s2, 3\ns_lshr_b32 s3, s23, 3\ns_lshl_b32 s3, s3, 5\ns_add_u32 s3, s3, s29\ns_mul_i32 s30, s3, 40960")
        e("v_and_b32 v4, 31, v1\nv_mul_u32_u24 v4, 1280, v4\nv_lshrrev_b32 v5, 5, v1\nv_lshl_add_u32 v4, v5, 7, v4")
        e("s_movk_i32 s60, 3840\ns_cmp_ge_u32 s24, 12\ns_cselect_b32 s60, 1280, s60\ns_cselect_b32 s3, 12, 0\ns_sub_u32 s3, s24, s3\ns_lshr_b32 s3, s3, 2\ns_mul_i32 s61, s3, 1280")
        e("s_lshl_b32 s3, s29, 1\ns_mul_i32 s3, s3, s60\ns_add_u32 s61, s61, s3\ns_mul_i32 s62, s60, 192")
        e("v_mul_u32_u24 v5, 6554, v1\nv_lshrrev_b32 v5, 16, v5\nv_mul_u32_u24 v6, 10, v5\nv_sub_u32 v6, v1, v6")
        e("v_lshrrev_b32 v7, 1, v5\nv_and_b32 v5, 1, v5\nv_lshl_add_u32 v5, v7, 6, v5\nv_mul_lo_u32 v5, v5, s60\nv_lshl_add_u32 v5, v6, 7, v5")
        for t in ("w0", "x0", "x1", "w1", "x2", "w2", "x3", "x4", "w3"):
            q = int(t[1])
            if t[0] == "x": e(f"buffer_load_dword v8, v4, s[4:7], s30 offen offset:{256*q}")
            else:
                e("s_mov_b32 exec_hi, 0x0fffffff" if q < 3 else "s_mov_b64 exec, 0xfffff")
                e("buffer_load_dword v8, v5, s[12:15], s61 offen\ns_add_u32 s61, s61, s62\ns_mov_b64 exec, -1")
    e("Lp0x:")
    g.stamp("c", "i0"); g.stamp("c", "i0")
    e("s_lshr_b32 s58, s22, 1\ns_and_b32 s59, s22, 1\ns_xor_b32 s60, s58, s59")
    e("v_and_b32 v4, 15, v1\nv_lshrrev_b32 v5, 4, v1")
    e("s_lshl_b32 s3, s60, 2\nv_add_u32 v6, s3, v5\nv_lshrrev_b32 v7, 1, v4\nv_xor_b32 v6, v6, v7\nv_lshlrev_b32 v6, 4, v6")
    e("s_lshl_b32 s3, s58, 13\nv_lshlrev_b32 v7, 7, v4\nv_add3_u32 v2, v6, v7, s3\nv_xor_b32 v3, 64, v2")
    e("s_cmp_ge_u32 s24, 12\ns_cselect_b32 s61, 32, 40\ns_cselect_b32 s62, 8, 40\ns_cselect_b32 s63, 32, 160\ns_cselect_b32 s3, 256, 32")
    e("s_mul_i32 s63, s63, s59\ns_add_u32 s63, s63, s3")
    e("v_lshlrev_b32 v6, 3, v5\nv_bfe_u32 v7, v1, 2, 2\nv_add_u32 v6, v6, v7\nv_mul_u32_u24 v6, 320, v6")
    e("v_and_b32 v7, 3, v1\nv_and_b32 v54, 1, v5\nv_lshlrev_b32 v54, 5, v54")
    e(f"s_mul_i32 s64, s60, 10240\ns_add_u32 s64, s64, {WOFF}\ns_sub_u32 s65, {2*WOFF+10240}, s64")
    for nt in range(5):
        if nt < 4:
            e(f"s_lshl_b32 s3, s59, 2\ns_add_u32 s3, s3, {nt}\ns_mul_i32 s3, s3, s61\nv_lshlrev_b32 v55, 3, v7\nv_add_u32 v55, s3, v55")
        else:
            e("v_mul_lo_u32 v55, v7, s62\nv_add_u32 v55, s63, v55")
        e(f"v_xor_b32 v55, v55, v54\nv_add_u32 v55, v55, v6\nv_add_u32 v{44+nt}, s64, v55\nv_add_u32 v{49+nt}, s65, v55")
    for r in range(ACC, ONES): e(f"v_mov_b32 v{r}, 0")
    for r in range(ONES, ONES + 4): e(f"v_mov_b32 v{r}, 0x3f803f80")
    if not g.o.get("j1unr", 1):
        for r in range(XB, WB + 20): e(f"v_mov_b32 v{r}, 0")
    e("s_mov_b32 s57, 0\ns_mov_b32 s56, 0")
    if g.o.get("inner") == 0: e("s_memrealtime s[54:55]\ns_waitcnt vmcnt(0)\ns_memrealtime s[14:15]")
    if g.o.get("tlb", 0):
        e("s_cmp_lg_u32 s22, 3\ns_cbranch_scc1 Ltlbx\ns_lshr_b32 s3, s2, 3\ns_lshl_b32 s29, s3, 20\ns_min_u32 s30, s3, 19\ns_lshl_b32 s30, s30, 17\nv_lshlrev_b32 v56, 16, v1")
        e("s_mov_b64 exec, 0xffff\nbuffer_load_dword v57, v56, s[8:11], s29 offen sc1\ns_mov_b64 exec, 3\nbuffer_load_dword v58, v56, s[16:19], s30 offen sc1\ns_mov_b64 exec, -1\nLtlbx:")
    e("s_cmp_eq_u32 s22, 3\ns_cbranch_scc1 Lpk2b\ns_waitcnt vmcnt(0)\ns_call_b64 s[70:71], Lpk_fin\nLpk2b:")
    if g.o.get("inner") == 0: e("s_waitcnt lgkmcnt(0)\ns_mov_b64 s[82:83], s[54:55]\ns_mov_b64 s[84:85], s[14:15]"); g.nstamp["c"] += 2
    g.stamp("c", "i0")
    IMM = g.o.get("imm", 1) and g.o.get("j1unr", 1)
    if IMM:
        for i, r in enumerate([2, 3] + list(range(44, 54))): e(f"v_add_u32 v{236+i}, {2*SLOT}, v{r}")
    def reads(xa, wa0, X, W, it=0):
        L = []; o = 0
        if IMM:
            o = (it & 1) * SLOT
            if it & 2: xa += 234; wa0 += 194
        for rt in range(4): L.append(f"ds_read_b128 {R(X+4*rt)}, v{xa} offset:{o+rt*2048}")
        for nt in range(5):
            L.append(f"ds_read_b64_tr_b16 {R(W+4*nt,2)}, v{wa0+nt} offset:{o}")
            L.append(f"ds_read_b64_tr_b16 {R(W+4*nt+2,2)}, v{wa0+nt} offset:{o+1280}")
        return L
    DOT = g.o.get("dot", 0)
    def mf(X, W, vt, phaseA):
        L = []
        for nt in range(5):
            for rt in range(4):
                a, b = (R(X+4*rt), R(W+4*nt)) if vt else (R(W+4*nt), R(X+4*rt))
                L.append(f"{MF} {R(ACC+(rt*5+nt)*4)}, {a}, {b}, {R(ACC+(rt*5+nt)*4)}")
            if not phaseA and not DOT: L.append(f"{MF} {R(CS+4*nt)}, {R(ONES)}, {R(W+4*nt)}, {R(CS+4*nt)}")
        if DOT:
            V = []
            for r in range(4):
                if phaseA:
                    for rt in range(4): V += [f"v_dot2c_f32_bf16 v{SUM+4*rt}, v{X+4*rt+r}, v{ONES}", f"v_dot2c_f32_bf16 v{SQ+4*rt}, v{X+4*rt+r}, v{X+4*rt+r}"]
                else:
                    for nt in range(5): V.append(f"v_dot2c_f32_bf16 v{CS+4*nt}, v{W+4*nt+r}, v{ONES}")
            d0 = g.o.get("dot0", 4)
            per = [[] for _ in L]
            for i, v in enumerate(V): per[d0 + i * (len(L) - d0) // len(V)].append(v)
            L = ["\n".join([m] + p) for m, p in zip(L, per)]
        elif phaseA:
            for rt in range(4):
                L.append(f"{MF} {R(SUM+4*rt)}, {R(ONES)}, {R(X+4*rt)}, {R(SUM+4*rt)}")
                L.append(f"{MF} {R(SQ+4*rt)}, {R(X+4*rt)}, {R(X+4*rt)}, {R(SQ+4*rt)}")
        return L
    e("s_lshr_b32 s3, s24, 2\ns_cmp_eq_u32 s3, 2\ns_cbranch_scc1 Lj1v")
    DEN = g.o.get("j1den", 14)
    UNR = g.o.get("j1unr", 1)
    for vt in (0, 1):
        lp = "Lj1v" if vt else "Lj1n"
        e(f"{lp}:")
        mB = mf(XB, WB, vt, False); mA = mf(XA, WA, vt, True)
        for it in range(10 if UNR else 1):
            if it == g.o.get("ps", 1): e("s_waitcnt vmcnt(0)")
            if not UNR: e(f"s_cmp_eq_u32 s56, 0\ns_cbranch_scc1 {lp}w\ns_waitcnt vmcnt(0)\n{lp}w:")
            e("s_barrier")
            if vt and it == 0 and g.o.get("inner") == 1: g.nstamp["c"] -= 10
            if vt and it == 0 and g.o.get("inner") == 0: g.nstamp["c"] -= 2
            g.stamp("c", "i1" if it > 1 else "i01")
            if UNR and it == 0:
                for x in reads(2, 44, XA, WA, it): e(x)
            else:
                for x in interleave(mB[:DEN], reads(2, 44, XA, WA, it)) + mB[DEN:]: e(x)
            e("s_waitcnt lgkmcnt(0)")
            for x in interleave(mA[:DEN], reads(3, 49, XB, WB, it)): e(x)
            adv = [] if IMM else slot_adv(g, [2, 3] + list(range(44, 54)))
            for x in interleave(mA[DEN:], adv): e(x)
            e("s_waitcnt lgkmcnt(0)")
        if not UNR: e(f"s_add_u32 s56, s56, 1\ns_cmp_lt_u32 s56, 10\ns_cbranch_scc1 {lp}")
        for x in mB: e(x)
        if not vt: e("s_branch Lj1done")
    e("Lj1done:")
    g.stamp("c", "16")
    e(f"s_lshl_b32 s3, s59, 9\ns_lshl_b32 s29, s58, 8\ns_add_u32 s3, s3, s29\ns_add_u32 s3, s3, {MISC}\nv_lshlrev_b32 v6, 2, v4\nv_add_u32 v6, s3, v6")
    e(f"s_mul_i32 s3, s58, 640\ns_mul_i32 s29, s59, 320\ns_add_u32 s3, s3, s29\ns_add_u32 s3, s3, {MISC+2048}\nv_lshlrev_b32 v7, 2, v4\nv_add_u32 v7, s3, v7")
    if DOT:
        vals = [SUM + 4 * i for i in range(13)]
        for sw in ("v_permlane32_swap_b32", "v_permlane16_swap_b32"):
            for v in vals: e(f"v_mov_b32 v{v+1}, v{v}")
            for v in vals: e(f"{sw} v{v+1}, v{v}")
            for v in vals: e(f"v_add_f32 v{v}, v{v}, v{v+1}")
    else:
        e("s_mov_b32 s60, 0x22222222\ns_mov_b32 s61, s60\ns_mov_b32 s62, 0x44444444\ns_mov_b32 s63, s62\ns_mov_b32 s64, 0x88888888\ns_mov_b32 s65, s64\ns_nop 3")
        for rt in range(4):
            q = SQ + 4 * rt
            e(f"v_cndmask_b32 v{q}, v{q}, v{q+1}, s[60:61]\nv_cndmask_b32 v{q}, v{q}, v{q+2}, s[62:63]\nv_cndmask_b32 v{q}, v{q}, v{q+3}, s[64:65]")
    e("s_mov_b32 exec_lo, 0x00f0000f\ns_mov_b32 exec_hi, 0xf0000f00")
    for rt in range(4):
        e(f"ds_write_b32 v6, v{SUM+4*rt} offset:{64*rt}\nds_write_b32 v6, v{SQ+4*rt} offset:{1024+64*rt}")
    for nt in range(5): e(f"ds_write_b32 v7, v{CS+4*nt} offset:{64*nt}")
    e("s_mov_b64 exec, -1\ns_waitcnt lgkmcnt(0)\ns_barrier")
    g.stamp("c", "i6")
    e("s_lshr_b32 s61, s24, 2\ns_and_b32 s62, s24, 3")
    e(f"s_mul_i32 s60, s61, {KF}\ns_mul_i32 s3, s62, 5120\ns_add_u32 s60, s60, s3\ns_lshl_b32 s3, s59, 11\ns_add_u32 s63, s60, s3")
    e("s_lshl_b32 s3, s59, 9\ns_add_u32 s64, s60, s3\ns_add_u32 s64, s64, 4096")
    e("v_lshrrev_b32 v3, 1, v5\nv_sub_u32 v3, v5, v3\nv_lshlrev_b32 v3, 8, v3\nv_and_b32 v2, 1, v5\nv_lshlrev_b32 v2, 3, v2\nv_sub_u32 v3, v3, v2")
    e("s_lshl_b32 s65, s23, 7\ns_lshl_b32 s3, s58, 6\ns_add_u32 s65, s65, s3")
    inv = hx(f2u(1.0 / 640)); eps = hx(f2u(1e-5))
    e(f"s_mov_b32 s66, {inv}\ns_mov_b32 s67, {eps}")
    e("s_cmp_eq_u32 s61, 2\ns_cbranch_scc1 Lj1ev")
    e(f"s_lshl_b32 s3, s58, 8\ns_add_u32 s3, s3, {MISC}\nv_lshlrev_b32 v6, 2, v4\nv_add_u32 v6, s3, v6")
    e(f"s_mul_i32 s3, s59, 320\ns_add_u32 s3, s3, {MISC+2048}\nv_lshlrev_b32 v7, 4, v5\nv_add_u32 v7, s3, v7")
    for rt in range(4):
        e(f"ds_read2_b32 {R(8+4*rt,2)}, v6 offset0:{16*rt} offset1:{128+16*rt}")
        e(f"ds_read_b32 v{10+4*rt}, v6 offset:{1024+64*rt}\nds_read_b32 v{11+4*rt}, v6 offset:{1536+64*rt}")
    for nt in range(5):
        e(f"ds_read_b128 {R(144+4*nt)}, v7 offset:{64*nt}\nds_read_b128 {R(164+4*nt)}, v7 offset:{640+64*nt}")
    e("s_lshr_b32 s3, s62, 1\ns_add_u32 s3, s3, 1\ns_sub_u32 s29, 0, s3\ns_bitcmp1_b32 s62, 0\ns_cselect_b32 s3, s29, s3\ns_cmp_eq_u32 s61, 3\ns_cselect_b32 s68, s3, 0")
    e("s_add_u32 s3, s65, s68\nv_add_u32 v24, s3, v4\ns_movk_i32 s69, 0x5000")
    for rt in range(4):
        e(f"v_add_u32 v25, {16*rt}, v24\nv_and_b32 v26, 0x7ff, v25\nv_cmp_eq_u32 s[{70+0}:{71}], v25, v26" if False else
          f"v_add_u32 v25, {16*rt}, v24\nv_and_b32 v26, 0x7ff, v25\nv_cmp_eq_u32 vcc, v25, v26")
        e(f"v_lshrrev_b32 v25, 4, v26\nv_and_b32 v26, 15, v26\nv_cndmask_b32 v{32+rt}, 0, 1.0, vcc")
        e(f"v_mul_lo_u32 v25, v25, s69\nv_lshl_add_u32 v26, v5, 4, v26\nv_lshl_add_u32 v{28+rt}, v26, 4, v25")
    e("s_waitcnt lgkmcnt(0)")
    for rt in range(4):
        b = 8 + 4 * rt
        e(f"v_add_f32 v{b}, v{b}, v{b+1}\nv_add_f32 v{b+2}, v{b+2}, v{b+3}\nv_mul_f32 v{b}, s66, v{b}\nv_mul_f32 v{b+2}, s66, v{b+2}")
        e(f"v_fma_f32 v{b+2}, -v{b}, v{b}, v{b+2}\nv_max_f32 v{b+2}, 0, v{b+2}\nv_add_f32 v{b+3}, s67, v{b+2}\nv_rsq_f32 v{b+1}, v{b+3}")
    for i in range(10): e(f"v_pk_add_f32 {R(144+2*i,2)}, {R(144+2*i,2)}, {R(164+2*i,2)}")
    e("s_cmp_lg_u32 s24, 12\ns_cbranch_scc1 Lj1nost\ns_cmp_lg_u32 s59, 0\ns_cbranch_scc1 Lj1nost")
    e(f"s_lshl_b32 s3, s65, 3\ns_add_u32 s3, s3, {hx(STAT)}\nv_lshlrev_b32 v6, 3, v4\ns_mov_b64 exec, 0xffff")
    for rt in range(4): e(f"buffer_store_dwordx2 {R(8+4*rt,2)}, v6, s[8:11], s3 offen offset:{128*rt} {PL}")
    e("s_mov_b64 exec, -1\nLj1nost:")
    e("s_cmp_lg_u32 s61, 3\ns_cbranch_scc1 Lj1nh")
    for rt in range(4):
        b = 8 + 4 * rt
        e(f"v_mul_f32 v{b+3}, v{b+1}, v{b+1}\nv_fma_f32 v{b+3}, v{b+3}, v{b+2}, s67\nv_rsq_f32 v{b+3}, v{b+3}\nv_mul_f32 v{b+2}, v{b+1}, v{32+rt}\nv_mul_f32 v{b+3}, v{b+2}, v{b+3}")
        e(f"v_mov_b32 v{b+2}, v{b}\n")
    e("s_branch Lj1nh2\nLj1nh:")
    for rt in range(4):
        b = 8 + 4 * rt
        e(f"v_mov_b32 v{b+2}, v{b}\nv_mov_b32 v{b+3}, v{b+1}")
    e("Lj1nh2:")
    g.stamp("c", "i6")
    e(f"s_mov_b32 s54, {hx(f2u(GELU_C1))}\ns_mov_b32 s55, s54\nv_mov_b32 v44, {hx(f2u(GELU_C0))}\nv_mov_b32 v45, v44")
    for rt in range(4):
        b = 8 + 4 * rt
        for nt in range(5):
            for h in range(2):
                a = ACC + (rt * 5 + nt) * 4 + 2 * h
                e(f"v_pk_fma_f32 {R(a,2)}, {R(144+4*nt+2*h,2)}, {R(b+2,2)}, {R(a,2)} op_sel_hi:[1,0,1] neg_lo:[1,0,0] neg_hi:[1,0,0]")
        for nt in range(5):
            for h in range(2):
                a = ACC + (rt * 5 + nt) * 4 + 2 * h
                e(f"v_pk_mul_f32 {R(a,2)}, {R(a,2)}, {R(b+2,2)} op_sel:[0,1] op_sel_hi:[1,1]")
        sk = g.lab("Lsk")
        e(f"s_cmp_lg_u32 s61, 3\ns_cbranch_scc1 {sk}")
        gelu_pairs(g, [ACC + rt * 20 + 2 * i for i in range(10)], 36)
        e(f"{sk}:")
        if not g.o.get("late1", 0): store_tile(g, ACC + rt * 20, 200 + 12 * (rt % 2), f"v{28+rt}", "s63", "s64", 0)
    g.stamp("c", "i6")
    if g.o.get("late1", 0):
        for rt in range(4): store_tile(g, ACC + rt * 20, ACC + rt * 20, f"v{28+rt}", "s63", "s64", 0)
    e("s_branch Lj1pub")
    e("Lj1ev:")
    e(f"s_lshl_b32 s3, s58, 8\ns_add_u32 s3, s3, {MISC}\nv_lshlrev_b32 v6, 4, v5\nv_add_u32 v6, s3, v6")
    e(f"s_mul_i32 s3, s59, 320\ns_add_u32 s3, s3, {MISC+2048}\nv_lshlrev_b32 v7, 2, v4\nv_add_u32 v7, s3, v7")
    for rt in range(4):
        e(f"ds_read_b128 {R(144+16*rt)}, v6 offset:{64*rt}\nds_read_b128 {R(148+16*rt)}, v6 offset:{512+64*rt}")
        e(f"ds_read_b128 {R(152+16*rt)}, v6 offset:{1024+64*rt}\nds_read_b128 {R(156+16*rt)}, v6 offset:{1536+64*rt}")
    for nt in range(5): e(f"ds_read2_b32 {R(8+2*nt,2)}, v7 offset0:{16*nt} offset1:{160+16*nt}")
    e("s_lshr_b32 s3, s65, 4\ns_mul_i32 s3, s3, 20480\nv_lshlrev_b32 v28, 4, v1\nv_add_u32 v28, s3, v28")
    for rt in range(1, 4): e(f"v_add_u32 v{28+rt}, {20480*rt}, v28")
    e("s_waitcnt lgkmcnt(0)")
    for nt in range(5): e(f"v_add_f32 v{8+2*nt}, v{8+2*nt}, v{9+2*nt}")
    for rt in range(4):
        for r in range(4):
            m, q = 144 + 16 * rt + r, 152 + 16 * rt + r
            e(f"v_add_f32 v{m}, v{m}, v{m+4}\nv_add_f32 v{q}, v{q}, v{q+4}\nv_mul_f32 v{m}, s66, v{m}\nv_mul_f32 v{q}, s66, v{q}")
            e(f"v_fma_f32 v{q}, -v{m}, v{m}, v{q}\nv_max_f32 v{q}, 0, v{q}\nv_add_f32 v{q}, s67, v{q}\nv_rsq_f32 v{q}, v{q}")
    e("s_nop 0")
    for rt in range(4):
        for nt in range(5):
            for h in range(2):
                a = ACC + (rt * 5 + nt) * 4 + 2 * h
                e(f"v_pk_fma_f32 {R(a,2)}, {R(144+16*rt+2*h,2)}, {R(8+2*nt,2)}, {R(a,2)} op_sel_hi:[1,0,1] neg_lo:[1,0,0] neg_hi:[1,0,0]")
        for nt in range(5):
            for h in range(2):
                a = ACC + (rt * 5 + nt) * 4 + 2 * h
                e(f"v_pk_mul_f32 {R(a,2)}, {R(a,2)}, {R(152+16*rt+2*h,2)}")
        store_tile(g, ACC + rt * 20, 212 + 12 * (rt % 2), f"v{28+rt}", "s63", "s64", 0)
    e("Lj1pub:")
    g.stamp("c", "16")
    g.flag_off(F_J1, "s23", 7, "s24"); e("s_waitcnt vmcnt(0)")
    g.stamp("c", "i6")
    g.wsignal(0, 1)
    g.stamp("c", "i6")

def store_tile(g, a, t, vo, spair, ssingle, off, npair=2, srd="s[8:11]", pstep=1024, pol=PL):
    n = npair * 4 + 2
    for i in range(n): g.e(f"v_cvt_pk_bf16_f32 v{t+i}, v{a+2*i}, v{a+2*i+1}")
    vop, vos = vo if isinstance(vo, tuple) else (vo, vo)
    if spair == "s63" and vos == "v30": vos = vop = "v30 "
    for p in range(npair): g.e(f"buffer_store_dwordx4 {R(t+4*p)}, {vop}, {srd}, {spair} offen offset:{off+pstep*p} {pol}")
    if vos == "v30": vos = "v2"
    elif vos == vop: g.e(f"v_sub_u32 v2, {vop}, v3"); vos = "v2"
    g.e(f"buffer_store_dwordx2 {R(t+4*npair,2)}, {vos}, {srd}, {ssingle} offen offset:{off} {pol}")


def packer_subs(g):
    e = g.e
    e("Lpk_issue:")
    e("s_mov_b32 s91, 0\ns_movk_i32 s85, 1280\ns_cmp_ge_u32 s100, 940\ns_cbranch_scc1 Lpk_w4")
    e("s_cmp_ge_u32 s100, 740\ns_cbranch_scc1 Lpk_wo\ns_cmp_ge_u32 s100, 200\ns_cbranch_scc1 Lpk_w3")
    e(f"s_mov_b64 s[92:93], s[42:43]\ns_mov_b32 s94, 819200\ns_mov_b32 s89, 0\ns_movk_i32 s90, 100\ns_mov_b32 s3, s100\ns_mov_b32 s31, 5\ns_branch Lpk_acc10")
    e(f"Lpk_w4:\ns_mov_b64 s[92:93], s[46:47]\ns_mov_b32 s94, 2211840\ns_mov_b32 s89, {(W4P-W2P)>>10}\ns_movk_i32 s90, 270\ns_sub_u32 s3, s100, 940\ns_mov_b32 s31, 7")
    e("Lpk_acc10:"); g.sdiv("s83", "s3", 10, 600)
    e("s_mul_i32 s84, s83, 10\ns_sub_u32 s84, s3, s84\ns_lshl_b32 s86, s83, 5\ns_mov_b32 s29, 0x4210\ns_bitset1_b32 s29, 19\ns_cmp_eq_u32 s31, 5\ns_cselect_b32 s30, s29, 0x81020408\ns_mov_b32 s31, 0x00102040")
    e("s_bitcmp1_b64 s[30:31], s83\ns_cselect_b32 s87, 4, 16\ns_cselect_b32 s88, 8, 4\ns_branch Lpk_go")
    e(f"Lpk_wo:\ns_mov_b64 s[92:93], s[36:37]\ns_mov_b32 s94, 819200\ns_mov_b32 s89, {(WOP-W2P)>>10}\ns_movk_i32 s90, 100\ns_sub_u32 s3, s100, 740")
    g.sdiv("s83", "s3", 10, 600)
    e("s_mul_i32 s84, s83, 10\ns_sub_u32 s84, s3, s84"); g.sdiv("s29", "s83", 5, 64)
    e("s_mul_i32 s30, s29, 5\ns_sub_u32 s30, s83, s30\ns_mul_i32 s86, s29, 160\ns_mul_i32 s3, s30, 40\ns_cmp_eq_u32 s30, 4")
    e("s_cselect_b32 s3, 16, s3\ns_mov_b32 s87, 20\ns_cselect_b32 s88, 40, 4\ns_add_u32 s86, s86, s3\ns_branch Lpk_go")
    e(f"Lpk_w3:\ns_mov_b64 s[92:93], s[44:45]\ns_mov_b32 s94, 2211840\ns_mov_b32 s89, {(W3P-W2P)>>10}\ns_movk_i32 s90, 140\ns_mov_b32 s91, 1\ns_movk_i32 s85, 3456\ns_sub_u32 s3, s100, 200")
    g.sdiv("s83", "s3", 27, 600)
    e("s_mul_i32 s84, s83, 27\ns_sub_u32 s84, s3, s84"); g.sdiv("s29", "s83", 5, 64)
    e("s_mul_i32 s30, s29, 5\ns_sub_u32 s30, s83, s30\ns_lshl_b32 s86, s83, 5\ns_mov_b32 s87, 4\ns_mov_b32 s88, 8")
    e("Lpk_go:")
    e("v_mul_lo_u32 v242, v236, s87\nv_add_u32 v242, v242, v237\nv_mul_lo_u32 v242, v242, s85\nv_add_u32 v242, v242, v238")
    e("s_mul_i32 s86, s86, s85\ns_lshl_b32 s3, s84, 7\ns_add_u32 s86, s86, s3\ns_mul_i32 s88, s88, s85")
    for d in range(4):
        e(f"s_add_u32 m0, s101, {d*1024}\ns_nop 0\nbuffer_load_dwordx4 v242, s[92:95], s86 offen lds")
        if d < 3: e("s_add_u32 s86, s86, s88")
    for fbl in range(2):
        lw3, ldn = g.lab("Lpkd"), g.lab("Lpkd")
        e(f"s_lshl_b32 s3, s84, 1\ns_add_u32 s3, s3, {fbl}\ns_cmp_lg_u32 s91, 0\ns_cbranch_scc1 {lw3}")
        g.sdiv("s29", "s3", 5, 64)
        e("s_mul_i32 s30, s29, 5\ns_sub_u32 s30, s3, s30\ns_lshl_b32 s29, s29, 1")
        e("s_lshr_b32 s3, s30, 1\ns_and_b32 s31, s30, 1\ns_lshl_b32 s31, s31, 1\ns_cmp_eq_u32 s30, 4")
        e("s_cselect_b32 s3, 0, s3\ns_cselect_b32 s31, 4, s31\ns_cselect_b32 s86, s90, 1\ns_cselect_b32 s87, 8, 16\ns_cselect_b32 s30, 32, 8")
        e("s_add_u32 s29, s29, s3\ns_mul_i32 s29, s29, s90\ns_mul_i32 s3, s83, 5")
        e(f"s_branch {ldn}\n{lw3}:")
        g.sdiv("s29", "s3", 7, 64)
        e("s_mul_i32 s30, s29, 7\ns_sub_u32 s30, s3, s30\ns_lshl_b32 s29, s29, 1")
        e("s_lshr_b32 s3, s30, 2\ns_and_b32 s31, s30, 3\ns_lshl_b32 s31, s31, 1\ns_cmp_eq_u32 s30, 3")
        e("s_cselect_b32 s86, s90, 1\ns_mov_b32 s87, 8\ns_mov_b32 s30, 32")
        e("s_add_u32 s29, s29, s3\ns_mul_i32 s29, s29, s90\ns_mul_i32 s3, s83, 7")
        e(f"{ldn}:")
        e(f"s_add_u32 s29, s29, s3\ns_add_u32 s29, s29, s31\ns_add_u32 s{96+2*fbl}, s29, s89\ns_add_u32 s{97+2*fbl}, s{96+2*fbl}, s86")
        e(f"v_mul_lo_u32 v{243+2*fbl}, v240, s87\nv_add3_u32 v{243+2*fbl}, v{243+2*fbl}, v239, s101\nv_add_u32 v{244+2*fbl}, s30, v{243+2*fbl}")
    e("s_setpc_b64 s[70:71]")
    e("Lpk_fin:")
    for q in range(4):
        e(f"ds_read_b64_tr_b16 {R(200+4*q,2)}, v{243+q} offset:{64*(q//2)}\nds_read_b64_tr_b16 {R(202+4*q,2)}, v{243+q} offset:{64*(q//2)+512}")
    e("s_waitcnt lgkmcnt(0)")
    for q in range(4): e(f"{MF} {R(216+4*q)}, {R(ONES)}, {R(200+4*q)}, 0")
    for q in range(4):
        e(f"s_lshl_b32 s3, s{96+q}, 10\ns_add_u32 s3, s3, {hx(W2P)}\nbuffer_store_dwordx4 {R(200+4*q)}, v251, s[8:11], s3 offen {PL}")
    e("s_mov_b64 exec, 0xffff")
    for q in range(4):
        e(f"s_lshl_b32 s3, s{96+q}, 6\ns_add_u32 s3, s3, {hx(CSP)}\nbuffer_store_dword v{216+4*q}, v241, s[8:11], s3 offen {PL}")
    e("s_mov_b64 exec, -1\ns_setpc_b64 s[70:71]")

def call(g, target):
    g.e(f"s_getpc_b64 s[30:31]\ns_add_u32 s30, s30, {target}-.+0\ns_addc_u32 s31, s31, 0\ns_swappc_b64 s[20:21], s[30:31]".replace("-.+0", "@"))

class VM:
    def __init__(s, g): s.g = g; s.ops = []
    def op(s, text, tag=None): s.g.e(text); s.ops.append(tag)
    def n_after(s, tag):
        idx = [i for i, t in enumerate(s.ops) if t == tag]
        return None if not idx else len(s.ops) - 1 - idx[-1]
    def wait(s, tag):
        n = s.n_after(tag)
        if n is None: return
        assert n <= 63, n
        s.g.e(f"s_waitcnt vmcnt({n})"); s.ops = s.ops[len(s.ops) - n:]
    def room(s, k):
        if len(s.ops) + k > 60:
            n = 60 - k - 4; s.g.e(f"s_waitcnt vmcnt({n})"); s.ops = s.ops[len(s.ops) - n:]
    def drained(s): s.ops = []

def lds_ref(off):
    b = off >> 16
    return f"v{30+b} offset:{off & 0xffff}"

def xgemm(g, vm, nks, nrt, nnt, acc, XW, WB, waddr, xload, pre_issued=0, barrier_at=None, hook=None, AH=2, st=None, pre=99, rotw=None):
    e = g.e; win = len(XW) // nrt; nb = len(WB)
    def xreg(ks, rt): return XW[(ks % win) * nrt + rt]
    def issue_x(ks):
        for rt, t in enumerate(xload(ks)): vm.op(t.replace("{r}", R(xreg(ks, rt))), ("x", ks))
    def rd(ks):
        L = ["s_barrier"] if barrier_at and ks in barrier_at else []
        if rotw:
            cs = 4 * nnt * 1024; p = ""
            if ks % 4 == 0:
                if ks: p = f"s_add_u32 {rotw}, {rotw}, {cs}\ns_cmp_ge_u32 {rotw}, {5*cs}\ns_cselect_b32 {rotw}, 0, {rotw}\n"
                p += f"v_add_u32 v33, {rotw}, v30\n"
            return L + [(p if nt == 0 else "") + f"ds_read_b128 {R(WB[ks % nb]+4*nt)}, v33 offset:{((ks % 4) * nnt + nt) * 1024}" for nt in range(nnt)]
        return L + [f"ds_read_b128 {R(WB[ks % nb]+4*nt)}, {waddr(ks, nt)}" for nt in range(nnt)]
    nx = pre_issued
    while nx < min(win, nks, pre): issue_x(nx); nx += 1
    if hook: hook(-1)
    for ks in range(min(AH, nks)):
        for x in rd(ks): e(x)
    for ks in range(nks):
        vm.wait(("x", ks))
        later = min(AH - 1, nks - 1 - ks) * nnt
        e(f"s_waitcnt lgkmcnt({later})")
        if st and ks in st[1] and str(g.o.get("inner", "")) and str(g.o.get("inner")) in st[0]: g.stamp("c", st[0]); e("s_waitcnt lgkmcnt(0)")
        m = []
        for nt in range(nnt):
            for rt in range(nrt):
                a = R(acc + (rt * nnt + nt) * 4)
                m.append(f"{MF} {a}, {R(WB[ks % nb]+4*nt)}, {R(xreg(ks, rt))}, {'0' if ks == 0 else a}")
        r = rd(ks + AH) if ks + AH < nks else []
        if nb > AH:
            h = max(1, len(m) * 2 // 3)
            seq = interleave(m[:h], r) + m[h:]
        else:
            j = 0; seq = []
            if r and r[0] == "s_barrier": seq.append(r[0]); r = r[1:]
            for i, x in enumerate(m):
                seq.append(x)
                if r and (i + 1) % nrt == 0: seq.append(r[j]); j += 1
        lds = []
        if g.o.get("spread", 1):
            for _ in range(2):
                if nx < nks and nx <= ks + win - 1:
                    for rt, t in enumerate(xload(nx)): lds.append(t.replace("{r}", R(xreg(nx, rt)))); vm.ops.append(("x", nx))
                    nx += 1
            n = len(seq); out = []; jj = 0
            for i, x in enumerate(seq):
                out.append(x)
                while jj < len(lds) and (2 * jj + 1) * n <= (i + 1) * 2 * len(lds): out.append(lds[jj]); jj += 1
            seq = out + lds[jj:]
        for x in seq: e(x)
        if not g.o.get("spread", 1):
            for _ in range(2):
                if nx < nks and nx <= ks + win: issue_x(nx); nx += 1
        if hook: hook(ks)

def rot_setup(g, idx, cs, sx, sw):
    if g.o.get("rot", 0):
        g.sdiv("s3", idx, 5, 16); g.e(f"s_mul_i32 s3, s3, 5\ns_sub_u32 s3, {idx}, s3")
    else: g.e("s_mov_b32 s3, 0")
    g.e(f"s_lshl_b32 {sx}, s3, 12\ns_mul_i32 {sw}, s3, {cs}")

def xl_rot(sb, sx, st, nrt=1):
    def f(ks):
        p = ""
        if ks % 4 == 0:
            if ks: p = f"s_add_u32 {sx}, {sx}, 4096\ns_cmp_ge_u32 {sx}, 20480\ns_cselect_b32 {sx}, 0, {sx}\n"
            p += f"s_add_u32 {st[0]}, {sb}, {sx}\n"
            if nrt == 2: p += f"s_add_u32 {st[1]}, {st[0]}, 20480\n"
        return [(p if rt == 0 else "") + f"buffer_load_dwordx4 {{r}}, v30, s[8:11], {st[rt]} offen offset:{(ks % 4) * 1024} {PL}" for rt in range(nrt)]
    return f

XK, X1K = 236, 246
AQ, AKC, AKP, AVC, AVP = 34, 44, 54, 224, 8
def tile_addr(g):
    e = g.e
    e("v_and_b32 v4, 15, v1\nv_lshrrev_b32 v5, 4, v1")
    e("s_lshl_b32 s65, s27, 6\ns_lshl_b32 s3, s22, 4\ns_add_u32 s65, s65, s3")
    e("s_lshr_b32 s58, s28, 1\ns_and_b32 s59, s28, 1")
    e("v_mul_u32_u24 v28, 1280, v4\nv_lshl_add_u32 v29, v5, 3, v28\nv_lshl_add_u32 v28, v5, 4, v28")
    e("s_mul_i32 s60, s65, 1280\ns_mul_i32 s3, s58, 320\ns_add_u32 s60, s60, s3\ns_lshl_b32 s3, s59, 5\ns_add_u32 s61, s60, s3\ns_add_u32 s61, s61, 256")
    e("s_lshl_b32 s3, s59, 7\ns_add_u32 s60, s60, s3")
    e("s_lshr_b32 s64, s65, 4\ns_mul_i32 s64, s64, 20480\ns_mul_i32 s3, s58, 5120\ns_add_u32 s62, s64, s3")
    e("s_lshl_b32 s3, s59, 9\ns_add_u32 s63, s62, s3\ns_add_u32 s63, s63, 4096\ns_lshl_b32 s3, s59, 11\ns_add_u32 s62, s62, s3")
    e("v_lshlrev_b32 v30, 4, v1\nv_add_u32 v31, 0x10000, v30\nv_add_u32 v32, 0x20000, v30\nv_sub_u32 v2, v30, v3")

def unpack(g, src, dst, n):
    for i in range(n): g.e(f"v_lshlrev_b32 v{dst+2*i}, 16, v{src+i}\nv_and_b32 v{dst+2*i+1}, 0xffff0000, v{src+i}")

def xl_lin(sreg):
    def f(ks):
        pre = f"s_add_u32 {sreg}, {sreg}, 4096\n" if ks and ks % 4 == 0 else ""
        return [pre + f"buffer_load_dwordx4 {{r}}, v30, s[8:11], {sreg} offen offset:{(ks % 4) * 1024} {PL}"]
    return f

def j2_consumer(g):
    e = g.e; vm = VM(g)
    tile_addr(g)
    e(f"buffer_load_dwordx4 {R(XK)}, v28, s[4:7], s60 offen\nbuffer_load_dwordx4 {R(XK+4)}, v28, s[4:7], s60 offen offset:64\nbuffer_load_dwordx2 {R(XK+8,2)}, v29, s[4:7], s61 offen")
    e(f"s_add_u32 s66, s64, {hx(HF)}\ns_lshl_b32 s67, s65, 3\ns_add_u32 s67, s67, {hx(STAT)}\nv_lshlrev_b32 v6, 3, v4")
    e("s_cmp_eq_u32 s65, 0\ns_cselect_b32 s3, 0, 20480\ns_sub_u32 s68, s62, s3\ns_sub_u32 s69, s63, s3")
    rot_setup(g, "s28", 20480, "s56", "s57")
    g.stamp("c", "i6")
    e("s_barrier")
    g.stamp("c", "26")
    att = []
    for (rr, base, sp, ss) in ((AQ, QF, "s62", "s63"), (AKC, KF, "s62", "s63"), (AKP, KF, "s68", "s69"), (AVC, VF, "s62", "s63"), (AVP, VF, "s68", "s69")):
        att.append(f"s_add_u32 s70, {sp}, {hx(base)}\ns_add_u32 s71, {ss}, {hx(base)}\nbuffer_load_dwordx4 {R(rr)}, v30, s[8:11], s70 offen {PL}")
        att.append(f"buffer_load_dwordx4 {R(rr+4)}, v30, s[8:11], s70 offen offset:1024 {PL}")
        att.append(f"buffer_load_dwordx2 {R(rr+8,2)}, v2, s[8:11], s71 offen {PL}")
    A0 = g.o.get("att0", 5)
    def hook(ks):
        if ks == A0 - 1: vm.op(f"buffer_load_dwordx2 v[18:19], v6, s[8:11], s67 offen {PL}", "st")
        for _ in range(2):
            if ks >= g.o.get("m2", 8) - 2 and att: vm.op(att.pop(0))

    xgemm(g, vm, 20, 1, 5, 64, [84 + 4 * i for i in range(20)], [164, 184, 204], None, xl_rot("s66", "s56", ["s20"]), hook=hook,
          st=("i2", (0, 1, 4, 8, 12, 16)), pre=g.o.get("pre2", 6), rotw="s57", barrier_at={g.o.get("m2", 8)})
    g.stamp("c", "2")
    vm.wait("st")
    unpack(g, XK, 84, 10)
    e("v_mul_f32 v20, v18, v19\nv_mov_b32 v21, v19")
    for i in range(10): e(f"v_pk_add_f32 {R(64+2*i,2)}, {R(64+2*i,2)}, v[20:21] op_sel_hi:[1,0] neg_lo:[0,1] neg_hi:[0,1]")
    for i in range(10): e(f"v_pk_fma_f32 {R(64+2*i,2)}, {R(84+2*i,2)}, v[20:21], {R(64+2*i,2)} op_sel:[0,1,0] op_sel_hi:[1,1,1]")
    e(f"s_add_u32 s66, s62, {hx(X1F)}\ns_add_u32 s67, s63, {hx(X1F)}")
    store_tile(g, 64, X1K, "v30", "s66", "s67", 0)
    e("v_pk_mul_f32 v[24:25], v[64:65], v[64:65]\nv_pk_add_f32 v[22:23], v[64:65], v[66:67]\nv_pk_fma_f32 v[24:25], v[66:67], v[66:67], v[24:25]")
    for i in range(2, 10):
        e(f"v_pk_add_f32 v[22:23], v[22:23], {R(64+2*i,2)}\nv_pk_fma_f32 v[24:25], {R(64+2*i,2)}, {R(64+2*i,2)}, v[24:25]")
    e("v_add_f32 v22, v22, v23\nv_add_f32 v23, v24, v25")
    for sw in ("v_permlane32_swap_b32", "v_permlane16_swap_b32"):
        e(f"v_mov_b32 v24, v22\nv_mov_b32 v25, v23\ns_nop 1\n{sw} v24, v22\n{sw} v25, v23\nv_pk_add_f32 v[22:23], v[22:23], v[24:25]")
    e(f"s_lshl_b32 s3, s65, 6\ns_lshl_b32 s29, s28, 7\ns_add_u32 s3, s3, s29\ns_add_u32 s3, s3, {hx(PST)}\nv_lshlrev_b32 v6, 3, v4")
    e(f"s_mov_b64 exec, 0xffff\nbuffer_store_dwordx2 v[22:23], v6, s[8:11], s3 offen {PL}\ns_mov_b64 exec, -1")
    g.stamp("c", "i2")
    e("s_barrier")
    g.stamp("c", "i2")
    assert not att
    attention(g, 0)
    e("s_waitcnt vmcnt(4)")
    attention(g, 1)

def attention(g, part):
    e = g.e
    Q, KP, KC, VP, VC = AQ, AKP, AKC, AVP, AVC
    BI, S, QM, P, VM_, O = 84, 96, 128, 136, 152, 168
    if part == 0:
        e("v_lshlrev_b32 v26, 2, v5\nv_sub_u32 v26, v4, v26\nv_mov_b32 v92, 0xf149f2ca\ns_cmp_eq_u32 s65, 0\ns_cselect_b32 s3, 1024, 16")
        for kt in range(2):
            for r in range(4):
                if kt == 0: e(f"v_add_u32 v27, s3, v26\nv_subrev_u32 v27, {r}, v27")
                else: e(f"v_subrev_u32 v27, {r}, v26")
                e(f"v_and_b32 v27, 0xfffffff1, v27\nv_cmp_eq_u32 vcc, 0, v27\ns_nop 1\nv_cndmask_b32 v{BI+4*kt+r}, v92, 0, vcc")
        return
    for h in range(4):
        lo = (0xffff << (16 * h)) & 0xffffffff; hi = (0xffff << (16 * h)) >> 32
        e(f"s_mov_b32 vcc_lo, {hx(lo)}\ns_mov_b32 vcc_hi, {hx(hi)}\ns_nop 0\nv_cndmask_b32 v{QM+2*h}, 0, v{Q+8}, vcc\nv_cndmask_b32 v{QM+2*h+1}, 0, v{Q+9}, vcc")
    e("s_nop 1")
    for h in range(4):
        for kt, K in enumerate((KP, KC)): e(f"{MF16} {R(S+8*h+4*kt)}, {R(K+2*h,2)}, {R(Q+2*h,2)}, {R(BI+4*kt)}")
    for h in range(4):
        for kt, K in enumerate((KP, KC)): e(f"{MF16} {R(S+8*h+4*kt)}, {R(K+8,2)}, {R(QM+2*h,2)}, {R(S+8*h+4*kt)}")
    for h in range(4):
        m = 0x000f000f << (4 * h)
        e(f"s_mov_b32 vcc_lo, {hx(m)}\ns_mov_b32 vcc_hi, {hx(m)}\ns_nop 0")
        for kt, V in enumerate((VP, VC)):
            e(f"v_cndmask_b32 v{VM_+4*h+2*kt}, 0, v{V+8}, vcc\nv_cndmask_b32 v{VM_+4*h+2*kt+1}, 0, v{V+9}, vcc")
    sc = (20 ** -0.5) * 1.4426950408889634
    e(f"s_mov_b32 s66, {hx(f2u(sc))}")
    for h in range(4):
        b = S + 8 * h
        e(f"v_max3_f32 v{20+h}, v{b}, v{b+1}, v{b+2}\nv_max3_f32 v{20+h}, v{20+h}, v{b+3}, v{b+4}\nv_max3_f32 v{20+h}, v{20+h}, v{b+5}, v{b+6}\nv_max_f32 v{20+h}, v{20+h}, v{b+7}")
    def red4(op):
        for sw in ("v_permlane32_swap_b32", "v_permlane16_swap_b32"):
            for h in range(4): e(f"v_mov_b32 v{24+h}, v{20+h}")
            e("s_nop 1")
            for h in range(4): e(f"{sw} v{24+h}, v{20+h}")
            for h in range(4): e(f"{op} v{20+h}, v{20+h}, v{24+h}")
    red4("v_max_f32")
    for h in range(4): e(f"v_mul_f32 v{20+h}, s66, v{20+h}")
    for h in range(4):
        for i in range(8): e(f"v_fma_f32 v{S+8*h+i}, v{S+8*h+i}, s66, -v{20+h}")
    for h in range(4):
        for i in range(8): e(f"v_exp_f32 v{S+8*h+i}, v{S+8*h+i}")
    e("s_nop 0")
    for h in range(4):
        b = S + 8 * h
        e(f"v_pk_add_f32 v[24:25], {R(b,2)}, {R(b+2,2)}\nv_pk_add_f32 v[26:27], {R(b+4,2)}, {R(b+6,2)}\nv_pk_add_f32 v[24:25], v[24:25], v[26:27]\nv_add_f32 v{20+h}, v24, v25")
    red4("v_add_f32")
    e("s_waitcnt vmcnt(0)")
    g.flag_off(F_X1, "s25", 7, "s26"); g.wsignal(1)
    g.stamp("c", "2")
    for h in range(4): e(f"v_rcp_f32 v{20+h}, v{20+h}")
    e("s_nop 0")
    for h in range(4):
        for i in range(8): e(f"v_mul_f32 v{S+8*h+i}, v{S+8*h+i}, v{20+h}")
        for i in range(4): e(f"v_cvt_pk_bf16_f32 v{P+4*h+i}, v{S+8*h+2*i}, v{S+8*h+2*i+1}")
    e("s_nop 1")
    for kt, V in enumerate((VP, VC)):
        for h in range(4):
            c = "0" if kt == 0 else R(O + 4 * h)
            e(f"{MF16} {R(O+4*h)}, {R(V+2*h,2)}, {R(P+4*h+2*kt,2)}, {c}")
    for h in range(4):
        for kt in range(2):
            c = "0" if (h == 0 and kt == 0) else R(O + 16)
            e(f"{MF16} {R(O+16)}, {R(VM_+4*h+2*kt,2)}, {R(P+4*h+2*kt,2)}, {c}")
    e(f"s_add_u32 s66, s62, {hx(OF)}\ns_add_u32 s67, s63, {hx(OF)}\ns_nop 7")
    store_tile(g, O, 84, "v30", "s66", "s67", 0)
    g.stamp("c")

def j345_consumer(g):
    e = g.e; vm = VM(g); stop = g.o.get("stop", 5)
    A3 = 64
    e(f"s_lshl_b32 s65, s38, 7\ns_lshl_b32 s3, s22, 5\ns_add_u32 s65, s65, s3\ns_lshl_b32 s68, s65, 6\ns_add_u32 s68, s68, {hx(PST)}")
    e(f"s_lshr_b32 s3, s65, 4\ns_mul_i32 s66, s3, 20480\ns_add_u32 s66, s66, {hx(X1F)}")
    rot_setup(g, "s39", 28672, "s56", "s57")
    e("v_lshlrev_b32 v6, 3, v4\nv_lshl_add_u32 v6, v5, 8, v6")
    e("s_barrier")
    g.stamp("c", "3")
    def hook(ks):
        if ks == -1:
            for i in range(4): vm.op(f"buffer_load_dwordx2 {R(12+2*i,2)}, v6, s[8:11], s68 offen offset:{(i>>1)*1024+(i&1)*128} {PL}")
        if ks == 0:
            e("s_lshl_b32 s71, s26, 2\ns_add_u32 s71, s71, s22"); g.flag_off(F_O, "s25", 8, "s71"); g.signal("v7"); vm.ops.append(None)
        if ks == 12:
            for rt in range(2):
                b = 12 + 4 * rt
                e(f"v_pk_add_f32 {R(b,2)}, {R(b,2)}, {R(b+2,2)}")
                for sw in ("v_permlane32_swap_b32", "v_permlane16_swap_b32"):
                    e(f"v_mov_b32 v{b+2}, v{b}\nv_mov_b32 v{b+3}, v{b+1}\ns_nop 1\n{sw} v{b+2}, v{b}\n{sw} v{b+3}, v{b+1}\nv_pk_add_f32 {R(b,2)}, {R(b,2)}, {R(b+2,2)}")
            e(f"s_mov_b32 s70, {hx(f2u(1.0/640))}\ns_mov_b32 s71, {hx(f2u(1e-5))}")
            for rt in range(2):
                b = 12 + 4 * rt
                e(f"v_mul_f32 v{b}, s70, v{b}\nv_mul_f32 v{b+1}, s70, v{b+1}\nv_fma_f32 v{b+1}, -v{b}, v{b}, v{b+1}\nv_max_f32 v{b+1}, 0, v{b+1}\nv_add_f32 v{b+1}, s71, v{b+1}\nv_rsq_f32 v{b+1}, v{b+1}")
    xgemm(g, vm, 20, 2, 7, A3, [120 + 4 * i for i in range(22)], [34, 208], None, xl_rot("s66", "s56", ["s20", "s21"], 2), hook=hook,
          st=("i3", (0, 1, 2, 4, 6, 8, 10, 12, 14, 17)), pre=g.o.get("pre3", 3), rotw="s57", barrier_at={g.o.get("m3", 10)} if stop >= 5 else None)
    e(f"v_lshlrev_b32 v6, 4, v5\nv_add_u32 v6, {CS3}, v6")
    for nt in range(7): e(f"ds_read_b128 {R(208+4*nt)}, v6 offset:{64*nt}")
    g.stamp("c", "i3")
    e("s_barrier")
    g.stamp("c", "3")
    X4 = [120 + 4 * i for i in range(20)]
    e(f"s_add_u32 s68, s64, {hx(OF)}")
    rot_setup(g, "s28", 20480, "s56", "s57")
    f4 = xl_rot("s68", "s56", ["s20"]); o4 = [f4(ks)[0].replace("{r}", R(X4[ks])) for ks in range(20)]
    e(f"s_lshr_b32 s58, s39, 1\ns_and_b32 s59, s39, 1\ns_lshr_b32 s3, s65, 4\ns_mul_i32 s66, s3, {TSTR}\ns_mul_i32 s3, s58, 7168\ns_add_u32 s66, s66, s3")
    e(f"s_add_u32 s66, s66, {hx(TF)}\ns_lshl_b32 s3, s59, 9\ns_add_u32 s67, s66, s3\ns_add_u32 s67, s67, 3072\ns_lshl_b32 s3, s59, 12\ns_add_u32 s66, s66, s3")
    e(f"v_mov_b32 v44, {hx(f2u(GELU_C0))}\nv_mov_b32 v45, v44\ns_mov_b32 s54, {hx(f2u(GELU_C1))}\ns_mov_b32 s55, s54")
    e("s_waitcnt lgkmcnt(0)")
    for rt in range(2):
        b = 12 + 4 * rt
        for i in range(14):
            a = A3 + rt * 28 + 2 * i
            e(f"v_pk_fma_f32 {R(a,2)}, {R(208+2*i,2)}, {R(b,2)}, {R(a,2)} op_sel_hi:[1,0,1] neg_lo:[1,0,0] neg_hi:[1,0,0]")
        for i in range(14):
            a = A3 + rt * 28 + 2 * i
            e(f"v_pk_mul_f32 {R(a,2)}, {R(a,2)}, {R(b,2)} op_sel:[0,1] op_sel_hi:[1,1]")
        for p in range(4):
            a = A3 + rt * 28 + 8 * p; n = 4 if p < 3 else 2
            gelu_pairs(g, [a + 2 * i for i in range(n)], 36)
            for i in range(n): e(f"v_cvt_pk_bf16_f32 v{a+i}, v{a+2*i}, v{a+2*i+1}")
            if p < 3: e(f"buffer_store_dwordx4 {R(a)}, v30, s[8:11], s66 offen offset:{1024*p} {PL}")
            else: e(f"buffer_store_dwordx2 {R(a,2)}, v2, s[8:11], s67 offen {PL}")
        if rt == 0: e(f"s_add_u32 s66, s66, {TSTR}\ns_add_u32 s67, s67, {TSTR}")
    g.stamp("c")
    vm.drained(); vm.ops.append("ts")
    for ks in range(20): vm.op(o4[ks], ("x", ks))
    vm.wait("ts")
    g.flag_off(F_T, "s38", 7, "s39"); g.wsignal(2)
    e("s_barrier")
    SA = 44
    xgemm(g, vm, 20, 1, 5, SA, X4, [8, 200] if g.o.get("j4wb", 0) else [64, 84, 200], None, None, pre_issued=20, rotw="s57")
    g.stamp("c")
    rot5(g)
    e(f"s_lshl_b32 s3, s27, 2\ns_add_u32 s3, s3, s22\ns_mul_i32 s68, s3, {TSTR}\ns_add_u32 s68, s68, {hx(TF)}\ns_and_b32 s58, s22, 1\ns_lshl_b32 s3, s58, 11\ns_add_u32 s68, s68, s3")
    e(f"s_add_u32 s67, s68, {13*4096}\ns_lshl_b32 s3, s59, 12\ns_add_u32 s66, s68, s3\ns_mul_i32 s69, s58, {-2*TSTR}\ns_add_u32 s69, s69, {TSTR}\ns_lshl_b32 s70, s58, 10\ns_sub_u32 s70, s67, s70")
    e(f"s_mul_i32 s3, s58, 10240\nv_add_u32 v4, s3, v30\nv_add_u32 v5, s3, v31\nv_add_u32 v6, s3, v32\ns_mul_i32 s3, s58, 5120\nv_add_u32 v7, s3, v31")
    def xl5(ks):
        pre = ""
        if ks == 26: pre = "s_mov_b32 s66, s70\n"
        elif ks and ks % 2 == 0: pre = "s_add_u32 s66, s66, 4096\ns_cmp_ge_u32 s66, s67\ns_cselect_b32 s66, s68, s66\n"
        if ks % 2 == 0: pre += "s_add_u32 s20, s66, s69\n"
        return [pre + f"buffer_load_dwordx4 {{r}}, v30, s[8:11], s66 offen offset:{(ks%2)*1024} {PL}", f"buffer_load_dwordx4 {{r}}, v30, s[8:11], s20 offen offset:{(ks%2)*1024} {PL}"]
    def wa5(ks, nt):
        off = ((ks // 2 + 5) % 7) * WSL + ((ks % 2) * 5 + nt) * 1024
        return f"v7 offset:{off & 0xffff}" if ks == 26 else f"v{4 + (off >> 16)} offset:{off & 0xffff}"
    e("s_barrier")
    g.stamp("c", "5")
    XW5 = [164 + 4 * i for i in range(18)] + [8, 12, 16, 20, 24, 36]
    xgemm(g, vm, 27, 2, 5, 64, XW5, [104, 124, 144], wa5, xl5,
          barrier_at=set(range(2, 22, 2)), st=("i5", (0, 1, 2, 4, 8, 12, 16, 20, 24)), pre=g.o.get("pre5", 3))
    e(f"s_xor_b32 s3, s22, 1\ns_mul_i32 s3, s3, 5120\nv_add_u32 v4, s3, v31\ns_mul_i32 s3, s22, 5120\nv_add_u32 v5, s3, v31\ns_nop 7")
    for nt in range(5): e(f"ds_write_b128 v4, {R(84+4*nt)} offset:{(5*WSL + nt*1024) & 0xffff}")
    e("s_waitcnt lgkmcnt(0)\ns_barrier")
    for nt in range(5): e(f"ds_read_b128 {R(8+4*nt)}, v5 offset:{(5*WSL + nt*1024) & 0xffff}")
    g.stamp("c", "5")
    unpack(g, XK, 84, 10)
    e("s_waitcnt lgkmcnt(0)")
    for i in range(10): e(f"v_pk_add_f32 {R(8+2*i,2)}, {R(8+2*i,2)}, {R(64+2*i,2)}")
    unpack(g, X1K, 64, 10)
    e(f"s_mov_b32 s54, {hx(f2u(-1.4426950408889634))}\ns_mov_b32 s55, s54")
    for i in range(10): e(f"v_pk_add_f32 {R(8+2*i,2)}, {R(8+2*i,2)}, {R(64+2*i,2)}")
    for i in range(10): e(f"v_pk_mul_f32 {R(64+2*i,2)}, {R(8+2*i,2)}, s[54:55]")
    for i in range(20): e(f"v_exp_f32 v{64+i}, v{64+i}")
    for i in range(10): e(f"v_pk_add_f32 {R(64+2*i,2)}, {R(64+2*i,2)}, 1.0 op_sel_hi:[1,0]")
    for i in range(20): e(f"v_rcp_f32 v{64+i}, v{64+i}")
    for i in range(10): e(f"v_pk_mul_f32 {R(8+2*i,2)}, {R(8+2*i,2)}, {R(SA+2*i,2)}")
    for i in range(10): e(f"v_pk_fma_f32 {R(8+2*i,2)}, {R(8+2*i,2)}, {R(64+2*i,2)}, {R(84+2*i,2)}")
    store_tile(g, 8, 128, ("v28", "v29"), "s60", "s61", 0, srd="s[16:19]", pstep=64, pol="")
    g.stamp("c")

def rot5(g):
    if g.o.get("rot", 0): g.e("s_lshr_b32 s3, s28, 1\ns_add_u32 s59, s28, s3")
    else: g.e("s_mov_b32 s59, 0")

def loader(g, kind):
    e = g.e; o = g.o; stop = o.get("stop", 5); vm = VM(g)
    wv = kind; kind = kind[0]
    e(f"L{wv}load:")
    if o.get("lprio", 0): e(f"s_setprio {o['lprio']}")
    e("s_and_b32 s58, s22, 1\nv_lshlrev_b32 v2, 4, v1")
    if kind == "x":
        e("v_lshrrev_b32 v4, 3, v1\nv_and_b32 v5, 7, v1\nv_lshrrev_b32 v6, 1, v4\nv_xor_b32 v5, v5, v6\nv_mul_u32_u24 v4, 1280, v4\nv_lshl_add_u32 v8, v5, 4, v4\nv_xor_b32 v9, 64, v8")
        e("s_lshl_b32 s3, s23, 1\ns_add_u32 s3, s3, s58\ns_mul_i32 s66, s3, 81920\ns_mov_b32 s64, 128")
    else:
        e("s_movk_i32 s60, 3840\ns_cmp_ge_u32 s24, 12\ns_cselect_b32 s60, 1280, s60\ns_cselect_b32 s3, 12, 0\ns_sub_u32 s3, s24, s3\ns_mul_i32 s61, s3, 320")
        for d in range(5):
            e(f"v_add_u32 v4, {64*d}, v1\nv_mul_u32_u24 v5, 3277, v4\nv_lshrrev_b32 v5, 16, v5\nv_mul_u32_u24 v6, 20, v5\nv_sub_u32 v6, v4, v6")
            e(f"v_lshrrev_b32 v7, 2, v5\nv_and_b32 v7, 2, v7\nv_xor_b32 v6, v6, v7\nv_mul_lo_u32 v5, v5, s60\nv_lshl_add_u32 v{8+d}, v6, 4, v5")
        e("s_lshl_b32 s3, s58, 5\ns_mul_i32 s66, s3, s60\ns_add_u32 s66, s66, s61\ns_lshl_b32 s64, s60, 6\ns_lshl_b32 s67, s60, 4")
    e("s_add_u32 s3, s23, s24\ns_mul_i32 s3, s3, 3"); g.sdiv("s29", "s3", 10, 128)
    e("s_mul_i32 s29, s29, 10\ns_sub_u32 s59, s3, s29")
    if not o.get("rot1", 1): e("s_mov_b32 s59, 0")
    if o.get("rot1", 1) == 2: e("s_add_u32 s3, s23, s24\ns_and_b32 s3, s3, 1\ns_mul_i32 s59, s3, 5")
    if o.get("rot1", 1) == 4: e("s_add_u32 s3, s23, s24\ns_and_b32 s3, s3, 3\ns_mul_i32 s3, s3, 5\ns_lshr_b32 s59, s3, 1")
    e("s_mul_i32 s65, s64, 10\ns_add_u32 s63, s66, s65\ns_mul_i32 s3, s59, s64\ns_add_u32 s62, s66, s3")
    def dma(vo, srd, so, off, k, pol): vm.op(f"buffer_load_dwordx4 {vo}, {srd}, {so} offen offset:{off} {pol} lds", k)
    def adv(): e("s_add_u32 s62, s62, s64\ns_cmp_ge_u32 s62, s63\ns_cselect_b32 s3, s65, 0\ns_sub_u32 s62, s62, s3")
    def issue1(k):
        sl = (k % 4) * SLOT
        if kind == "x":
            e(f"s_lshl_b32 s3, s58, 13\ns_add_u32 s68, s3, {sl}\ns_mov_b32 s69, s62")
            for i in range(8):
                e(f"s_add_u32 m0, s68, {i*1024}"); e("s_add_u32 s69, s69, 10240" if i else "s_nop 0")
                dma(f"v{8+(i&1)}", "s[4:7]", "s69", 0, k, "")
        else:
            e(f"s_mul_i32 s3, s58, 10240\ns_add_u32 s68, s3, {sl+WOFF}\ns_add_u32 s69, s62, s67")
            for grp in range(2):
                for d in range(5):
                    e(f"s_add_u32 m0, s68, {grp*5120+d*1024}\ns_nop 0")
                    dma(f"v{8+d}", "s[12:15]", "s69" if grp else "s62", 0, k, "")
        adv()
    def only(w, fn):
        sk = g.lab("Lonly"); e(f"s_cmp_lg_u32 s22, {w}\ns_cbranch_scc1 {sk}"); fn(); e(f"{sk}:")
    PRE, PS, PLD, PC = o.get("pre1", 2), o.get("ps", 1), o.get("pld", 4), o.get("pc", 5)
    PI2, PF2 = o.get("pi2", 2), o.get("pf2", 5); PSB = o.get("psb", 7 if PI2 >= 0 else 3); sched = [int(c, 36) for c in str(o.get("sch", "x8aaaa"))[1:]]
    if wv == "x4": g.stamp("x", "i0")
    issue1(0)
    if wv == "x4":
        g.stamp("x", "i0")
        e(f"s_and_b32 s3, s2, 7\ns_lshl_b32 s3, s3, 10\ns_add_u32 s3, s3, {hx(F_PK)}\nv_add_u32 v16, s3, v2\nv_lshlrev_b32 v17, 10, v1\nv_mov_b32 v18, 1\nv_mov_b32 v15, 0\nv_mov_b32 v19, {LCNT}")
    else:
        e(f"s_sub_u32 s3, s22, 5\ns_lshl_b32 s100, s3, 8\ns_add_u32 s100, s100, s2\ns_cmp_ge_u32 s100, 740\ns_cselect_b32 s29, 256, 0\ns_sub_u32 s100, s100, s29\ns_add_u32 s100, s100, 740\ns_lshl_b32 s101, s3, 12\ns_add_u32 s101, s101, {3*SLOT if PI2 < 0 else MISC+4096}")
        if PI2 < 0: g.pk_setup(); e("s_call_b64 s[70:71], Lpk_issue"); vm.ops += ["pk"] * 4
    for k in range(1, PRE): issue1(k)
    if wv != "x4":
        if PI2 >= 0: g.pk_setup()
        for rr in range(ONES, ONES + 4): e(f"v_mov_b32 v{rr}, 0x3f803f80")
    if wv == "x4": g.stamp("x")
    e(f"s_sub_u32 s3, s22, 4\ns_mul_i32 s3, s3, 25600\ns_mul_i32 s56, s28, 102400\ns_add_u32 s56, s56, s3\ns_add_u32 s56, s56, {hx(W2P)}\nv_add_u32 v3, s3, v2")
    e(f"s_mul_i32 s57, s39, 143360\ns_add_u32 s57, s57, s3\ns_add_u32 s57, s57, {hx(W3P)}")
    todo = g.todo = []
    for (sr, r0, tag) in (("s56", 120, "w2"), ("s57", 20, "w3")):
        for q in range(25):
            todo.append(((f"s_add_u32 {sr}, {sr}, 4096\n" if q and q % 4 == 0 else "") + f"buffer_load_dwordx4 {R(r0+4*q)}, v2, s[8:11], {sr} offen offset:{(q % 4) * 1024} {PL}", tag))
    def flag(base):
        e(f"s_lshl_b32 s70, s2, 2\ns_add_u32 s70, s70, {hx(base)}\ns_mov_b64 exec, 0xff"); vm.op("buffer_store_dword v18, v17, s[8:11], s70 offen sc1"); e("s_mov_b64 exec, -1")
    for k in range(10):
        vm.wait(k)
        if k == PSB: vm.wait("pks")
        if wv == "x4" and k < 2: g.stamp("x", "i0")
        if k == PC and wv == "x4":
            vm.wait("pkc"); g.pk_check("v16", 224)
        e("s_barrier")
        if wv == "x4" and k == PS - 1: vm.op("global_load_dword v14, v15, s[50:51]", "ini")
        if wv == "x4" and k == PLD: vm.op("buffer_load_dwordx4 v[224:227], v16, s[8:11], 0 offen sc1", "pkc")
        if wv == "x4" and k == PS:
            vm.wait("ini")
            l0, l1 = g.lab("Lini"), g.lab("Linix")
            e(f"s_mov_b32 s31, 0\n{l0}:\nv_cmp_eq_u32 vcc, 0, v14\ns_cbranch_vccz {l1}\ns_add_u32 s31, s31, 1\ns_cmp_gt_u32 s31, 400000\ns_cbranch_scc1 {l1}")
            e(f"global_load_dword v14, v15, s[50:51] sc0 sc1\ns_waitcnt vmcnt(0)\ns_branch {l0}\n{l1}:")
            flag(F_PK)
        if wv == "x4" and k == PSB: flag(F_PKB); vm.ops.pop()
        if k == 0:
            for kk in range(PRE, 3 if PI2 < 0 else 4): issue1(kk)
            if wv != "x4" and PI2 < 0: vm.wait("pk"); e("s_call_b64 s[70:71], Lpk_fin"); vm.ops += ["pks"] * 8
            if wv == "x4": e("v_mov_b32 v20, 0\nv_mov_b32 v21, 0\nds_write_b64 v19, v[20:21]\nds_write_b64 v19, v[20:21] offset:8\ns_waitcnt lgkmcnt(0)")
        if k == 1 and PI2 < 0: issue1(3)
        if 1 <= k <= 6: vm.room(10); issue1(k + 3)
        if wv != "x4" and k == PI2: e("s_call_b64 s[70:71], Lpk_issue"); vm.ops += ["pk"] * 4
        if wv != "x4" and k == PF2 and PI2 >= 0: vm.wait("pk"); vm.room(8); e("s_call_b64 s[70:71], Lpk_fin"); vm.ops += ["pks"] * 8
        if k >= PC:
            for _ in range(min(sched[k - PC], len(todo))):
                vm.room(1); vm.op(*todo.pop(0))
    assert getattr(g, 'tail_ops', vm.ops) == vm.ops
    g.tail_ops = [t for t in vm.ops]
    assert PSB > PS and PF2 < 6
    if wv != "w": e("s_branch Ltail")

def loader_tail(g):
    e = g.e; o = g.o; stop = o.get("stop", 5); vm = VM(g)
    e("Ltail:\ns_sub_u32 s58, s22, 4")
    if o.get("lprio", 0): e("s_setprio 0")
    def only(w, fn):
        sk = g.lab("Lonly"); e(f"s_cmp_lg_u32 s22, {w}\ns_cbranch_scc1 {sk}"); fn(); e(f"{sk}:")
    def lin(n, ssrc, ldsbase, tag):
        e(f"s_mul_i32 s68, s58, {n*1024}\ns_add_u32 s68, s68, {ldsbase}")
        for q in range(n):
            if q % 4 == 0:
                vm.room(4)
                e(f"s_add_u32 m0, s68, {q*1024}"); e(f"s_add_u32 {ssrc}, {ssrc}, 4096" if q else "s_nop 0")
            vm.op(f"buffer_load_dwordx4 v2, s[8:11], {ssrc} offen offset:{(q % 4) * 1024} {PL} lds", tag)
    def ldreg(n, ssrc, r0, tag):
        for q in range(n):
            if q % 4 == 0:
                vm.room(4)
                if q: e(f"s_add_u32 {ssrc}, {ssrc}, 4096")
            vm.op(f"buffer_load_dwordx4 {R(r0+4*q)}, v2, s[8:11], {ssrc} offen offset:{(q % 4) * 1024} {PL}", tag)
    def wreg(n, va, off, r0):
        for q in range(n): e(f"ds_write_b128 {va}, {R(r0+4*q)} offset:{off+q*1024}")
    vm.ops = list(g.tail_ops); todo = g.todo
    assert all(t in ("w2", "w3") for t in vm.ops), vm.ops
    def some(n):
        for _ in range(min(n, len(todo))):
            vm.room(1); vm.op(*todo.pop(0))
    e(f"s_mul_i32 s67, s39, 143360\ns_add_u32 s67, s67, {hx(W3P)}")
    e("s_barrier")
    g.stamp("x")
    if stop >= 2:
        some(99)
        e("s_mul_i32 s3, s58, 10240\ns_add_u32 s69, s67, s3\ns_add_u32 s69, s69, 102400"); lin(10, "s69", 102400, "w3")
        vm.wait("w2"); g.stamp("x"); wreg(25, "v3", 0, 120); e("s_waitcnt lgkmcnt(0)")
        if o.get("inner") == 6: e("s_waitcnt vmcnt(0)"); g.stamp("x")
        def poll_h():
            e("s_and_b32 s3, s27, 1\ns_lshl_b32 s3, s3, 1\ns_add_u32 s3, s3, s25\ns_add_u32 s3, s3, 15\ns_and_b32 s67, s3, 15")
            jpoll("s67", "v_and_b32 v5, 3, v1\nv_add_u32 v5, 12, v5")
        def jpoll(other, slot):
            e(f"v_mov_b32 v4, s25\ns_mov_b32 exec_lo, 0\nv_mov_b32 v4, {other}\ns_mov_b32 exec_lo, -1\n{slot}")
            e(f"v_lshlrev_b32 v5, 2, v5\nv_lshl_add_u32 v4, v4, 7, v5\ns_and_b32 s3, s26, 3\ns_lshl_b32 s3, s3, 11\ns_add_u32 s3, s3, {hx(F_J1)}\nv_add_u32 v4, s3, v4\nv_mov_b32 v5, 1")
            g.poll("v4", "v5", "v6")
        def poll_q():
            e("s_max_u32 s67, s25, 1\ns_sub_u32 s67, s67, 1")
            jpoll("s67", "v_and_b32 v5, 15, v1\nv_min_u32 v5, 11, v5")
        def cs3():
            e("s_waitcnt vmcnt(40)")
            e(f"s_mul_i32 s69, s39, 8960\ns_add_u32 s69, s69, {hx(CSP + ((W3P-W2P)>>4))}\nv_and_b32 v4, 31, v1\nv_lshlrev_b32 v4, 4, v4\nv_lshrrev_b32 v5, 5, v1\nv_mul_u32_u24 v5, 4480, v5\nv_add_u32 v5, v5, v4")
            for i in range(10): e(f"buffer_load_dwordx4 {R(168+4*i)}, v5, s[8:11], s69 offen offset:{(448*i)} {PL}")
            e("s_waitcnt vmcnt(0)")
            for i in range(1, 10): e(f"v_pk_add_f32 v[168:169], v[168:169], {R(168+4*i,2)}\nv_pk_add_f32 v[170:171], v[170:171], {R(170+4*i,2)}")
            for r in range(4): e(f"v_mov_b32 v{172+r}, v{168+r}")
            e("s_nop 1")
            for r in range(4): e(f"v_permlane32_swap_b32 v{172+r}, v{168+r}")
            e(f"v_pk_add_f32 v[168:169], v[168:169], v[172:173]\nv_pk_add_f32 v[170:171], v[170:171], v[174:175]\nv_add_u32 v4, {CS3}, v4\nds_write_b128 v4, v[168:171]\ns_waitcnt lgkmcnt(0)")
        def pkb():
            e(f"s_and_b32 s3, s2, 7\ns_lshl_b32 s3, s3, 10\ns_add_u32 s3, s3, {hx(F_PKB)}\nv_add_u32 v16, s3, v2"); g.pk_check("v16", 224, True)
        only(5, cs3); pkb(); vm.drained()
        if o.get("wo", 2) == 2:
            e(f"s_mul_i32 s69, s28, 102400\ns_mul_i32 s3, s58, 25600\ns_add_u32 s69, s69, s3\ns_add_u32 s69, s69, {hx(WOP)}\nv_mov_b32 v4, {LCNT}\ns_mov_b32 s31, 0")
            e("Lspin:\nds_read_b32 v5, v4\ns_add_u32 s31, s31, 1\ns_cmp_gt_u32 s31, 400000\ns_cbranch_scc1 Lspinx\ns_waitcnt lgkmcnt(0)\nv_cmp_gt_u32 vcc, 4, v5\ns_cbranch_vccnz Lspin\nLspinx:")
            ldreg(25, "s69", 120, "wo")
        only(4, poll_h); g.stamp("x")
        e("s_barrier")
        def W4R(c): return 120 + 20 * (c - 2) if c < 7 else (20 + 20 * (c - 7) if c < 12 else 220)
        def adv(): e("s_add_u32 s62, s62, s64\ns_cmp_ge_u32 s62, s63\ns_cselect_b32 s3, s65, 0\ns_sub_u32 s62, s62, s3")
        C2 = 2 + o.get("nc2", 5)
        if stop >= 5:
            rot5(g)
            e(f"s_mul_i32 s66, s28, 276480\ns_mul_i32 s3, s58, 5120\ns_add_u32 s61, s66, {hx(W4P)}\ns_add_u32 s66, s61, s3\ns_movk_i32 s64, 20480\nv_add_u32 v11, s3, v2")
            e("s_mul_i32 s65, s64, 13\ns_add_u32 s63, s66, s65\ns_mul_i32 s3, s59, s64\ns_add_u32 s62, s66, s3\nv_add_u32 v12, 0x10000, v11\nv_add_u32 v13, 0x20000, v11")
            e("s_mov_b32 s56, s62"); adv(); e("s_mov_b32 s57, s62"); adv()
            e(f"s_add_u32 s61, s61, s65\ns_lshl_b32 s3, s58, 11\ns_add_u32 s60, s61, s3\nv_add_u32 v14, s3, v2\ns_and_b32 s3, s58, 1\ns_lshl_b32 s3, s3, 10\ns_add_u32 s3, s3, 8192\ns_add_u32 s61, s61, s3\nv_add_u32 v15, s3, v2")
            e(f"v_add_u32 v14, {4*WSL}, v14\nv_add_u32 v15, {4*WSL}, v15")
        only(4, poll_q)
        e("s_waitcnt vmcnt(0)\ns_barrier"); vm.drained()
        WO = o.get("wo", 2)
        if WO:
            e(f"s_mul_i32 s69, s28, 102400\ns_mul_i32 s3, s58, 25600\ns_add_u32 s69, s69, s3\ns_add_u32 s69, s69, {hx(WOP)}\ns_mov_b32 s55, s62")
            if WO == 1: ldreg(25, "s69", 120, "wo")
            C2 = 7
            for c in range(5): adv()
        elif stop >= 5:
            for c in range(2, C2):
                e("s_mov_b32 s69, s62"); ldreg(5, "s69", W4R(c), c); adv()
        e("s_barrier")
    if stop >= 3:
        wreg(25, "v3", 0, 20)
        if stop >= 5 and o.get("nc3", 5):
            e("s_waitcnt lgkmcnt(0)")
            for c in range(C2, C2 + o.get("nc3", 5)):
                e("s_mov_b32 s69, s62"); ldreg(5, "s69", W4R(c), c); adv()
            C2 += o.get("nc3", 5)
        only(4, lambda: g.pollg(F_X1, 7, 15, rb="s38")); g.stamp("x")
        e("s_waitcnt lgkmcnt(0)\ns_barrier")
        if stop >= 5:
            e("s_barrier")
            def fo(): g.pollg(F_O, 8, 63)
            only(4, fo); g.stamp("x")
            for c in range(C2, 13):
                e("s_mov_b32 s69, s62"); ldreg(5, "s69", W4R(c), c); adv()
            ldreg(2, "s60", 240, 13); ldreg(1, "s61", 248, 13)
        e("s_barrier")
    if stop >= 5:
        e(f"s_mul_i32 s69, s28, 102400\ns_mul_i32 s3, s58, 25600\ns_add_u32 s69, s69, s3\ns_add_u32 s69, s69, {hx(WOP)}")
        if WO: vm.wait("wo"); wreg(25, "v3", 0, 120)
        else: lin(25, "s69", 0, "w")
        lin(5, "s56", 5 * WSL, 0); lin(5, "s57", 6 * WSL, 1); vm.wait("w")
        g.stamp("x")
        e("s_waitcnt lgkmcnt(0)\ns_barrier")
        if WO:
            e("s_mov_b32 s62, s55")
            for c in range(2, 7):
                e("s_mov_b32 s69, s62"); ldreg(5, "s69", W4R(c), c); adv()
        def w5(c):
            if c == 13: e("ds_write_b128 v14, v[240:243]\nds_write_b128 v14, v[244:247] offset:1024\nds_write_b128 v15, v[248:251]"); return
            off = ((c + 5) % 7) * WSL
            for q in range(5):
                a = off + q * 1024
                e(f"ds_write_b128 v{11+(a>>16)}, {R(W4R(c)+4*q)} offset:{a & 0xffff}")
        def ft(): g.pollg(F_T, 7, 15)
        only(4, ft); g.stamp("x")
        vm.wait(1)
        for c in range(11):
            e(f"s_waitcnt lgkmcnt({0 if c == 10 or not o.get('lag', 1) else 15})\ns_barrier")
            if c == 0:
                for cc in range(2, 7 if not WO else 4): vm.wait(cc); w5(cc)
            if c == 1 and WO:
                for cc in range(4, 7): vm.wait(cc); w5(cc)
            if 7 <= c + 5 <= 13: w5(c + 5)
    if o.get("stamps"):
        e("s_cmp_lg_u32 s22, 4\ns_cbranch_scc1 Lend"); g.dump_stamps("x", 1)
    e("s_endpgm")

def main(opt):
    g = G(opt); e = g.e; stop = opt.get("stop", 5)
    hdr = open("cdna_kernels/" + NAME + ".s.ref").read().split("\n")
    hdr = [l for l in hdr if l.startswith(";") and "@launch" not in l]
    out = hdr + ["; @launch grid=(256,1,1) block=(512,1,1) lds=163840",
        '.amdgcn_target "amdgcn-amd-amdhsa--gfx950"', ".text", f".globl {NAME}_kernel", ".p2align 8",
        f".type {NAME}_kernel,@function", f"{NAME}_kernel:"]
    prologue(g); j1_consumer(g)
    if stop >= 2: j2_consumer(g)
    if stop >= 3: j345_consumer(g)
    if opt.get("stamps"):
        e("s_cmp_lg_u32 s22, 0\ns_cbranch_scc1 Lend"); g.dump_stamps("c", 0)
    e("Lend:\ns_endpgm")
    packer_subs(g); loader(g, "x4"); loader(g, "x5"); loader(g, "w"); loader_tail(g)
    if "ldpol" in opt: g.L = [l.replace(" sc1", (" " + opt["ldpol"]) if opt["ldpol"] != "none" else "") if ("buffer_load_dwordx" in l and "v[224:227], v16" not in l) else l for l in g.L]
    if "stpol" in opt: g.L = [l.replace(" sc1", (" " + opt["stpol"]) if opt["stpol"] != "none" else "") if ("buffer_store_dwordx" in l and "sc0" not in l) else l for l in g.L]
    out += g.L
    out += ['.section .rodata,"a"', ".p2align 6", f".amdhsa_kernel {NAME}_kernel", "  .amdhsa_next_free_vgpr 256", "  .amdhsa_next_free_sgpr 102",
        "  .amdhsa_accum_offset 256", "  .amdhsa_group_segment_fixed_size 0", "  .amdhsa_kernarg_size 88", "  .amdhsa_user_sgpr_count 2",
        "  .amdhsa_user_sgpr_kernarg_segment_ptr 1", "  .amdhsa_system_sgpr_workgroup_id_x 1", ".end_amdhsa_kernel"]
    return "\n".join(out) + "\n"

if __name__ == "__main__":
    opt = {}
    for a in sys.argv[2:]:
        k, v = a.split("=")
        opt[k] = int(v) if v.lstrip("-").isdigit() else v.replace("_", " ")
    open(sys.argv[1], "w").write(main(opt))
```

```python
import sys, struct
NAME = "recurrent_scan__sliding_local_dilated__mixer_s_mlp__prompt"
def f2u(x): return struct.unpack("<I", struct.pack("<f", x))[0]
def hx(x): return "0x%x" % (x & 0xffffffff)

QF, KF, VF, HF = 0x0, 0x280000, 0x500000, 0x780000
X1F, OF, TF = 0xA00000, 0xC80000, 0xF00000
TSTR = 57344 + int([a for a in sys.argv if a.startswith('tpad=')][0][5:]) if any(a.startswith('tpad=') for a in sys.argv) else 57344
W2P, WOP, W3P, W4P = 0x1600000, 0x16C8000, 0x1790000, 0x19C0000
STAT, PST, CNT, CSP = 0x1C00000, 0x1C10000, 0x1C40000, 0x1C80000
WS_REC = 0x2000000
STAMP_OFF = 0x8000000
C_PKB = 8
WSL = 20480
C_PK, C_H, C_QKV, C_X1, C_O, C_T = 0, 16, 32, 48, 64, 80
SLOT, WOFF, MISC = 36864, 16384, 147456
F_PK, F_J1, F_X1, F_T, F_O = CNT, CNT + 8192, CNT + 16384, CNT + 18432, CNT + 20480
F_PKB = CNT + 24576
LCNT, CS3 = MISC + 3328, MISC + 3584
PL = "sc1"

class G:
    def __init__(s, opt):
        s.L = []; s.o = opt; s.nlab = 0; s.nstamp = {}
    def e(s, t):
        for x in t.split("\n"): s.L.append("    " + x.strip() if not x.strip().endswith(":") else x.strip())
    def lab(s, p="L"):
        s.nlab += 1; return f"{p}{s.nlab}"
    def stamp(s, role, name="."):
        if not s.o.get("stamps"): return
        inner = str(s.o.get("inner", ""))
        if role == "x" and name.startswith("i") and inner != "0": return
        if role == "c" and s.nstamp.get(role, 0) > 0:
            if inner and inner not in name: return
            if not inner and name.startswith("i"): return
        i = s.nstamp.get(role, 0); s.nstamp[role] = i + 1
        assert i < 14
        s.e(f"s_memrealtime s[{72+2*i}:{73+2*i}]")
    def dump_stamps(s, role, slot):
        if not s.o.get("stamps"): return
        n = s.nstamp.get(role, 0)
        s.e(f"s_waitcnt lgkmcnt(0)\ns_add_u32 s52, s52, {hx(STAMP_OFF)}\ns_addc_u32 s53, s53, 0")
        s.e(f"s_mul_i32 s3, s2, 224\ns_add_u32 s3, s3, {slot*112}\nv_mov_b32 v2, s3\ns_mov_b64 exec, 1")
        for i in range(14):
            j = min(i, n - 1)
            s.e(f"v_mov_b32 v4, s{72+2*j}\nv_mov_b32 v5, s{73+2*j}\nglobal_store_dwordx2 v2, v[4:5], s[52:53] offset:{8*i}\ns_nop 1")
        s.e("s_mov_b64 exec, -1")
    def poll(s, vaddr, vexp, vtmp):
        l0, l1 = s.lab("Lpoll"), s.lab("Lpollx")
        s.e(f"s_mov_b32 s31, 0\n{l0}:")
        s.e(f"buffer_load_dword {vtmp}, {vaddr}, s[8:11], 0 offen {s.o.get('pollpol', 'sc1')}")
        s.e(f"s_add_u32 s31, s31, 1\ns_cmp_gt_u32 s31, 400000\ns_cbranch_scc1 {l1}")
        s.e(f"s_waitcnt vmcnt(0)\nv_cmp_lt_u32 vcc, {vtmp}, {vexp}\ns_cbranch_vccnz {l0}\n{l1}:\ns_waitcnt vmcnt(0)")
    def pollg(s, base, sh, mask, va="v4", vb="v5", vc="v6", rb="s25"):
        s.e(f"s_lshl_b32 s29, {rb}, {sh}\ns_add_u32 s29, s29, {hx(base)}\nv_and_b32 {va}, {mask}, v1\nv_lshl_add_u32 {va}, {va}, 2, s29\nv_mov_b32 {vb}, 1")
        s.poll(va, vb, vc)
    def pk_check(s, va, r, first=False):
        l0, l1, l2 = s.lab("Lpk"), s.lab("Lpkok"), s.lab("Lpkld")
        s.e("s_mov_b32 s31, 0" + (f"\ns_branch {l2}" if first else ""))
        s.e(f"{l0}:\nv_min_u32 v{r}, v{r}, v{r+1}\nv_min3_u32 v{r}, v{r}, v{r+2}, v{r+3}\nv_cmp_eq_u32 vcc, 0, v{r}\ns_cbranch_vccz {l1}\ns_add_u32 s31, s31, 1\ns_cmp_gt_u32 s31, 400000\ns_cbranch_scc1 {l1}")
        s.e(f"{l2}:\nbuffer_load_dwordx4 v[{r}:{r+3}], {va}, s[8:11], 0 offen sc1\ns_waitcnt vmcnt(0)\ns_branch {l0}\n{l1}:")
    def flag_off(s, base, srb, sh, sslot):
        s.e(f"s_lshl_b32 s70, {srb}, {sh}\ns_lshl_b32 s3, {sslot}, 2\ns_add_u32 s70, s70, s3\ns_add_u32 s70, s70, {hx(base)}")
    def signal(s, vt="v4"):
        s.e(f"v_mov_b32 {vt}, 1\ns_mov_b64 exec, 1\nbuffer_store_dword {vt}, off, s[8:11], s70 sc1\ns_mov_b64 exec, -1")
    def wsignal(s, k, rep=0, vt="v33"):
        l = s.lab("Lws")
        s.e(f"s_mov_b64 exec, 1\nv_mov_b32 v7, 1\nv_mov_b32 {vt}, {LCNT+4*k}\nds_add_rtn_u32 {vt}, {vt}, v7")
        s.e(f"s_waitcnt lgkmcnt(0)\nv_cmp_eq_u32 vcc, 3, {vt}\ns_cbranch_vccz {l}\n" + (f"s_mov_b64 exec, 15\nv_mov_b32 v7, 1\nv_lshlrev_b32 {vt}, 11, v1\nbuffer_store_dword v7, {vt}, s[8:11], s70 offen sc1" if rep else "buffer_store_dword v7, off, s[8:11], s70 sc1") + f"\n{l}:\ns_mov_b64 exec, -1")
    def pk_setup(s):
        s.e("s_mov_b32 s95, 0x20000\nv_lshrrev_b32 v236, 5, v1\nv_bfe_u32 v237, v1, 3, 2\nv_and_b32 v238, 7, v1\nv_lshlrev_b32 v238, 4, v238")
        s.e("v_lshrrev_b32 v239, 4, v1\nv_lshlrev_b32 v239, 3, v239\nv_bfe_u32 v240, v1, 2, 2\nv_add_u32 v239, v239, v240\nv_lshlrev_b32 v239, 7, v239\nv_and_b32 v240, 3, v1\nv_lshlrev_b32 v241, 2, v1\nv_lshlrev_b32 v251, 4, v1")
    def prefetch(s, vm, base, nlines, va, vd):
        s.e(f"s_lshr_b32 s3, s2, 3\ns_mul_i32 s3, s3, {nlines*128}\ns_add_u32 s3, s3, {hx(base)}\nv_lshlrev_b32 {va}, 7, v1")
        for q in range((nlines + 63) // 64):
            n = min(64, nlines - 64 * q)
            if n < 64: s.e(f"s_mov_b32 exec_lo, {hx((1 << min(n, 32)) - 1)}\ns_mov_b32 exec_hi, {hx((1 << max(n - 32, 0)) - 1)}")
            vm.op(f"buffer_load_dword {vd}, {va}, s[8:11], s3 offen", "pf")
            s.e("s_add_u32 s3, s3, 8192")
        s.e("s_mov_b64 exec, -1")
    def sdiv(s, dst, src, d, maxv):
        sh = 16; m = (1 << sh) // d + 1
        assert all((x * m) >> sh == x // d for x in range(maxv)), (d, maxv)
        s.e(f"s_mul_i32 {dst}, {src}, {m}\ns_lshr_b32 {dst}, {dst}, {sh}")
    def redg(s, v, t, op):
        s.e(f"v_mov_b32 {t}, {v}\ns_nop 1\nv_permlane32_swap_b32 {t}, {v}\n{op} {v}, {v}, {t}")
        s.e(f"v_mov_b32 {t}, {v}\ns_nop 1\nv_permlane16_swap_b32 {t}, {v}\n{op} {v}, {v}, {t}")

def R(b, n=4): return f"v[{b}:{b+n-1}]"
MF = "v_mfma_f32_16x16x32_bf16"
MF16 = "v_mfma_f32_16x16x16_bf16"
JOBS = [("J1", 10), ("J2", 5), ("J3", 10), ("J4", 5), ("J5", 14)]

def interleave(a, b):
    out = []; na, nb = len(a), len(b); j = 0
    for i, x in enumerate(a):
        out.append(x)
        while j < nb and (j + 1) * na <= (i + 1) * nb: out.append(b[j]); j += 1
    return out + b[j:]

GELU_C0 = -2 * 0.7978845608028654 * 1.4426950408889634
GELU_C1 = GELU_C0 * 0.044715
def gelu_pairs(g, regs, t0):
    c0 = R(t0 + 8, 2)
    for k in range(0, len(regs), 4):
        grp = regs[k:k + 4]
        T = [t0 + 2 * i for i in range(len(grp))]
        for y, t in zip(grp, T): g.e(f"v_pk_mul_f32 {R(t,2)}, {R(y,2)}, {R(y,2)}")
        for y, t in zip(grp, T): g.e(f"v_pk_fma_f32 {R(t,2)}, {R(t,2)}, s[54:55], {c0}")
        for y, t in zip(grp, T): g.e(f"v_pk_mul_f32 {R(t,2)}, {R(t,2)}, {R(y,2)}")
        for y, t in zip(grp, T): g.e(f"v_exp_f32 v{t}, v{t}\nv_exp_f32 v{t+1}, v{t+1}")
        if len(grp) < 2: g.e("s_nop 0")
        for y, t in zip(grp, T): g.e(f"v_pk_add_f32 {R(t,2)}, {R(t,2)}, 1.0 op_sel_hi:[1,0]")
        for y, t in zip(grp, T): g.e(f"v_rcp_f32 v{t}, v{t}\nv_rcp_f32 v{t+1}, v{t+1}")
        if len(grp) < 2: g.e("s_nop 0")
        for y, t in zip(grp, T): g.e(f"v_pk_mul_f32 {R(y,2)}, {R(y,2)}, {R(t,2)}")

def prologue(g):
    e = g.e; o = g.o
    e("s_cmp_ge_u32 s2, 256\ns_cbranch_scc1 Lend")
    g.stamp("c"); g.nstamp["x"] = g.nstamp.get("c", 0)
    e("s_load_dwordx16 s[32:47], s[0:1], 0\ns_load_dwordx4 s[48:51], s[0:1], 64\ns_load_dwordx2 s[52:53], s[0:1], 80")
    e("v_lshrrev_b32 v2, 6, v0\nv_and_b32 v1, 63, v0\ns_and_b32 s29, s2, 7\ns_lshr_b32 s30, s2, 3\nv_readfirstlane_b32 s22, v2")
    if o.get("scr"): e("s_lshr_b32 s29, s2, 5\ns_and_b32 s30, s2, 31")
    e("s_lshl_b32 s25, s29, 1\ns_lshr_b32 s3, s30, 4\ns_add_u32 s25, s25, s3\ns_and_b32 s26, s30, 15")
    e("s_lshl_b32 s27, s25, 1\ns_lshr_b32 s3, s26, 3\ns_add_u32 s27, s27, s3\ns_and_b32 s28, s26, 7")
    if o.get("map1", 3) == 3:
        e("s_lshr_b32 s23, s29, 2\ns_lshl_b32 s23, s23, 3\ns_lshr_b32 s3, s30, 2\ns_add_u32 s23, s23, s3")
        e("s_and_b32 s24, s29, 3\ns_lshl_b32 s24, s24, 2\ns_and_b32 s3, s30, 3\ns_add_u32 s24, s24, s3")
    elif o.get("map1", 3) == 2:
        e("s_lshr_b32 s23, s29, 1\ns_lshl_b32 s23, s23, 2\ns_lshr_b32 s3, s30, 3\ns_add_u32 s23, s23, s3")
        e("s_and_b32 s24, s29, 1\ns_lshl_b32 s24, s24, 3\ns_and_b32 s3, s30, 7\ns_add_u32 s24, s24, s3")
    elif o.get("map1", 3) == 1:
        e("s_lshr_b32 s23, s29, 1\ns_lshl_b32 s23, s23, 2\ns_lshr_b32 s3, s30, 3\ns_add_u32 s23, s23, s3")
        e("s_and_b32 s24, s30, 7\ns_lshl_b32 s24, s24, 1\ns_and_b32 s3, s29, 1\ns_add_u32 s24, s24, s3")
    else:
        e("s_mov_b32 s23, s25\ns_mov_b32 s24, s26")
    e("s_mov_b32 s6, 2621440\ns_mov_b32 s7, 0x20000\ns_mov_b32 s10, %s\ns_mov_b32 s11, 0x20000" % hx(WS_REC))
    e("s_mov_b32 s15, 0x20000\ns_mov_b32 s18, 2621440\ns_mov_b32 s19, 0x20000")
    e("s_waitcnt lgkmcnt(0)")
    g.stamp("c", "i0"); g.nstamp["x"] = g.nstamp.get("c", 0)
    e("s_mov_b32 s4, s32\ns_mov_b32 s5, s33\ns_mov_b32 s8, s52\ns_mov_b32 s9, s53\ns_mov_b32 s16, s48\ns_mov_b32 s17, s49")
    if o.get("map3", 0): e("s_lshr_b32 s38, s29, 1\ns_lshl_b32 s38, s38, 2\ns_lshr_b32 s3, s30, 3\ns_add_u32 s38, s38, s3\ns_and_b32 s39, s29, 1\ns_lshl_b32 s39, s39, 3\ns_add_u32 s39, s39, s28")
    else: e("s_mov_b32 s38, s25\ns_mov_b32 s39, s26")
    e("s_mov_b32 s14, 2457600\ns_mov_b32 s21, %d\ns_cmp_ge_u32 s24, 12\ns_cselect_b64 s[12:13], s[40:41], s[34:35]\ns_cselect_b32 s14, 819200, s14" % SLOT + "")
    e("s_cmp_ge_u32 s22, 6\ns_cbranch_scc1 Lwload\ns_cmp_eq_u32 s22, 5\ns_cbranch_scc1 Lx5load\ns_cmp_eq_u32 s22, 4\ns_cbranch_scc1 Lx4load")

def slot_adv(g, regs, scnt="s57"):
    g.e(f"s_add_u32 {scnt}, {scnt}, 1\ns_and_b32 {scnt}, {scnt}, 3\ns_cselect_b32 s3, s21, {hx(-3*SLOT)}")
    return [f"v_add_u32 v{r}, s3, v{r}" for r in regs]

ACC, SUM, SQ, CS, ONES = 64, 144, 160, 176, 196
def j1_consumer(g):
    e = g.e
    XA, WA, XB, WB = 200, 216, 8, 24
    if g.o.get("prio", 2): e("s_setprio 2")
    g.pk_setup()
    e("s_cmp_eq_u32 s22, 3\ns_cbranch_scc1 Lp0")
    e(f"s_lshl_b32 s100, s22, 8\ns_add_u32 s100, s100, s2\ns_cmp_ge_u32 s100, 740\ns_cselect_b32 s3, 256, 0\ns_sub_u32 s100, s100, s3\ns_lshl_b32 s101, s22, 12\ns_add_u32 s101, s101, {MISC}")
    g.stamp("c", "i0")
    e("s_call_b64 s[70:71], Lpk_issue\ns_branch Lp0x\nLp0:")
    e("s_cmp_lg_u32 s2, 0\ns_cbranch_scc1 Lp0x")
    for i in range(8, 12): e(f"v_mov_b32 v{i}, 0")
    for i in range(32): e((f"s_mov_b32 s3, {hx(CNT+1024*i)}\n" if i % 4 == 0 else "") + f"buffer_store_dwordx4 v[8:11], v251, s[8:11], s3 offen offset:{1024*(i%4)} sc0 sc1")
    e("s_waitcnt vmcnt(0)\nv_mov_b32 v4, 1\nglobal_store_dword v8, v4, s[50:51] sc0 sc1")
    if g.o.get("p0", 0):
        e("s_lshr_b32 s29, s2, 3\ns_lshr_b32 s3, s23, 3\ns_lshl_b32 s3, s3, 5\ns_add_u32 s3, s3, s29\ns_mul_i32 s30, s3, 40960")
        e("v_and_b32 v4, 31, v1\nv_mul_u32_u24 v4, 1280, v4\nv_lshrrev_b32 v5, 5, v1\nv_lshl_add_u32 v4, v5, 7, v4")
        e("s_movk_i32 s60, 3840\ns_cmp_ge_u32 s24, 12\ns_cselect_b32 s60, 1280, s60\ns_cselect_b32 s3, 12, 0\ns_sub_u32 s3, s24, s3\ns_lshr_b32 s3, s3, 2\ns_mul_i32 s61, s3, 1280")
        e("s_lshl_b32 s3, s29, 1\ns_mul_i32 s3, s3, s60\ns_add_u32 s61, s61, s3\ns_mul_i32 s62, s60, 192")
        e("v_mul_u32_u24 v5, 6554, v1\nv_lshrrev_b32 v5, 16, v5\nv_mul_u32_u24 v6, 10, v5\nv_sub_u32 v6, v1, v6")
        e("v_lshrrev_b32 v7, 1, v5\nv_and_b32 v5, 1, v5\nv_lshl_add_u32 v5, v7, 6, v5\nv_mul_lo_u32 v5, v5, s60\nv_lshl_add_u32 v5, v6, 7, v5")
        for t in ("w0", "x0", "x1", "w1", "x2", "w2", "x3", "x4", "w3"):
            q = int(t[1])
            if t[0] == "x": e(f"buffer_load_dword v8, v4, s[4:7], s30 offen offset:{256*q}")
            else:
                e("s_mov_b32 exec_hi, 0x0fffffff" if q < 3 else "s_mov_b64 exec, 0xfffff")
                e("buffer_load_dword v8, v5, s[12:15], s61 offen\ns_add_u32 s61, s61, s62\ns_mov_b64 exec, -1")
    e("Lp0x:")
    g.stamp("c", "i0"); g.stamp("c", "i0")
    e("s_lshr_b32 s58, s22, 1\ns_and_b32 s59, s22, 1\ns_xor_b32 s60, s58, s59")
    e("v_and_b32 v4, 15, v1\nv_lshrrev_b32 v5, 4, v1")
    e("s_lshl_b32 s3, s60, 2\nv_add_u32 v6, s3, v5\nv_lshrrev_b32 v7, 1, v4\nv_xor_b32 v6, v6, v7\nv_lshlrev_b32 v6, 4, v6")
    e("s_lshl_b32 s3, s58, 13\nv_lshlrev_b32 v7, 7, v4\nv_add3_u32 v2, v6, v7, s3\nv_xor_b32 v3, 64, v2")
    e("s_cmp_ge_u32 s24, 12\ns_cselect_b32 s61, 32, 40\ns_cselect_b32 s62, 8, 40\ns_cselect_b32 s63, 32, 160\ns_cselect_b32 s3, 256, 32")
    e("s_mul_i32 s63, s63, s59\ns_add_u32 s63, s63, s3")
    e("v_lshlrev_b32 v6, 3, v5\nv_bfe_u32 v7, v1, 2, 2\nv_add_u32 v6, v6, v7\nv_mul_u32_u24 v6, 320, v6")
    e("v_and_b32 v7, 3, v1\nv_and_b32 v54, 1, v5\nv_lshlrev_b32 v54, 5, v54")
    e(f"s_mul_i32 s64, s60, 10240\ns_add_u32 s64, s64, {WOFF}\ns_sub_u32 s65, {2*WOFF+10240}, s64")
    for nt in range(5):
        if nt < 4:
            e(f"s_lshl_b32 s3, s59, 2\ns_add_u32 s3, s3, {nt}\ns_mul_i32 s3, s3, s61\nv_lshlrev_b32 v55, 3, v7\nv_add_u32 v55, s3, v55")
        else:
            e("v_mul_lo_u32 v55, v7, s62\nv_add_u32 v55, s63, v55")
        e(f"v_xor_b32 v55, v55, v54\nv_add_u32 v55, v55, v6\nv_add_u32 v{44+nt}, s64, v55\nv_add_u32 v{49+nt}, s65, v55")
    for r in range(ACC, ONES): e(f"v_mov_b32 v{r}, 0")
    for r in range(ONES, ONES + 4): e(f"v_mov_b32 v{r}, 0x3f803f80")
    if not g.o.get("j1unr", 1):
        for r in range(XB, WB + 20): e(f"v_mov_b32 v{r}, 0")
    e("s_mov_b32 s57, 0\ns_mov_b32 s56, 0")
    if g.o.get("inner") == 0: e("s_memrealtime s[54:55]\ns_waitcnt vmcnt(0)\ns_memrealtime s[14:15]")
    if g.o.get("tlb", 0):
        e("s_cmp_lg_u32 s22, 3\ns_cbranch_scc1 Ltlbx\ns_lshr_b32 s3, s2, 3\ns_lshl_b32 s29, s3, 20\ns_min_u32 s30, s3, 19\ns_lshl_b32 s30, s30, 17\nv_lshlrev_b32 v56, 16, v1")
        e("s_mov_b64 exec, 0xffff\nbuffer_load_dword v57, v56, s[8:11], s29 offen sc1\ns_mov_b64 exec, 3\nbuffer_load_dword v58, v56, s[16:19], s30 offen sc1\ns_mov_b64 exec, -1\nLtlbx:")
    e("s_cmp_eq_u32 s22, 3\ns_cbranch_scc1 Lpk2b\ns_waitcnt vmcnt(0)\ns_call_b64 s[70:71], Lpk_fin\nLpk2b:")
    if g.o.get("inner") == 0: e("s_waitcnt lgkmcnt(0)\ns_mov_b64 s[82:83], s[54:55]\ns_mov_b64 s[84:85], s[14:15]"); g.nstamp["c"] += 2
    g.stamp("c", "i0")
    IMM = g.o.get("imm", 1) and g.o.get("j1unr", 1)
    if IMM:
        for i, r in enumerate([2, 3] + list(range(44, 54))): e(f"v_add_u32 v{236+i}, {2*SLOT}, v{r}")
    def reads(xa, wa0, X, W, it=0):
        L = []; o = 0
        if IMM:
            o = (it & 1) * SLOT
            if it & 2: xa += 234; wa0 += 194
        for rt in range(4): L.append(f"ds_read_b128 {R(X+4*rt)}, v{xa} offset:{o+rt*2048}")
        for nt in range(5):
            L.append(f"ds_read_b64_tr_b16 {R(W+4*nt,2)}, v{wa0+nt} offset:{o}")
            L.append(f"ds_read_b64_tr_b16 {R(W+4*nt+2,2)}, v{wa0+nt} offset:{o+1280}")
        return L
    DOT = g.o.get("dot", 0)
    def mf(X, W, vt, phaseA):
        L = []
        for nt in range(5):
            for rt in range(4):
                a, b = (R(X+4*rt), R(W+4*nt)) if vt else (R(W+4*nt), R(X+4*rt))
                L.append(f"{MF} {R(ACC+(rt*5+nt)*4)}, {a}, {b}, {R(ACC+(rt*5+nt)*4)}")
            if not phaseA and not DOT: L.append(f"{MF} {R(CS+4*nt)}, {R(ONES)}, {R(W+4*nt)}, {R(CS+4*nt)}")
        if DOT:
            V = []
            for r in range(4):
                if phaseA:
                    for rt in range(4): V += [f"v_dot2c_f32_bf16 v{SUM+4*rt}, v{X+4*rt+r}, v{ONES}", f"v_dot2c_f32_bf16 v{SQ+4*rt}, v{X+4*rt+r}, v{X+4*rt+r}"]
                else:
                    for nt in range(5): V.append(f"v_dot2c_f32_bf16 v{CS+4*nt}, v{W+4*nt+r}, v{ONES}")
            d0 = g.o.get("dot0", 4)
            per = [[] for _ in L]
            for i, v in enumerate(V): per[d0 + i * (len(L) - d0) // len(V)].append(v)
            L = ["\n".join([m] + p) for m, p in zip(L, per)]
        elif phaseA:
            for rt in range(4):
                L.append(f"{MF} {R(SUM+4*rt)}, {R(ONES)}, {R(X+4*rt)}, {R(SUM+4*rt)}")
                L.append(f"{MF} {R(SQ+4*rt)}, {R(X+4*rt)}, {R(X+4*rt)}, {R(SQ+4*rt)}")
        return L
    e("s_lshr_b32 s3, s24, 2\ns_cmp_eq_u32 s3, 2\ns_cbranch_scc1 Lj1v")
    DEN = g.o.get("j1den", 14)
    UNR = g.o.get("j1unr", 1)
    for vt in (0, 1):
        lp = "Lj1v" if vt else "Lj1n"
        e(f"{lp}:")
        mB = mf(XB, WB, vt, False); mA = mf(XA, WA, vt, True)
        for it in range(10 if UNR else 1):
            if it == g.o.get("ps", 1): e("s_waitcnt vmcnt(0)")
            if not UNR: e(f"s_cmp_eq_u32 s56, 0\ns_cbranch_scc1 {lp}w\ns_waitcnt vmcnt(0)\n{lp}w:")
            e("s_barrier")
            if vt and it == 0 and g.o.get("inner") == 1: g.nstamp["c"] -= 10
            if vt and it == 0 and g.o.get("inner") == 0: g.nstamp["c"] -= 2
            g.stamp("c", "i1" if it > 1 else "i01")
            if UNR and it == 0:
                for x in reads(2, 44, XA, WA, it): e(x)
            else:
                for x in interleave(mB[:DEN], reads(2, 44, XA, WA, it)) + mB[DEN:]: e(x)
            e("s_waitcnt lgkmcnt(0)")
            for x in interleave(mA[:DEN], reads(3, 49, XB, WB, it)): e(x)
            adv = [] if IMM else slot_adv(g, [2, 3] + list(range(44, 54)))
            for x in interleave(mA[DEN:], adv): e(x)
            e("s_waitcnt lgkmcnt(0)")
        if not UNR: e(f"s_add_u32 s56, s56, 1\ns_cmp_lt_u32 s56, 10\ns_cbranch_scc1 {lp}")
        for x in mB: e(x)
        if not vt: e("s_branch Lj1done")
    e("Lj1done:")
    g.stamp("c", "16")
    e(f"s_lshl_b32 s3, s59, 9\ns_lshl_b32 s29, s58, 8\ns_add_u32 s3, s3, s29\ns_add_u32 s3, s3, {MISC}\nv_lshlrev_b32 v6, 2, v4\nv_add_u32 v6, s3, v6")
    e(f"s_mul_i32 s3, s58, 640\ns_mul_i32 s29, s59, 320\ns_add_u32 s3, s3, s29\ns_add_u32 s3, s3, {MISC+2048}\nv_lshlrev_b32 v7, 2, v4\nv_add_u32 v7, s3, v7")
    if DOT:
        vals = [SUM + 4 * i for i in range(13)]
        for sw in ("v_permlane32_swap_b32", "v_permlane16_swap_b32"):
            for v in vals: e(f"v_mov_b32 v{v+1}, v{v}")
            for v in vals: e(f"{sw} v{v+1}, v{v}")
            for v in vals: e(f"v_add_f32 v{v}, v{v}, v{v+1}")
    else:
        e("s_mov_b32 s60, 0x22222222\ns_mov_b32 s61, s60\ns_mov_b32 s62, 0x44444444\ns_mov_b32 s63, s62\ns_mov_b32 s64, 0x88888888\ns_mov_b32 s65, s64\ns_nop 3")
        for rt in range(4):
            q = SQ + 4 * rt
            e(f"v_cndmask_b32 v{q}, v{q}, v{q+1}, s[60:61]\nv_cndmask_b32 v{q}, v{q}, v{q+2}, s[62:63]\nv_cndmask_b32 v{q}, v{q}, v{q+3}, s[64:65]")
    e("s_mov_b32 exec_lo, 0x00f0000f\ns_mov_b32 exec_hi, 0xf0000f00")
    for rt in range(4):
        e(f"ds_write_b32 v6, v{SUM+4*rt} offset:{64*rt}\nds_write_b32 v6, v{SQ+4*rt} offset:{1024+64*rt}")
    for nt in range(5): e(f"ds_write_b32 v7, v{CS+4*nt} offset:{64*nt}")
    e("s_mov_b64 exec, -1\ns_waitcnt lgkmcnt(0)\ns_barrier")
    g.stamp("c", "i6")
    e("s_lshr_b32 s61, s24, 2\ns_and_b32 s62, s24, 3")
    e(f"s_mul_i32 s60, s61, {KF}\ns_mul_i32 s3, s62, 5120\ns_add_u32 s60, s60, s3\ns_lshl_b32 s3, s59, 11\ns_add_u32 s63, s60, s3")
    e("s_lshl_b32 s3, s59, 9\ns_add_u32 s64, s60, s3\ns_add_u32 s64, s64, 4096")
    e("v_lshrrev_b32 v3, 1, v5\nv_sub_u32 v3, v5, v3\nv_lshlrev_b32 v3, 8, v3\nv_and_b32 v2, 1, v5\nv_lshlrev_b32 v2, 3, v2\nv_sub_u32 v3, v3, v2")
    e("s_lshl_b32 s65, s23, 7\ns_lshl_b32 s3, s58, 6\ns_add_u32 s65, s65, s3")
    inv = hx(f2u(1.0 / 640)); eps = hx(f2u(1e-5))
    e(f"s_mov_b32 s66, {inv}\ns_mov_b32 s67, {eps}")
    e("s_cmp_eq_u32 s61, 2\ns_cbranch_scc1 Lj1ev")
    e(f"s_lshl_b32 s3, s58, 8\ns_add_u32 s3, s3, {MISC}\nv_lshlrev_b32 v6, 2, v4\nv_add_u32 v6, s3, v6")
    e(f"s_mul_i32 s3, s59, 320\ns_add_u32 s3, s3, {MISC+2048}\nv_lshlrev_b32 v7, 4, v5\nv_add_u32 v7, s3, v7")
    for rt in range(4):
        e(f"ds_read2_b32 {R(8+4*rt,2)}, v6 offset0:{16*rt} offset1:{128+16*rt}")
        e(f"ds_read_b32 v{10+4*rt}, v6 offset:{1024+64*rt}\nds_read_b32 v{11+4*rt}, v6 offset:{1536+64*rt}")
    for nt in range(5):
        e(f"ds_read_b128 {R(144+4*nt)}, v7 offset:{64*nt}\nds_read_b128 {R(164+4*nt)}, v7 offset:{640+64*nt}")
    e("s_lshr_b32 s3, s62, 1\ns_add_u32 s3, s3, 1\ns_sub_u32 s29, 0, s3\ns_bitcmp1_b32 s62, 0\ns_cselect_b32 s3, s29, s3\ns_cmp_eq_u32 s61, 3\ns_cselect_b32 s68, s3, 0")
    e("s_add_u32 s3, s65, s68\nv_add_u32 v24, s3, v4\ns_movk_i32 s69, 0x5000")
    for rt in range(4):
        e(f"v_add_u32 v25, {16*rt}, v24\nv_and_b32 v26, 0x7ff, v25\nv_cmp_eq_u32 s[{70+0}:{71}], v25, v26" if False else
          f"v_add_u32 v25, {16*rt}, v24\nv_and_b32 v26, 0x7ff, v25\nv_cmp_eq_u32 vcc, v25, v26")
        e(f"v_lshrrev_b32 v25, 4, v26\nv_and_b32 v26, 15, v26\nv_cndmask_b32 v{32+rt}, 0, 1.0, vcc")
        e(f"v_mul_lo_u32 v25, v25, s69\nv_lshl_add_u32 v26, v5, 4, v26\nv_lshl_add_u32 v{28+rt}, v26, 4, v25")
    e("s_waitcnt lgkmcnt(0)")
    for rt in range(4):
        b = 8 + 4 * rt
        e(f"v_add_f32 v{b}, v{b}, v{b+1}\nv_add_f32 v{b+2}, v{b+2}, v{b+3}\nv_mul_f32 v{b}, s66, v{b}\nv_mul_f32 v{b+2}, s66, v{b+2}")
        e(f"v_fma_f32 v{b+2}, -v{b}, v{b}, v{b+2}\nv_max_f32 v{b+2}, 0, v{b+2}\nv_add_f32 v{b+3}, s67, v{b+2}\nv_rsq_f32 v{b+1}, v{b+3}")
    for i in range(10): e(f"v_pk_add_f32 {R(144+2*i,2)}, {R(144+2*i,2)}, {R(164+2*i,2)}")
    e("s_cmp_lg_u32 s24, 12\ns_cbranch_scc1 Lj1nost\ns_cmp_lg_u32 s59, 0\ns_cbranch_scc1 Lj1nost")
    e(f"s_lshl_b32 s3, s65, 3\ns_add_u32 s3, s3, {hx(STAT)}\nv_lshlrev_b32 v6, 3, v4\ns_mov_b64 exec, 0xffff")
    for rt in range(4): e(f"buffer_store_dwordx2 {R(8+4*rt,2)}, v6, s[8:11], s3 offen offset:{128*rt} {PL}")
    e("s_mov_b64 exec, -1\nLj1nost:")
    e("s_cmp_lg_u32 s61, 3\ns_cbranch_scc1 Lj1nh")
    for rt in range(4):
        b = 8 + 4 * rt
        e(f"v_mul_f32 v{b+3}, v{b+1}, v{b+1}\nv_fma_f32 v{b+3}, v{b+3}, v{b+2}, s67\nv_rsq_f32 v{b+3}, v{b+3}\nv_mul_f32 v{b+2}, v{b+1}, v{32+rt}\nv_mul_f32 v{b+3}, v{b+2}, v{b+3}")
        e(f"v_mov_b32 v{b+2}, v{b}\n")
    e("s_branch Lj1nh2\nLj1nh:")
    for rt in range(4):
        b = 8 + 4 * rt
        e(f"v_mov_b32 v{b+2}, v{b}\nv_mov_b32 v{b+3}, v{b+1}")
    e("Lj1nh2:")
    g.stamp("c", "i6")
    e(f"s_mov_b32 s54, {hx(f2u(GELU_C1))}\ns_mov_b32 s55, s54\nv_mov_b32 v44, {hx(f2u(GELU_C0))}\nv_mov_b32 v45, v44")
    for rt in range(4):
        b = 8 + 4 * rt
        for nt in range(5):
            for h in range(2):
                a = ACC + (rt * 5 + nt) * 4 + 2 * h
                e(f"v_pk_fma_f32 {R(a,2)}, {R(144+4*nt+2*h,2)}, {R(b+2,2)}, {R(a,2)} op_sel_hi:[1,0,1] neg_lo:[1,0,0] neg_hi:[1,0,0]")
        for nt in range(5):
            for h in range(2):
                a = ACC + (rt * 5 + nt) * 4 + 2 * h
                e(f"v_pk_mul_f32 {R(a,2)}, {R(a,2)}, {R(b+2,2)} op_sel:[0,1] op_sel_hi:[1,1]")
        sk = g.lab("Lsk")
        e(f"s_cmp_lg_u32 s61, 3\ns_cbranch_scc1 {sk}")
        gelu_pairs(g, [ACC + rt * 20 + 2 * i for i in range(10)], 36)
        e(f"{sk}:")
        if not g.o.get("late1", 0): store_tile(g, ACC + rt * 20, 200 + 12 * (rt % 2), f"v{28+rt}", "s63", "s64", 0)
    g.stamp("c", "i6")
    if g.o.get("late1", 0):
        for rt in range(4): store_tile(g, ACC + rt * 20, ACC + rt * 20, f"v{28+rt}", "s63", "s64", 0)
    e("s_branch Lj1pub")
    e("Lj1ev:")
    e(f"s_lshl_b32 s3, s58, 8\ns_add_u32 s3, s3, {MISC}\nv_lshlrev_b32 v6, 4, v5\nv_add_u32 v6, s3, v6")
    e(f"s_mul_i32 s3, s59, 320\ns_add_u32 s3, s3, {MISC+2048}\nv_lshlrev_b32 v7, 2, v4\nv_add_u32 v7, s3, v7")
    for rt in range(4):
        e(f"ds_read_b128 {R(144+16*rt)}, v6 offset:{64*rt}\nds_read_b128 {R(148+16*rt)}, v6 offset:{512+64*rt}")
        e(f"ds_read_b128 {R(152+16*rt)}, v6 offset:{1024+64*rt}\nds_read_b128 {R(156+16*rt)}, v6 offset:{1536+64*rt}")
    for nt in range(5): e(f"ds_read2_b32 {R(8+2*nt,2)}, v7 offset0:{16*nt} offset1:{160+16*nt}")
    e("s_lshr_b32 s3, s65, 4\ns_mul_i32 s3, s3, 20480\nv_lshlrev_b32 v28, 4, v1\nv_add_u32 v28, s3, v28")
    for rt in range(1, 4): e(f"v_add_u32 v{28+rt}, {20480*rt}, v28")
    e("s_waitcnt lgkmcnt(0)")
    for nt in range(5): e(f"v_add_f32 v{8+2*nt}, v{8+2*nt}, v{9+2*nt}")
    for rt in range(4):
        for r in range(4):
            m, q = 144 + 16 * rt + r, 152 + 16 * rt + r
            e(f"v_add_f32 v{m}, v{m}, v{m+4}\nv_add_f32 v{q}, v{q}, v{q+4}\nv_mul_f32 v{m}, s66, v{m}\nv_mul_f32 v{q}, s66, v{q}")
            e(f"v_fma_f32 v{q}, -v{m}, v{m}, v{q}\nv_max_f32 v{q}, 0, v{q}\nv_add_f32 v{q}, s67, v{q}\nv_rsq_f32 v{q}, v{q}")
    e("s_nop 0")
    for rt in range(4):
        for nt in range(5):
            for h in range(2):
                a = ACC + (rt * 5 + nt) * 4 + 2 * h
                e(f"v_pk_fma_f32 {R(a,2)}, {R(144+16*rt+2*h,2)}, {R(8+2*nt,2)}, {R(a,2)} op_sel_hi:[1,0,1] neg_lo:[1,0,0] neg_hi:[1,0,0]")
        for nt in range(5):
            for h in range(2):
                a = ACC + (rt * 5 + nt) * 4 + 2 * h
                e(f"v_pk_mul_f32 {R(a,2)}, {R(a,2)}, {R(152+16*rt+2*h,2)}")
        store_tile(g, ACC + rt * 20, 212 + 12 * (rt % 2), f"v{28+rt}", "s63", "s64", 0)
    e("Lj1pub:")
    g.stamp("c", "16")
    g.flag_off(F_J1, "s23", 7, "s24"); e("s_waitcnt vmcnt(0)")
    g.stamp("c", "i6")
    g.wsignal(0, 1)
    g.stamp("c", "i6")

def store_tile(g, a, t, vo, spair, ssingle, off, npair=2, srd="s[8:11]", pstep=1024, pol=PL):
    n = npair * 4 + 2
    for i in range(n): g.e(f"v_cvt_pk_bf16_f32 v{t+i}, v{a+2*i}, v{a+2*i+1}")
    vop, vos = vo if isinstance(vo, tuple) else (vo, vo)
    if spair == "s63" and vos == "v30": vos = vop = "v30 "
    for p in range(npair): g.e(f"buffer_store_dwordx4 {R(t+4*p)}, {vop}, {srd}, {spair} offen offset:{off+pstep*p} {pol}")
    if vos == "v30": vos = "v2"
    elif vos == vop: g.e(f"v_sub_u32 v2, {vop}, v3"); vos = "v2"
    g.e(f"buffer_store_dwordx2 {R(t+4*npair,2)}, {vos}, {srd}, {ssingle} offen offset:{off} {pol}")


def packer_subs(g):
    e = g.e
    e("Lpk_issue:")
    e("s_mov_b32 s91, 0\ns_movk_i32 s85, 1280\ns_cmp_ge_u32 s100, 940\ns_cbranch_scc1 Lpk_w4")
    e("s_cmp_ge_u32 s100, 740\ns_cbranch_scc1 Lpk_wo\ns_cmp_ge_u32 s100, 200\ns_cbranch_scc1 Lpk_w3")
    e(f"s_mov_b64 s[92:93], s[42:43]\ns_mov_b32 s94, 819200\ns_mov_b32 s89, 0\ns_movk_i32 s90, 100\ns_mov_b32 s3, s100\ns_mov_b32 s31, 5\ns_branch Lpk_acc10")
    e(f"Lpk_w4:\ns_mov_b64 s[92:93], s[46:47]\ns_mov_b32 s94, 2211840\ns_mov_b32 s89, {(W4P-W2P)>>10}\ns_movk_i32 s90, 270\ns_sub_u32 s3, s100, 940\ns_mov_b32 s31, 7")
    e("Lpk_acc10:"); g.sdiv("s83", "s3", 10, 600)
    e("s_mul_i32 s84, s83, 10\ns_sub_u32 s84, s3, s84\ns_lshl_b32 s86, s83, 5\ns_mov_b32 s29, 0x4210\ns_bitset1_b32 s29, 19\ns_cmp_eq_u32 s31, 5\ns_cselect_b32 s30, s29, 0x81020408\ns_mov_b32 s31, 0x00102040")
    e("s_bitcmp1_b64 s[30:31], s83\ns_cselect_b32 s87, 4, 16\ns_cselect_b32 s88, 8, 4\ns_branch Lpk_go")
    e(f"Lpk_wo:\ns_mov_b64 s[92:93], s[36:37]\ns_mov_b32 s94, 819200\ns_mov_b32 s89, {(WOP-W2P)>>10}\ns_movk_i32 s90, 100\ns_sub_u32 s3, s100, 740")
    g.sdiv("s83", "s3", 10, 600)
    e("s_mul_i32 s84, s83, 10\ns_sub_u32 s84, s3, s84"); g.sdiv("s29", "s83", 5, 64)
    e("s_mul_i32 s30, s29, 5\ns_sub_u32 s30, s83, s30\ns_mul_i32 s86, s29, 160\ns_mul_i32 s3, s30, 40\ns_cmp_eq_u32 s30, 4")
    e("s_cselect_b32 s3, 16, s3\ns_mov_b32 s87, 20\ns_cselect_b32 s88, 40, 4\ns_add_u32 s86, s86, s3\ns_branch Lpk_go")
    e(f"Lpk_w3:\ns_mov_b64 s[92:93], s[44:45]\ns_mov_b32 s94, 2211840\ns_mov_b32 s89, {(W3P-W2P)>>10}\ns_movk_i32 s90, 140\ns_mov_b32 s91, 1\ns_movk_i32 s85, 3456\ns_sub_u32 s3, s100, 200")
    g.sdiv("s83", "s3", 27, 600)
    e("s_mul_i32 s84, s83, 27\ns_sub_u32 s84, s3, s84"); g.sdiv("s29", "s83", 5, 64)
    e("s_mul_i32 s30, s29, 5\ns_sub_u32 s30, s83, s30\ns_lshl_b32 s86, s83, 5\ns_mov_b32 s87, 4\ns_mov_b32 s88, 8")
    e("Lpk_go:")
    e("v_mul_lo_u32 v242, v236, s87\nv_add_u32 v242, v242, v237\nv_mul_lo_u32 v242, v242, s85\nv_add_u32 v242, v242, v238")
    e("s_mul_i32 s86, s86, s85\ns_lshl_b32 s3, s84, 7\ns_add_u32 s86, s86, s3\ns_mul_i32 s88, s88, s85")
    for d in range(4):
        e(f"s_add_u32 m0, s101, {d*1024}\ns_nop 0\nbuffer_load_dwordx4 v242, s[92:95], s86 offen lds")
        if d < 3: e("s_add_u32 s86, s86, s88")
    for fbl in range(2):
        lw3, ldn = g.lab("Lpkd"), g.lab("Lpkd")
        e(f"s_lshl_b32 s3, s84, 1\ns_add_u32 s3, s3, {fbl}\ns_cmp_lg_u32 s91, 0\ns_cbranch_scc1 {lw3}")
        g.sdiv("s29", "s3", 5, 64)
        e("s_mul_i32 s30, s29, 5\ns_sub_u32 s30, s3, s30\ns_lshl_b32 s29, s29, 1")
        e("s_lshr_b32 s3, s30, 1\ns_and_b32 s31, s30, 1\ns_lshl_b32 s31, s31, 1\ns_cmp_eq_u32 s30, 4")
        e("s_cselect_b32 s3, 0, s3\ns_cselect_b32 s31, 4, s31\ns_cselect_b32 s86, s90, 1\ns_cselect_b32 s87, 8, 16\ns_cselect_b32 s30, 32, 8")
        e("s_add_u32 s29, s29, s3\ns_mul_i32 s29, s29, s90\ns_mul_i32 s3, s83, 5")
        e(f"s_branch {ldn}\n{lw3}:")
        g.sdiv("s29", "s3", 7, 64)
        e("s_mul_i32 s30, s29, 7\ns_sub_u32 s30, s3, s30\ns_lshl_b32 s29, s29, 1")
        e("s_lshr_b32 s3, s30, 2\ns_and_b32 s31, s30, 3\ns_lshl_b32 s31, s31, 1\ns_cmp_eq_u32 s30, 3")
        e("s_cselect_b32 s86, s90, 1\ns_mov_b32 s87, 8\ns_mov_b32 s30, 32")
        e("s_add_u32 s29, s29, s3\ns_mul_i32 s29, s29, s90\ns_mul_i32 s3, s83, 7")
        e(f"{ldn}:")
        e(f"s_add_u32 s29, s29, s3\ns_add_u32 s29, s29, s31\ns_add_u32 s{96+2*fbl}, s29, s89\ns_add_u32 s{97+2*fbl}, s{96+2*fbl}, s86")
        e(f"v_mul_lo_u32 v{243+2*fbl}, v240, s87\nv_add3_u32 v{243+2*fbl}, v{243+2*fbl}, v239, s101\nv_add_u32 v{244+2*fbl}, s30, v{243+2*fbl}")
    e("s_setpc_b64 s[70:71]")
    e("Lpk_fin:")
    for q in range(4):
        e(f"ds_read_b64_tr_b16 {R(200+4*q,2)}, v{243+q} offset:{64*(q//2)}\nds_read_b64_tr_b16 {R(202+4*q,2)}, v{243+q} offset:{64*(q//2)+512}")
    e("s_waitcnt lgkmcnt(0)")
    for q in range(4): e(f"{MF} {R(216+4*q)}, {R(ONES)}, {R(200+4*q)}, 0")
    for q in range(4):
        e(f"s_lshl_b32 s3, s{96+q}, 10\ns_add_u32 s3, s3, {hx(W2P)}\nbuffer_store_dwordx4 {R(200+4*q)}, v251, s[8:11], s3 offen {PL}")
    e("s_mov_b64 exec, 0xffff")
    for q in range(4):
        e(f"s_lshl_b32 s3, s{96+q}, 6\ns_add_u32 s3, s3, {hx(CSP)}\nbuffer_store_dword v{216+4*q}, v241, s[8:11], s3 offen {PL}")
    e("s_mov_b64 exec, -1\ns_setpc_b64 s[70:71]")

def call(g, target):
    g.e(f"s_getpc_b64 s[30:31]\ns_add_u32 s30, s30, {target}-.+0\ns_addc_u32 s31, s31, 0\ns_swappc_b64 s[20:21], s[30:31]".replace("-.+0", "@"))

class VM:
    def __init__(s, g): s.g = g; s.ops = []
    def op(s, text, tag=None): s.g.e(text); s.ops.append(tag)
    def n_after(s, tag):
        idx = [i for i, t in enumerate(s.ops) if t == tag]
        return None if not idx else len(s.ops) - 1 - idx[-1]
    def wait(s, tag):
        n = s.n_after(tag)
        if n is None: return
        assert n <= 63, n
        s.g.e(f"s_waitcnt vmcnt({n})"); s.ops = s.ops[len(s.ops) - n:]
    def room(s, k):
        if len(s.ops) + k > 60:
            n = 60 - k - 4; s.g.e(f"s_waitcnt vmcnt({n})"); s.ops = s.ops[len(s.ops) - n:]
    def drained(s): s.ops = []

def lds_ref(off):
    b = off >> 16
    return f"v{30+b} offset:{off & 0xffff}"

def xgemm(g, vm, nks, nrt, nnt, acc, XW, WB, waddr, xload, pre_issued=0, barrier_at=None, hook=None, AH=2, st=None, pre=99, rotw=None):
    e = g.e; win = len(XW) // nrt; nb = len(WB)
    def xreg(ks, rt): return XW[(ks % win) * nrt + rt]
    def issue_x(ks):
        for rt, t in enumerate(xload(ks)): vm.op(t.replace("{r}", R(xreg(ks, rt))), ("x", ks))
    def rd(ks):
        L = ["s_barrier"] if barrier_at and ks in barrier_at else []
        if rotw:
            cs = 4 * nnt * 1024; p = ""
            if ks % 4 == 0:
                if ks: p = f"s_add_u32 {rotw}, {rotw}, {cs}\ns_cmp_ge_u32 {rotw}, {5*cs}\ns_cselect_b32 {rotw}, 0, {rotw}\n"
                p += f"v_add_u32 v33, {rotw}, v30\n"
            return L + [(p if nt == 0 else "") + f"ds_read_b128 {R(WB[ks % nb]+4*nt)}, v33 offset:{((ks % 4) * nnt + nt) * 1024}" for nt in range(nnt)]
        return L + [f"ds_read_b128 {R(WB[ks % nb]+4*nt)}, {waddr(ks, nt)}" for nt in range(nnt)]
    nx = pre_issued
    while nx < min(win, nks, pre): issue_x(nx); nx += 1
    if hook: hook(-1)
    for ks in range(min(AH, nks)):
        for x in rd(ks): e(x)
    for ks in range(nks):
        vm.wait(("x", ks))
        later = min(AH - 1, nks - 1 - ks) * nnt
        e(f"s_waitcnt lgkmcnt({later})")
        if st and ks in st[1] and str(g.o.get("inner", "")) and str(g.o.get("inner")) in st[0]: g.stamp("c", st[0]); e("s_waitcnt lgkmcnt(0)")
        m = []
        for nt in range(nnt):
            for rt in range(nrt):
                a = R(acc + (rt * nnt + nt) * 4)
                m.append(f"{MF} {a}, {R(WB[ks % nb]+4*nt)}, {R(xreg(ks, rt))}, {'0' if ks == 0 else a}")
        r = rd(ks + AH) if ks + AH < nks else []
        if nb > AH:
            h = max(1, len(m) * 2 // 3)
            seq = interleave(m[:h], r) + m[h:]
        else:
            j = 0; seq = []
            if r and r[0] == "s_barrier": seq.append(r[0]); r = r[1:]
            for i, x in enumerate(m):
                seq.append(x)
                if r and (i + 1) % nrt == 0: seq.append(r[j]); j += 1
        lds = []
        if g.o.get("spread", 1):
            for _ in range(2):
                if nx < nks and nx <= ks + win - 1:
                    for rt, t in enumerate(xload(nx)): lds.append(t.replace("{r}", R(xreg(nx, rt)))); vm.ops.append(("x", nx))
                    nx += 1
            n = len(seq); out = []; jj = 0
            for i, x in enumerate(seq):
                out.append(x)
                while jj < len(lds) and (2 * jj + 1) * n <= (i + 1) * 2 * len(lds): out.append(lds[jj]); jj += 1
            seq = out + lds[jj:]
        for x in seq: e(x)
        if not g.o.get("spread", 1):
            for _ in range(2):
                if nx < nks and nx <= ks + win: issue_x(nx); nx += 1
        if hook: hook(ks)

def rot_setup(g, idx, cs, sx, sw):
    if g.o.get("rot", 0):
        g.sdiv("s3", idx, 5, 16); g.e(f"s_mul_i32 s3, s3, 5\ns_sub_u32 s3, {idx}, s3")
    else: g.e("s_mov_b32 s3, 0")
    g.e(f"s_lshl_b32 {sx}, s3, 12\ns_mul_i32 {sw}, s3, {cs}")

def xl_rot(sb, sx, st, nrt=1):
    def f(ks):
        p = ""
        if ks % 4 == 0:
            if ks: p = f"s_add_u32 {sx}, {sx}, 4096\ns_cmp_ge_u32 {sx}, 20480\ns_cselect_b32 {sx}, 0, {sx}\n"
            p += f"s_add_u32 {st[0]}, {sb}, {sx}\n"
            if nrt == 2: p += f"s_add_u32 {st[1]}, {st[0]}, 20480\n"
        return [(p if rt == 0 else "") + f"buffer_load_dwordx4 {{r}}, v30, s[8:11], {st[rt]} offen offset:{(ks % 4) * 1024} {PL}" for rt in range(nrt)]
    return f

XK, X1K = 236, 246
AQ, AKC, AKP, AVC, AVP = 34, 44, 54, 224, 8
def tile_addr(g):
    e = g.e
    e("v_and_b32 v4, 15, v1\nv_lshrrev_b32 v5, 4, v1")
    e("s_lshl_b32 s65, s27, 6\ns_lshl_b32 s3, s22, 4\ns_add_u32 s65, s65, s3")
    e("s_lshr_b32 s58, s28, 1\ns_and_b32 s59, s28, 1")
    e("v_mul_u32_u24 v28, 1280, v4\nv_lshl_add_u32 v29, v5, 3, v28\nv_lshl_add_u32 v28, v5, 4, v28")
    e("s_mul_i32 s60, s65, 1280\ns_mul_i32 s3, s58, 320\ns_add_u32 s60, s60, s3\ns_lshl_b32 s3, s59, 5\ns_add_u32 s61, s60, s3\ns_add_u32 s61, s61, 256")
    e("s_lshl_b32 s3, s59, 7\ns_add_u32 s60, s60, s3")
    e("s_lshr_b32 s64, s65, 4\ns_mul_i32 s64, s64, 20480\ns_mul_i32 s3, s58, 5120\ns_add_u32 s62, s64, s3")
    e("s_lshl_b32 s3, s59, 9\ns_add_u32 s63, s62, s3\ns_add_u32 s63, s63, 4096\ns_lshl_b32 s3, s59, 11\ns_add_u32 s62, s62, s3")
    e("v_lshlrev_b32 v30, 4, v1\nv_add_u32 v31, 0x10000, v30\nv_add_u32 v32, 0x20000, v30\nv_sub_u32 v2, v30, v3")

def unpack(g, src, dst, n):
    for i in range(n): g.e(f"v_lshlrev_b32 v{dst+2*i}, 16, v{src+i}\nv_and_b32 v{dst+2*i+1}, 0xffff0000, v{src+i}")

def xl_lin(sreg):
    def f(ks):
        pre = f"s_add_u32 {sreg}, {sreg}, 4096\n" if ks and ks % 4 == 0 else ""
        return [pre + f"buffer_load_dwordx4 {{r}}, v30, s[8:11], {sreg} offen offset:{(ks % 4) * 1024} {PL}"]
    return f

def j2_consumer(g):
    e = g.e; vm = VM(g)
    tile_addr(g)
    e(f"buffer_load_dwordx4 {R(XK)}, v28, s[4:7], s60 offen\nbuffer_load_dwordx4 {R(XK+4)}, v28, s[4:7], s60 offen offset:64\nbuffer_load_dwordx2 {R(XK+8,2)}, v29, s[4:7], s61 offen")
    e(f"s_add_u32 s66, s64, {hx(HF)}\ns_lshl_b32 s67, s65, 3\ns_add_u32 s67, s67, {hx(STAT)}\nv_lshlrev_b32 v6, 3, v4")
    e("s_cmp_eq_u32 s65, 0\ns_cselect_b32 s3, 0, 20480\ns_sub_u32 s68, s62, s3\ns_sub_u32 s69, s63, s3")
    rot_setup(g, "s28", 20480, "s56", "s57")
    g.stamp("c", "i6")
    e("s_barrier")
    g.stamp("c", "26")
    att = []
    for (rr, base, sp, ss) in ((AQ, QF, "s62", "s63"), (AKC, KF, "s62", "s63"), (AKP, KF, "s68", "s69"), (AVC, VF, "s62", "s63"), (AVP, VF, "s68", "s69")):
        att.append(f"s_add_u32 s70, {sp}, {hx(base)}\ns_add_u32 s71, {ss}, {hx(base)}\nbuffer_load_dwordx4 {R(rr)}, v30, s[8:11], s70 offen {PL}")
        att.append(f"buffer_load_dwordx4 {R(rr+4)}, v30, s[8:11], s70 offen offset:1024 {PL}")
        att.append(f"buffer_load_dwordx2 {R(rr+8,2)}, v2, s[8:11], s71 offen {PL}")
    A0 = g.o.get("att0", 5)
    def hook(ks):
        if ks == A0 - 1: vm.op(f"buffer_load_dwordx2 v[18:19], v6, s[8:11], s67 offen {PL}", "st")
        for _ in range(2):
            if ks >= g.o.get("m2", 8) - 2 and att: vm.op(att.pop(0))

    xgemm(g, vm, 20, 1, 5, 64, [84 + 4 * i for i in range(20)], [164, 184, 204], None, xl_rot("s66", "s56", ["s20"]), hook=hook,
          st=("i2", (0, 1, 4, 8, 12, 16)), pre=g.o.get("pre2", 6), rotw="s57", barrier_at={g.o.get("m2", 8)})
    g.stamp("c", "2")
    vm.wait("st")
    unpack(g, XK, 84, 10)
    e("v_mul_f32 v20, v18, v19\nv_mov_b32 v21, v19")
    for i in range(10): e(f"v_pk_add_f32 {R(64+2*i,2)}, {R(64+2*i,2)}, v[20:21] op_sel_hi:[1,0] neg_lo:[0,1] neg_hi:[0,1]")
    for i in range(10): e(f"v_pk_fma_f32 {R(64+2*i,2)}, {R(84+2*i,2)}, v[20:21], {R(64+2*i,2)} op_sel:[0,1,0] op_sel_hi:[1,1,1]")
    e(f"s_add_u32 s66, s62, {hx(X1F)}\ns_add_u32 s67, s63, {hx(X1F)}")
    store_tile(g, 64, X1K, "v30", "s66", "s67", 0)
    e("v_pk_mul_f32 v[24:25], v[64:65], v[64:65]\nv_pk_add_f32 v[22:23], v[64:65], v[66:67]\nv_pk_fma_f32 v[24:25], v[66:67], v[66:67], v[24:25]")
    for i in range(2, 10):
        e(f"v_pk_add_f32 v[22:23], v[22:23], {R(64+2*i,2)}\nv_pk_fma_f32 v[24:25], {R(64+2*i,2)}, {R(64+2*i,2)}, v[24:25]")
    e("v_add_f32 v22, v22, v23\nv_add_f32 v23, v24, v25")
    for sw in ("v_permlane32_swap_b32", "v_permlane16_swap_b32"):
        e(f"v_mov_b32 v24, v22\nv_mov_b32 v25, v23\ns_nop 1\n{sw} v24, v22\n{sw} v25, v23\nv_pk_add_f32 v[22:23], v[22:23], v[24:25]")
    e(f"s_lshl_b32 s3, s65, 6\ns_lshl_b32 s29, s28, 7\ns_add_u32 s3, s3, s29\ns_add_u32 s3, s3, {hx(PST)}\nv_lshlrev_b32 v6, 3, v4")
    e(f"s_mov_b64 exec, 0xffff\nbuffer_store_dwordx2 v[22:23], v6, s[8:11], s3 offen {PL}\ns_mov_b64 exec, -1")
    g.stamp("c", "i2")
    e("s_barrier")
    g.stamp("c", "i2")
    assert not att
    attention(g, 0)
    e("s_waitcnt vmcnt(4)")
    attention(g, 1)

def attention(g, part):
    e = g.e
    Q, KP, KC, VP, VC = AQ, AKP, AKC, AVP, AVC
    BI, S, QM, P, VM_, O = 84, 96, 128, 136, 152, 168
    if part == 0:
        e("v_lshlrev_b32 v26, 2, v5\nv_sub_u32 v26, v4, v26\nv_mov_b32 v92, 0xf149f2ca\ns_cmp_eq_u32 s65, 0\ns_cselect_b32 s3, 1024, 16")
        for kt in range(2):
            for r in range(4):
                if kt == 0: e(f"v_add_u32 v27, s3, v26\nv_subrev_u32 v27, {r}, v27")
                else: e(f"v_subrev_u32 v27, {r}, v26")
                e(f"v_and_b32 v27, 0xfffffff1, v27\nv_cmp_eq_u32 vcc, 0, v27\ns_nop 1\nv_cndmask_b32 v{BI+4*kt+r}, v92, 0, vcc")
        return
    for h in range(4):
        lo = (0xffff << (16 * h)) & 0xffffffff; hi = (0xffff << (16 * h)) >> 32
        e(f"s_mov_b32 vcc_lo, {hx(lo)}\ns_mov_b32 vcc_hi, {hx(hi)}\ns_nop 0\nv_cndmask_b32 v{QM+2*h}, 0, v{Q+8}, vcc\nv_cndmask_b32 v{QM+2*h+1}, 0, v{Q+9}, vcc")
    e("s_nop 1")
    for h in range(4):
        for kt, K in enumerate((KP, KC)): e(f"{MF16} {R(S+8*h+4*kt)}, {R(K+2*h,2)}, {R(Q+2*h,2)}, {R(BI+4*kt)}")
    for h in range(4):
        for kt, K in enumerate((KP, KC)): e(f"{MF16} {R(S+8*h+4*kt)}, {R(K+8,2)}, {R(QM+2*h,2)}, {R(S+8*h+4*kt)}")
    for h in range(4):
        m = 0x000f000f << (4 * h)
        e(f"s_mov_b32 vcc_lo, {hx(m)}\ns_mov_b32 vcc_hi, {hx(m)}\ns_nop 0")
        for kt, V in enumerate((VP, VC)):
            e(f"v_cndmask_b32 v{VM_+4*h+2*kt}, 0, v{V+8}, vcc\nv_cndmask_b32 v{VM_+4*h+2*kt+1}, 0, v{V+9}, vcc")
    sc = (20 ** -0.5) * 1.4426950408889634
    e(f"s_mov_b32 s66, {hx(f2u(sc))}")
    for h in range(4):
        b = S + 8 * h
        e(f"v_max3_f32 v{20+h}, v{b}, v{b+1}, v{b+2}\nv_max3_f32 v{20+h}, v{20+h}, v{b+3}, v{b+4}\nv_max3_f32 v{20+h}, v{20+h}, v{b+5}, v{b+6}\nv_max_f32 v{20+h}, v{20+h}, v{b+7}")
    def red4(op):
        for sw in ("v_permlane32_swap_b32", "v_permlane16_swap_b32"):
            for h in range(4): e(f"v_mov_b32 v{24+h}, v{20+h}")
            e("s_nop 1")
            for h in range(4): e(f"{sw} v{24+h}, v{20+h}")
            for h in range(4): e(f"{op} v{20+h}, v{20+h}, v{24+h}")
    red4("v_max_f32")
    for h in range(4): e(f"v_mul_f32 v{20+h}, s66, v{20+h}")
    for h in range(4):
        for i in range(8): e(f"v_fma_f32 v{S+8*h+i}, v{S+8*h+i}, s66, -v{20+h}")
    for h in range(4):
        for i in range(8): e(f"v_exp_f32 v{S+8*h+i}, v{S+8*h+i}")
    e("s_nop 0")
    for h in range(4):
        b = S + 8 * h
        e(f"v_pk_add_f32 v[24:25], {R(b,2)}, {R(b+2,2)}\nv_pk_add_f32 v[26:27], {R(b+4,2)}, {R(b+6,2)}\nv_pk_add_f32 v[24:25], v[24:25], v[26:27]\nv_add_f32 v{20+h}, v24, v25")
    red4("v_add_f32")
    e("s_waitcnt vmcnt(0)")
    g.flag_off(F_X1, "s25", 7, "s26"); g.wsignal(1)
    g.stamp("c", "2")
    for h in range(4): e(f"v_rcp_f32 v{20+h}, v{20+h}")
    e("s_nop 0")
    for h in range(4):
        for i in range(8): e(f"v_mul_f32 v{S+8*h+i}, v{S+8*h+i}, v{20+h}")
        for i in range(4): e(f"v_cvt_pk_bf16_f32 v{P+4*h+i}, v{S+8*h+2*i}, v{S+8*h+2*i+1}")
    e("s_nop 1")
    for kt, V in enumerate((VP, VC)):
        for h in range(4):
            c = "0" if kt == 0 else R(O + 4 * h)
            e(f"{MF16} {R(O+4*h)}, {R(V+2*h,2)}, {R(P+4*h+2*kt,2)}, {c}")
    for h in range(4):
        for kt in range(2):
            c = "0" if (h == 0 and kt == 0) else R(O + 16)
            e(f"{MF16} {R(O+16)}, {R(VM_+4*h+2*kt,2)}, {R(P+4*h+2*kt,2)}, {c}")
    e(f"s_add_u32 s66, s62, {hx(OF)}\ns_add_u32 s67, s63, {hx(OF)}\ns_nop 7")
    store_tile(g, O, 84, "v30", "s66", "s67", 0)
    g.stamp("c")

def j345_consumer(g):
    e = g.e; vm = VM(g); stop = g.o.get("stop", 5)
    A3 = 64
    e(f"s_lshl_b32 s65, s38, 7\ns_lshl_b32 s3, s22, 5\ns_add_u32 s65, s65, s3\ns_lshl_b32 s68, s65, 6\ns_add_u32 s68, s68, {hx(PST)}")
    e(f"s_lshr_b32 s3, s65, 4\ns_mul_i32 s66, s3, 20480\ns_add_u32 s66, s66, {hx(X1F)}")
    rot_setup(g, "s39", 28672, "s56", "s57")
    e("v_lshlrev_b32 v6, 3, v4\nv_lshl_add_u32 v6, v5, 8, v6")
    e("s_barrier")
    g.stamp("c", "3")
    def hook(ks):
        if ks == -1:
            for i in range(4): vm.op(f"buffer_load_dwordx2 {R(12+2*i,2)}, v6, s[8:11], s68 offen offset:{(i>>1)*1024+(i&1)*128} {PL}")
        if ks == 0:
            e("s_lshl_b32 s71, s26, 2\ns_add_u32 s71, s71, s22"); g.flag_off(F_O, "s25", 8, "s71"); g.signal("v7"); vm.ops.append(None)
        if ks == 12:
            for rt in range(2):
                b = 12 + 4 * rt
                e(f"v_pk_add_f32 {R(b,2)}, {R(b,2)}, {R(b+2,2)}")
                for sw in ("v_permlane32_swap_b32", "v_permlane16_swap_b32"):
                    e(f"v_mov_b32 v{b+2}, v{b}\nv_mov_b32 v{b+3}, v{b+1}\ns_nop 1\n{sw} v{b+2}, v{b}\n{sw} v{b+3}, v{b+1}\nv_pk_add_f32 {R(b,2)}, {R(b,2)}, {R(b+2,2)}")
            e(f"s_mov_b32 s70, {hx(f2u(1.0/640))}\ns_mov_b32 s71, {hx(f2u(1e-5))}")
            for rt in range(2):
                b = 12 + 4 * rt
                e(f"v_mul_f32 v{b}, s70, v{b}\nv_mul_f32 v{b+1}, s70, v{b+1}\nv_fma_f32 v{b+1}, -v{b}, v{b}, v{b+1}\nv_max_f32 v{b+1}, 0, v{b+1}\nv_add_f32 v{b+1}, s71, v{b+1}\nv_rsq_f32 v{b+1}, v{b+1}")
    xgemm(g, vm, 20, 2, 7, A3, [120 + 4 * i for i in range(22)], [34, 208], None, xl_rot("s66", "s56", ["s20", "s21"], 2), hook=hook,
          st=("i3", (0, 1, 2, 4, 6, 8, 10, 12, 14, 17)), pre=g.o.get("pre3", 3), rotw="s57", barrier_at={g.o.get("m3", 10)} if stop >= 5 else None)
    e(f"v_lshlrev_b32 v6, 4, v5\nv_add_u32 v6, {CS3}, v6")
    for nt in range(7): e(f"ds_read_b128 {R(208+4*nt)}, v6 offset:{64*nt}")
    g.stamp("c", "i3")
    e("s_barrier")
    g.stamp("c", "3")
    X4 = [120 + 4 * i for i in range(20)]
    e(f"s_add_u32 s68, s64, {hx(OF)}")
    rot_setup(g, "s28", 20480, "s56", "s57")
    f4 = xl_rot("s68", "s56", ["s20"]); o4 = [f4(ks)[0].replace("{r}", R(X4[ks])) for ks in range(20)]
    e(f"s_lshr_b32 s58, s39, 1\ns_and_b32 s59, s39, 1\ns_lshr_b32 s3, s65, 4\ns_mul_i32 s66, s3, {TSTR}\ns_mul_i32 s3, s58, 7168\ns_add_u32 s66, s66, s3")
    e(f"s_add_u32 s66, s66, {hx(TF)}\ns_lshl_b32 s3, s59, 9\ns_add_u32 s67, s66, s3\ns_add_u32 s67, s67, 3072\ns_lshl_b32 s3, s59, 12\ns_add_u32 s66, s66, s3")
    e(f"v_mov_b32 v44, {hx(f2u(GELU_C0))}\nv_mov_b32 v45, v44\ns_mov_b32 s54, {hx(f2u(GELU_C1))}\ns_mov_b32 s55, s54")
    e("s_waitcnt lgkmcnt(0)")
    for rt in range(2):
        b = 12 + 4 * rt
        for i in range(14):
            a = A3 + rt * 28 + 2 * i
            e(f"v_pk_fma_f32 {R(a,2)}, {R(208+2*i,2)}, {R(b,2)}, {R(a,2)} op_sel_hi:[1,0,1] neg_lo:[1,0,0] neg_hi:[1,0,0]")
        for i in range(14):
            a = A3 + rt * 28 + 2 * i
            e(f"v_pk_mul_f32 {R(a,2)}, {R(a,2)}, {R(b,2)} op_sel:[0,1] op_sel_hi:[1,1]")
        for p in range(4):
            a = A3 + rt * 28 + 8 * p; n = 4 if p < 3 else 2
            gelu_pairs(g, [a + 2 * i for i in range(n)], 36)
            for i in range(n): e(f"v_cvt_pk_bf16_f32 v{a+i}, v{a+2*i}, v{a+2*i+1}")
            if p < 3: e(f"buffer_store_dwordx4 {R(a)}, v30, s[8:11], s66 offen offset:{1024*p} {PL}")
            else: e(f"buffer_store_dwordx2 {R(a,2)}, v2, s[8:11], s67 offen {PL}")
        if rt == 0: e(f"s_add_u32 s66, s66, {TSTR}\ns_add_u32 s67, s67, {TSTR}")
    g.stamp("c")
    vm.drained(); vm.ops.append("ts")
    for ks in range(20): vm.op(o4[ks], ("x", ks))
    vm.wait("ts")
    g.flag_off(F_T, "s38", 7, "s39"); g.wsignal(2)
    e("s_barrier")
    SA = 44
    xgemm(g, vm, 20, 1, 5, SA, X4, [8, 200] if g.o.get("j4wb", 0) else [64, 84, 200], None, None, pre_issued=20, rotw="s57")
    g.stamp("c")
    rot5(g)
    e(f"s_lshl_b32 s3, s27, 2\ns_add_u32 s3, s3, s22\ns_mul_i32 s68, s3, {TSTR}\ns_add_u32 s68, s68, {hx(TF)}\ns_and_b32 s58, s22, 1\ns_lshl_b32 s3, s58, 11\ns_add_u32 s68, s68, s3")
    e(f"s_add_u32 s67, s68, {13*4096}\ns_lshl_b32 s3, s59, 12\ns_add_u32 s66, s68, s3\ns_mul_i32 s69, s58, {-2*TSTR}\ns_add_u32 s69, s69, {TSTR}\ns_lshl_b32 s70, s58, 10\ns_sub_u32 s70, s67, s70")
    e(f"s_mul_i32 s3, s58, 10240\nv_add_u32 v4, s3, v30\nv_add_u32 v5, s3, v31\nv_add_u32 v6, s3, v32\ns_mul_i32 s3, s58, 5120\nv_add_u32 v7, s3, v31")
    def xl5(ks):
        pre = ""
        if ks == 26: pre = "s_mov_b32 s66, s70\n"
        elif ks and ks % 2 == 0: pre = "s_add_u32 s66, s66, 4096\ns_cmp_ge_u32 s66, s67\ns_cselect_b32 s66, s68, s66\n"
        if ks % 2 == 0: pre += "s_add_u32 s20, s66, s69\n"
        return [pre + f"buffer_load_dwordx4 {{r}}, v30, s[8:11], s66 offen offset:{(ks%2)*1024} {PL}", f"buffer_load_dwordx4 {{r}}, v30, s[8:11], s20 offen offset:{(ks%2)*1024} {PL}"]
    def wa5(ks, nt):
        off = ((ks // 2 + 5) % 7) * WSL + ((ks % 2) * 5 + nt) * 1024
        return f"v7 offset:{off & 0xffff}" if ks == 26 else f"v{4 + (off >> 16)} offset:{off & 0xffff}"
    e("s_barrier")
    g.stamp("c", "5")
    XW5 = [164 + 4 * i for i in range(18)] + [8, 12, 16, 20, 24, 36]
    xgemm(g, vm, 27, 2, 5, 64, XW5, [104, 124, 144], wa5, xl5,
          barrier_at=set(range(2, 22, 2)), st=("i5", (0, 1, 2, 4, 8, 12, 16, 20, 24)), pre=g.o.get("pre5", 3))
    e(f"s_xor_b32 s3, s22, 1\ns_mul_i32 s3, s3, 5120\nv_add_u32 v4, s3, v31\ns_mul_i32 s3, s22, 5120\nv_add_u32 v5, s3, v31\ns_nop 7")
    for nt in range(5): e(f"ds_write_b128 v4, {R(84+4*nt)} offset:{(5*WSL + nt*1024) & 0xffff}")
    e("s_waitcnt lgkmcnt(0)\ns_barrier")
    for nt in range(5): e(f"ds_read_b128 {R(8+4*nt)}, v5 offset:{(5*WSL + nt*1024) & 0xffff}")
    g.stamp("c", "5")
    unpack(g, XK, 84, 10)
    e("s_waitcnt lgkmcnt(0)")
    for i in range(10): e(f"v_pk_add_f32 {R(8+2*i,2)}, {R(8+2*i,2)}, {R(64+2*i,2)}")
    unpack(g, X1K, 64, 10)
    e(f"s_mov_b32 s54, {hx(f2u(-1.4426950408889634))}\ns_mov_b32 s55, s54")
    for i in range(10): e(f"v_pk_add_f32 {R(8+2*i,2)}, {R(8+2*i,2)}, {R(64+2*i,2)}")
    for i in range(10): e(f"v_pk_mul_f32 {R(64+2*i,2)}, {R(8+2*i,2)}, s[54:55]")
    for i in range(20): e(f"v_exp_f32 v{64+i}, v{64+i}")
    for i in range(10): e(f"v_pk_add_f32 {R(64+2*i,2)}, {R(64+2*i,2)}, 1.0 op_sel_hi:[1,0]")
    for i in range(20): e(f"v_rcp_f32 v{64+i}, v{64+i}")
    for i in range(10): e(f"v_pk_mul_f32 {R(8+2*i,2)}, {R(8+2*i,2)}, {R(SA+2*i,2)}")
    for i in range(10): e(f"v_pk_fma_f32 {R(8+2*i,2)}, {R(8+2*i,2)}, {R(64+2*i,2)}, {R(84+2*i,2)}")
    store_tile(g, 8, 128, ("v28", "v29"), "s60", "s61", 0, srd="s[16:19]", pstep=64, pol=g.o.get("outpol", ""))
    g.stamp("c")

def rot5(g):
    if g.o.get("rot", 0): g.e("s_lshr_b32 s3, s28, 1\ns_add_u32 s59, s28, s3")
    else: g.e("s_mov_b32 s59, 0")

def loader(g, kind):
    e = g.e; o = g.o; stop = o.get("stop", 5); vm = VM(g)
    wv = kind; kind = kind[0]
    e(f"L{wv}load:")
    if o.get("lprio", 0): e(f"s_setprio {o['lprio']}")
    e("s_and_b32 s58, s22, 1\nv_lshlrev_b32 v2, 4, v1")
    if kind == "x":
        e("v_lshrrev_b32 v4, 3, v1\nv_and_b32 v5, 7, v1\nv_lshrrev_b32 v6, 1, v4\nv_xor_b32 v5, v5, v6\nv_mul_u32_u24 v4, 1280, v4\nv_lshl_add_u32 v8, v5, 4, v4\nv_xor_b32 v9, 64, v8")
        e("s_lshl_b32 s3, s23, 1\ns_add_u32 s3, s3, s58\ns_mul_i32 s66, s3, 81920\ns_mov_b32 s64, 128")
    else:
        e("s_movk_i32 s60, 3840\ns_cmp_ge_u32 s24, 12\ns_cselect_b32 s60, 1280, s60\ns_cselect_b32 s3, 12, 0\ns_sub_u32 s3, s24, s3\ns_mul_i32 s61, s3, 320")
        for d in range(5):
            e(f"v_add_u32 v4, {64*d}, v1\nv_mul_u32_u24 v5, 3277, v4\nv_lshrrev_b32 v5, 16, v5\nv_mul_u32_u24 v6, 20, v5\nv_sub_u32 v6, v4, v6")
            e(f"v_lshrrev_b32 v7, 2, v5\nv_and_b32 v7, 2, v7\nv_xor_b32 v6, v6, v7\nv_mul_lo_u32 v5, v5, s60\nv_lshl_add_u32 v{8+d}, v6, 4, v5")
        e("s_lshl_b32 s3, s58, 5\ns_mul_i32 s66, s3, s60\ns_add_u32 s66, s66, s61\ns_lshl_b32 s64, s60, 6\ns_lshl_b32 s67, s60, 4")
    e("s_add_u32 s3, s23, s24\ns_mul_i32 s3, s3, 3"); g.sdiv("s29", "s3", 10, 128)
    e("s_mul_i32 s29, s29, 10\ns_sub_u32 s59, s3, s29")
    if not o.get("rot1", 1): e("s_mov_b32 s59, 0")
    if o.get("rot1", 1) == 2: e("s_add_u32 s3, s23, s24\ns_and_b32 s3, s3, 1\ns_mul_i32 s59, s3, 5")
    if o.get("rot1", 1) == 4: e("s_add_u32 s3, s23, s24\ns_and_b32 s3, s3, 3\ns_mul_i32 s3, s3, 5\ns_lshr_b32 s59, s3, 1")
    e("s_mul_i32 s65, s64, 10\ns_add_u32 s63, s66, s65\ns_mul_i32 s3, s59, s64\ns_add_u32 s62, s66, s3")
    def dma(vo, srd, so, off, k, pol): vm.op(f"buffer_load_dwordx4 {vo}, {srd}, {so} offen offset:{off} {pol} lds", k)
    def adv(): e("s_add_u32 s62, s62, s64\ns_cmp_ge_u32 s62, s63\ns_cselect_b32 s3, s65, 0\ns_sub_u32 s62, s62, s3")
    def issue1(k):
        sl = (k % 4) * SLOT
        if kind == "x":
            e(f"s_lshl_b32 s3, s58, 13\ns_add_u32 s68, s3, {sl}\ns_mov_b32 s69, s62")
            for i in range(8):
                e(f"s_add_u32 m0, s68, {i*1024}"); e("s_add_u32 s69, s69, 10240" if i else "s_nop 0")
                dma(f"v{8+(i&1)}", "s[4:7]", "s69", 0, k, "")
        else:
            e(f"s_mul_i32 s3, s58, 10240\ns_add_u32 s68, s3, {sl+WOFF}\ns_add_u32 s69, s62, s67")
            for grp in range(2):
                for d in range(5):
                    e(f"s_add_u32 m0, s68, {grp*5120+d*1024}\ns_nop 0")
                    dma(f"v{8+d}", "s[12:15]", "s69" if grp else "s62", 0, k, "")
        adv()
    def only(w, fn):
        sk = g.lab("Lonly"); e(f"s_cmp_lg_u32 s22, {w}\ns_cbranch_scc1 {sk}"); fn(); e(f"{sk}:")
    PRE, PS, PLD, PC = o.get("pre1", 2), o.get("ps", 1), o.get("pld", 4), o.get("pc", 5)
    PI2, PF2 = o.get("pi2", 2), o.get("pf2", 5); PSB = o.get("psb", 7 if PI2 >= 0 else 3); sched = [int(c, 36) for c in str(o.get("sch", "x8aaaa"))[1:]]
    if wv == "x4": g.stamp("x", "i0")
    issue1(0)
    if wv == "x4":
        g.stamp("x", "i0")
        e(f"s_and_b32 s3, s2, 7\ns_lshl_b32 s3, s3, 10\ns_add_u32 s3, s3, {hx(F_PK)}\nv_add_u32 v16, s3, v2\nv_lshlrev_b32 v17, 10, v1\nv_mov_b32 v18, 1\nv_mov_b32 v15, 0\nv_mov_b32 v19, {LCNT}")
    else:
        e(f"s_sub_u32 s3, s22, 5\ns_lshl_b32 s100, s3, 8\ns_add_u32 s100, s100, s2\ns_cmp_ge_u32 s100, 740\ns_cselect_b32 s29, 256, 0\ns_sub_u32 s100, s100, s29\ns_add_u32 s100, s100, 740\ns_lshl_b32 s101, s3, 12\ns_add_u32 s101, s101, {3*SLOT if PI2 < 0 else MISC+4096}")
        if PI2 < 0: g.pk_setup(); e("s_call_b64 s[70:71], Lpk_issue"); vm.ops += ["pk"] * 4
    for k in range(1, PRE): issue1(k)
    if wv != "x4":
        if PI2 >= 0: g.pk_setup()
        for rr in range(ONES, ONES + 4): e(f"v_mov_b32 v{rr}, 0x3f803f80")
    if wv == "x4": g.stamp("x")
    e(f"s_sub_u32 s3, s22, 4\ns_mul_i32 s3, s3, 25600\ns_mul_i32 s56, s28, 102400\ns_add_u32 s56, s56, s3\ns_add_u32 s56, s56, {hx(W2P)}\nv_add_u32 v3, s3, v2")
    e(f"s_mul_i32 s57, s39, 143360\ns_add_u32 s57, s57, s3\ns_add_u32 s57, s57, {hx(W3P)}")
    todo = g.todo = []
    for (sr, r0, tag) in (("s56", 120, "w2"), ("s57", 20, "w3")):
        for q in range(25):
            todo.append(((f"s_add_u32 {sr}, {sr}, 4096\n" if q and q % 4 == 0 else "") + f"buffer_load_dwordx4 {R(r0+4*q)}, v2, s[8:11], {sr} offen offset:{(q % 4) * 1024} {PL}", tag))
    def flag(base):
        e(f"s_lshl_b32 s70, s2, 2\ns_add_u32 s70, s70, {hx(base)}\ns_mov_b64 exec, 0xff"); vm.op("buffer_store_dword v18, v17, s[8:11], s70 offen sc1"); e("s_mov_b64 exec, -1")
    for k in range(10):
        vm.wait(k)
        if k == PSB: vm.wait("pks")
        if wv == "x4" and k < 2: g.stamp("x", "i0")
        if k == PC and wv == "x4":
            vm.wait("pkc"); g.pk_check("v16", 224)
        e("s_barrier")
        if wv == "x4" and k == PS - 1: vm.op("global_load_dword v14, v15, s[50:51]", "ini")
        if wv == "x4" and k == PLD: vm.op("buffer_load_dwordx4 v[224:227], v16, s[8:11], 0 offen sc1", "pkc")
        if wv == "x4" and k == PS:
            vm.wait("ini")
            l0, l1 = g.lab("Lini"), g.lab("Linix")
            e(f"s_mov_b32 s31, 0\n{l0}:\nv_cmp_eq_u32 vcc, 0, v14\ns_cbranch_vccz {l1}\ns_add_u32 s31, s31, 1\ns_cmp_gt_u32 s31, 400000\ns_cbranch_scc1 {l1}")
            e(f"global_load_dword v14, v15, s[50:51] sc0 sc1\ns_waitcnt vmcnt(0)\ns_branch {l0}\n{l1}:")
            flag(F_PK)
        if wv == "x4" and k == PSB: flag(F_PKB); vm.ops.pop()
        if k == 0:
            for kk in range(PRE, 3 if PI2 < 0 else 4): issue1(kk)
            if wv != "x4" and PI2 < 0: vm.wait("pk"); e("s_call_b64 s[70:71], Lpk_fin"); vm.ops += ["pks"] * 8
            if wv == "x4": e("v_mov_b32 v20, 0\nv_mov_b32 v21, 0\nds_write_b64 v19, v[20:21]\nds_write_b64 v19, v[20:21] offset:8\ns_waitcnt lgkmcnt(0)")
        if k == 1 and PI2 < 0: issue1(3)
        if 1 <= k <= 6: vm.room(10); issue1(k + 3)
        if wv != "x4" and k == PI2: e("s_call_b64 s[70:71], Lpk_issue"); vm.ops += ["pk"] * 4
        if wv != "x4" and k == PF2 and PI2 >= 0: vm.wait("pk"); vm.room(8); e("s_call_b64 s[70:71], Lpk_fin"); vm.ops += ["pks"] * 8
        if k >= PC:
            for _ in range(min(sched[k - PC], len(todo))):
                vm.room(1); vm.op(*todo.pop(0))
    assert getattr(g, 'tail_ops', vm.ops) == vm.ops
    g.tail_ops = [t for t in vm.ops]
    assert PSB > PS and PF2 < 6
    if wv != "w": e("s_branch Ltail")

def loader_tail(g):
    e = g.e; o = g.o; stop = o.get("stop", 5); vm = VM(g)
    e("Ltail:\ns_sub_u32 s58, s22, 4")
    if o.get("lprio", 0): e("s_setprio 0")
    def only(w, fn):
        sk = g.lab("Lonly"); e(f"s_cmp_lg_u32 s22, {w}\ns_cbranch_scc1 {sk}"); fn(); e(f"{sk}:")
    def lin(n, ssrc, ldsbase, tag):
        e(f"s_mul_i32 s68, s58, {n*1024}\ns_add_u32 s68, s68, {ldsbase}")
        for q in range(n):
            if q % 4 == 0:
                vm.room(4)
                e(f"s_add_u32 m0, s68, {q*1024}"); e(f"s_add_u32 {ssrc}, {ssrc}, 4096" if q else "s_nop 0")
            vm.op(f"buffer_load_dwordx4 v2, s[8:11], {ssrc} offen offset:{(q % 4) * 1024} {PL} lds", tag)
    def ldreg(n, ssrc, r0, tag):
        for q in range(n):
            if q % 4 == 0:
                vm.room(4)
                if q: e(f"s_add_u32 {ssrc}, {ssrc}, 4096")
            vm.op(f"buffer_load_dwordx4 {R(r0+4*q)}, v2, s[8:11], {ssrc} offen offset:{(q % 4) * 1024} {PL}", tag)
    def wreg(n, va, off, r0):
        for q in range(n): e(f"ds_write_b128 {va}, {R(r0+4*q)} offset:{off+q*1024}")
    vm.ops = list(g.tail_ops); todo = g.todo
    assert all(t in ("w2", "w3") for t in vm.ops), vm.ops
    def some(n):
        for _ in range(min(n, len(todo))):
            vm.room(1); vm.op(*todo.pop(0))
    e(f"s_mul_i32 s67, s39, 143360\ns_add_u32 s67, s67, {hx(W3P)}")
    e("s_barrier")
    g.stamp("x")
    if stop >= 2:
        some(99)
        e("s_mul_i32 s3, s58, 10240\ns_add_u32 s69, s67, s3\ns_add_u32 s69, s69, 102400"); lin(10, "s69", 102400, "w3")
        vm.wait("w2"); g.stamp("x"); wreg(25, "v3", 0, 120); e("s_waitcnt lgkmcnt(0)")
        if o.get("inner") == 6: e("s_waitcnt vmcnt(0)"); g.stamp("x")
        def poll_h():
            e("s_and_b32 s3, s27, 1\ns_lshl_b32 s3, s3, 1\ns_add_u32 s3, s3, s25\ns_add_u32 s3, s3, 15\ns_and_b32 s67, s3, 15")
            jpoll("s67", "v_and_b32 v5, 3, v1\nv_add_u32 v5, 12, v5")
        def jpoll(other, slot):
            e(f"v_mov_b32 v4, s25\ns_mov_b32 exec_lo, 0\nv_mov_b32 v4, {other}\ns_mov_b32 exec_lo, -1\n{slot}")
            e(f"v_lshlrev_b32 v5, 2, v5\nv_lshl_add_u32 v4, v4, 7, v5\ns_and_b32 s3, s26, 3\ns_lshl_b32 s3, s3, 11\ns_add_u32 s3, s3, {hx(F_J1)}\nv_add_u32 v4, s3, v4\nv_mov_b32 v5, 1")
            g.poll("v4", "v5", "v6")
        def poll_q():
            e("s_max_u32 s67, s25, 1\ns_sub_u32 s67, s67, 1")
            jpoll("s67", "v_and_b32 v5, 15, v1\nv_min_u32 v5, 11, v5")
        def cs3():
            e("s_waitcnt vmcnt(40)")
            e(f"s_mul_i32 s69, s39, 8960\ns_add_u32 s69, s69, {hx(CSP + ((W3P-W2P)>>4))}\nv_and_b32 v4, 31, v1\nv_lshlrev_b32 v4, 4, v4\nv_lshrrev_b32 v5, 5, v1\nv_mul_u32_u24 v5, 4480, v5\nv_add_u32 v5, v5, v4")
            for i in range(10): e(f"buffer_load_dwordx4 {R(168+4*i)}, v5, s[8:11], s69 offen offset:{(448*i)} {PL}")
            e("s_waitcnt vmcnt(0)")
            for i in range(1, 10): e(f"v_pk_add_f32 v[168:169], v[168:169], {R(168+4*i,2)}\nv_pk_add_f32 v[170:171], v[170:171], {R(170+4*i,2)}")
            for r in range(4): e(f"v_mov_b32 v{172+r}, v{168+r}")
            e("s_nop 1")
            for r in range(4): e(f"v_permlane32_swap_b32 v{172+r}, v{168+r}")
            e(f"v_pk_add_f32 v[168:169], v[168:169], v[172:173]\nv_pk_add_f32 v[170:171], v[170:171], v[174:175]\nv_add_u32 v4, {CS3}, v4\nds_write_b128 v4, v[168:171]\ns_waitcnt lgkmcnt(0)")
        def pkb():
            e(f"s_and_b32 s3, s2, 7\ns_lshl_b32 s3, s3, 10\ns_add_u32 s3, s3, {hx(F_PKB)}\nv_add_u32 v16, s3, v2"); g.pk_check("v16", 224, True)
        only(5, cs3); pkb(); vm.drained()
        if o.get("wo", 2) == 2:
            e(f"s_mul_i32 s69, s28, 102400\ns_mul_i32 s3, s58, 25600\ns_add_u32 s69, s69, s3\ns_add_u32 s69, s69, {hx(WOP)}\nv_mov_b32 v4, {LCNT}\ns_mov_b32 s31, 0")
            e("Lspin:\nds_read_b32 v5, v4\ns_add_u32 s31, s31, 1\ns_cmp_gt_u32 s31, 400000\ns_cbranch_scc1 Lspinx\ns_waitcnt lgkmcnt(0)\nv_cmp_gt_u32 vcc, 4, v5\ns_cbranch_vccnz Lspin\nLspinx:")
            ldreg(25, "s69", 120, "wo")
        only(4, poll_h); g.stamp("x")
        e("s_barrier")
        def W4R(c): return 120 + 20 * (c - 2) if c < 7 else (20 + 20 * (c - 7) if c < 12 else 220)
        def adv(): e("s_add_u32 s62, s62, s64\ns_cmp_ge_u32 s62, s63\ns_cselect_b32 s3, s65, 0\ns_sub_u32 s62, s62, s3")
        C2 = 2 + o.get("nc2", 5)
        if stop >= 5:
            rot5(g)
            e(f"s_mul_i32 s66, s28, 276480\ns_mul_i32 s3, s58, 5120\ns_add_u32 s61, s66, {hx(W4P)}\ns_add_u32 s66, s61, s3\ns_movk_i32 s64, 20480\nv_add_u32 v11, s3, v2")
            e("s_mul_i32 s65, s64, 13\ns_add_u32 s63, s66, s65\ns_mul_i32 s3, s59, s64\ns_add_u32 s62, s66, s3\nv_add_u32 v12, 0x10000, v11\nv_add_u32 v13, 0x20000, v11")
            e("s_mov_b32 s56, s62"); adv(); e("s_mov_b32 s57, s62"); adv()
            e(f"s_add_u32 s61, s61, s65\ns_lshl_b32 s3, s58, 11\ns_add_u32 s60, s61, s3\nv_add_u32 v14, s3, v2\ns_and_b32 s3, s58, 1\ns_lshl_b32 s3, s3, 10\ns_add_u32 s3, s3, 8192\ns_add_u32 s61, s61, s3\nv_add_u32 v15, s3, v2")
            e(f"v_add_u32 v14, {4*WSL}, v14\nv_add_u32 v15, {4*WSL}, v15")
        only(4, poll_q)
        e("s_waitcnt vmcnt(0)\ns_barrier"); vm.drained()
        WO = o.get("wo", 2)
        if WO:
            e(f"s_mul_i32 s69, s28, 102400\ns_mul_i32 s3, s58, 25600\ns_add_u32 s69, s69, s3\ns_add_u32 s69, s69, {hx(WOP)}\ns_mov_b32 s55, s62")
            if WO == 1: ldreg(25, "s69", 120, "wo")
            C2 = 7
            for c in range(5): adv()
        elif stop >= 5:
            for c in range(2, C2):
                e("s_mov_b32 s69, s62"); ldreg(5, "s69", W4R(c), c); adv()
        e("s_barrier")
    if stop >= 3:
        wreg(25, "v3", 0, 20)
        if stop >= 5 and o.get("nc3", 5):
            e("s_waitcnt lgkmcnt(0)")
            if o.get("spin2", 0):
                e(f"v_mov_b32 v4, {LCNT+4}\ns_mov_b32 s31, 0\nLspin2:\nds_read_b32 v5, v4\ns_add_u32 s31, s31, 1\ns_cmp_gt_u32 s31, 400000\ns_cbranch_scc1 Lspin2x\ns_waitcnt lgkmcnt(0)\nv_cmp_gt_u32 vcc, 4, v5\ns_cbranch_vccnz Lspin2\nLspin2x:")
            for c in range(C2, C2 + o.get("nc3", 5)):
                e("s_mov_b32 s69, s62"); ldreg(5, "s69", W4R(c), c); adv()
            C2 += o.get("nc3", 5)
        only(4, lambda: g.pollg(F_X1, 7, 15, rb="s38")); g.stamp("x")
        e("s_waitcnt lgkmcnt(0)\ns_barrier")
        if stop >= 5:
            e("s_barrier")
            def fo(): g.pollg(F_O, 8, 63)
            only(4, fo); g.stamp("x")
            for c in range(C2, 13):
                e("s_mov_b32 s69, s62"); ldreg(5, "s69", W4R(c), c); adv()
            ldreg(2, "s60", 240, 13); ldreg(1, "s61", 248, 13)
        e("s_barrier")
    if stop >= 5:
        e(f"s_mul_i32 s69, s28, 102400\ns_mul_i32 s3, s58, 25600\ns_add_u32 s69, s69, s3\ns_add_u32 s69, s69, {hx(WOP)}")
        if WO: vm.wait("wo"); wreg(25, "v3", 0, 120)
        else: lin(25, "s69", 0, "w")
        lin(5, "s56", 5 * WSL, 0); lin(5, "s57", 6 * WSL, 1); vm.wait("w")
        g.stamp("x")
        e("s_waitcnt lgkmcnt(0)\ns_barrier")
        if WO:
            e("s_mov_b32 s62, s55")
            for c in range(2, 7):
                e("s_mov_b32 s69, s62"); ldreg(5, "s69", W4R(c), c); adv()
        def w5(c):
            if c == 13: e("ds_write_b128 v14, v[240:243]\nds_write_b128 v14, v[244:247] offset:1024\nds_write_b128 v15, v[248:251]"); return
            off = ((c + 5) % 7) * WSL
            for q in range(5):
                a = off + q * 1024
                e(f"ds_write_b128 v{11+(a>>16)}, {R(W4R(c)+4*q)} offset:{a & 0xffff}")
        def ft(): g.pollg(F_T, 7, 15)
        only(4, ft); g.stamp("x")
        vm.wait(1)
        for c in range(11):
            e(f"s_waitcnt lgkmcnt({0 if c == 10 or not o.get('lag', 1) else 15})\ns_barrier")
            if c == 0:
                for cc in range(2, 7 if not WO else 4): vm.wait(cc); w5(cc)
            if c == 1 and WO:
                for cc in range(4, 7): vm.wait(cc); w5(cc)
            if 7 <= c + 5 <= 13: w5(c + 5)
    if o.get("stamps"):
        e("s_cmp_lg_u32 s22, 4\ns_cbranch_scc1 Lend"); g.dump_stamps("x", 1)
    e("s_endpgm")

def main(opt):
    g = G(opt); e = g.e; stop = opt.get("stop", 5)
    hdr = open("cdna_kernels/" + NAME + ".s.ref").read().split("\n")
    hdr = [l for l in hdr if l.startswith(";") and "@launch" not in l]
    out = hdr + ["; @launch grid=(256,1,1) block=(512,1,1) lds=163840",
        '.amdgcn_target "amdgcn-amd-amdhsa--gfx950"', ".text", f".globl {NAME}_kernel", ".p2align 8",
        f".type {NAME}_kernel,@function", f"{NAME}_kernel:"]
    prologue(g)
    lay = opt.get("lay", 0)
    if lay:
        e("s_branch Lcons"); packer_subs(g)
        if lay == 2: loader(g, "x4"); loader(g, "x5"); loader(g, "w"); loader_tail(g)
        e("Lcons:")
    j1_consumer(g)
    if stop >= 2: j2_consumer(g)
    if stop >= 3: j345_consumer(g)
    if opt.get("stamps"):
        e("s_cmp_lg_u32 s22, 0\ns_cbranch_scc1 Lend"); g.dump_stamps("c", 0)
    e("Lend:\ns_endpgm")
    if not lay: packer_subs(g)
    if lay != 2: loader(g, "x4"); loader(g, "x5"); loader(g, "w"); loader_tail(g)
    if "ldpol" in opt: g.L = [l.replace(" sc1", (" " + opt["ldpol"]) if opt["ldpol"] != "none" else "") if ("buffer_load_dwordx" in l and "v[224:227], v16" not in l) else l for l in g.L]
    if "stpol" in opt: g.L = [l.replace(" sc1", (" " + opt["stpol"]) if opt["stpol"] != "none" else "") if ("buffer_store_dwordx" in l and "sc0" not in l) else l for l in g.L]
    out += g.L
    out += ['.section .rodata,"a"', ".p2align 6", f".amdhsa_kernel {NAME}_kernel", "  .amdhsa_next_free_vgpr 256", "  .amdhsa_next_free_sgpr 102",
        "  .amdhsa_accum_offset 256", "  .amdhsa_group_segment_fixed_size 0", "  .amdhsa_kernarg_size 88", "  .amdhsa_user_sgpr_count 2",
        "  .amdhsa_user_sgpr_kernarg_segment_ptr 1", "  .amdhsa_system_sgpr_workgroup_id_x 1", ".end_amdhsa_kernel"]
    return "\n".join(out) + "\n"

if __name__ == "__main__":
    opt = {}
    for a in sys.argv[2:]:
        k, v = a.split("=")
        opt[k] = int(v) if v.lstrip("-").isdigit() else v.replace("_", " ")
    open(sys.argv[1], "w").write(main(opt))
```

```python
import sys, struct
NAME = "recurrent_scan__sliding_local_dilated__mixer_s_mlp__prompt"
def f2u(x): return struct.unpack("<I", struct.pack("<f", x))[0]
def hx(x): return "0x%x" % (x & 0xffffffff)

QF, KF, VF, HF = 0x0, 0x280000, 0x500000, 0x780000
X1F, OF, TF = 0xA00000, 0xC80000, 0xF00000
TSTR = 57344 + int([a for a in sys.argv if a.startswith('tpad=')][0][5:]) if any(a.startswith('tpad=') for a in sys.argv) else 57344
W2P, WOP, W3P, W4P = 0x1600000, 0x16C8000, 0x1790000, 0x19C0000
STAT, PST, CNT, CSP = 0x1C00000, 0x1C10000, 0x1C40000, 0x1C80000
WS_REC = 0x2000000
STAMP_OFF = 0x8000000
C_PKB = 8
WSL = 20480
C_PK, C_H, C_QKV, C_X1, C_O, C_T = 0, 16, 32, 48, 64, 80
SLOT, WOFF, MISC = 36864, 16384, 147456
F_PK, F_J1, F_X1, F_T, F_O = CNT, CNT + 8192, CNT + 16384, CNT + 18432, CNT + 20480
F_PKB = CNT + 24576
LCNT, CS3 = MISC + 3328, MISC + 3584
PL = "sc1"

class G:
    def __init__(s, opt):
        s.L = []; s.o = opt; s.nlab = 0; s.nstamp = {}
    def e(s, t):
        for x in t.split("\n"): s.L.append("    " + x.strip() if not x.strip().endswith(":") else x.strip())
    def lab(s, p="L"):
        s.nlab += 1; return f"{p}{s.nlab}"
    def stamp(s, role, name="."):
        if not s.o.get("stamps"): return
        inner = str(s.o.get("inner", ""))
        if role == "x" and name.startswith("i") and inner != "0": return
        if role == "c" and s.nstamp.get(role, 0) > 0:
            if inner and inner not in name: return
            if not inner and name.startswith("i"): return
        i = s.nstamp.get(role, 0); s.nstamp[role] = i + 1
        assert i < 14
        s.e(f"s_memrealtime s[{72+2*i}:{73+2*i}]")
    def dump_stamps(s, role, slot):
        if not s.o.get("stamps"): return
        n = s.nstamp.get(role, 0)
        s.e(f"s_waitcnt lgkmcnt(0)\ns_add_u32 s52, s52, {hx(STAMP_OFF)}\ns_addc_u32 s53, s53, 0")
        s.e(f"s_mul_i32 s3, s2, 224\ns_add_u32 s3, s3, {slot*112}\nv_mov_b32 v2, s3\ns_mov_b64 exec, 1")
        for i in range(14):
            j = min(i, n - 1)
            s.e(f"v_mov_b32 v4, s{72+2*j}\nv_mov_b32 v5, s{73+2*j}\nglobal_store_dwordx2 v2, v[4:5], s[52:53] offset:{8*i}\ns_nop 1")
        s.e("s_mov_b64 exec, -1")
    def poll(s, vaddr, vexp, vtmp):
        l0, l1 = s.lab("Lpoll"), s.lab("Lpollx")
        s.e(f"s_mov_b32 s31, 0\n{l0}:")
        s.e(f"buffer_load_dword {vtmp}, {vaddr}, s[8:11], 0 offen {s.o.get('pollpol', 'sc1')}")
        s.e(f"s_add_u32 s31, s31, 1\ns_cmp_gt_u32 s31, 400000\ns_cbranch_scc1 {l1}")
        s.e(f"s_waitcnt vmcnt(0)\nv_cmp_lt_u32 vcc, {vtmp}, {vexp}\ns_cbranch_vccnz {l0}\n{l1}:\ns_waitcnt vmcnt(0)")
    def pollg(s, base, sh, mask, va="v4", vb="v5", vc="v6", rb="s25"):
        s.e(f"s_lshl_b32 s29, {rb}, {sh}\ns_add_u32 s29, s29, {hx(base)}\nv_and_b32 {va}, {mask}, v1\nv_lshl_add_u32 {va}, {va}, 2, s29\nv_mov_b32 {vb}, 1")
        s.poll(va, vb, vc)
    def pk_check(s, va, r, first=False):
        l0, l1, l2 = s.lab("Lpk"), s.lab("Lpkok"), s.lab("Lpkld")
        s.e("s_mov_b32 s31, 0" + (f"\ns_branch {l2}" if first else ""))
        s.e(f"{l0}:\nv_min_u32 v{r}, v{r}, v{r+1}\nv_min3_u32 v{r}, v{r}, v{r+2}, v{r+3}\nv_cmp_eq_u32 vcc, 0, v{r}\ns_cbranch_vccz {l1}\ns_add_u32 s31, s31, 1\ns_cmp_gt_u32 s31, 400000\ns_cbranch_scc1 {l1}")
        s.e(f"{l2}:\nbuffer_load_dwordx4 v[{r}:{r+3}], {va}, s[8:11], 0 offen sc1\ns_waitcnt vmcnt(0)\ns_branch {l0}\n{l1}:")
    def flag_off(s, base, srb, sh, sslot):
        s.e(f"s_lshl_b32 s70, {srb}, {sh}\ns_lshl_b32 s3, {sslot}, 2\ns_add_u32 s70, s70, s3\ns_add_u32 s70, s70, {hx(base)}")
    def signal(s, vt="v4"):
        s.e(f"v_mov_b32 {vt}, 1\ns_mov_b64 exec, 1\nbuffer_store_dword {vt}, off, s[8:11], s70 sc1\ns_mov_b64 exec, -1")
    def wsignal(s, k, rep=0, vt="v33"):
        l = s.lab("Lws")
        s.e(f"s_mov_b64 exec, 1\nv_mov_b32 v7, 1\nv_mov_b32 {vt}, {LCNT+4*k}\nds_add_rtn_u32 {vt}, {vt}, v7")
        s.e(f"s_waitcnt lgkmcnt(0)\nv_cmp_eq_u32 vcc, 3, {vt}\ns_cbranch_vccz {l}\n" + (f"s_mov_b64 exec, 15\nv_mov_b32 v7, 1\nv_lshlrev_b32 {vt}, 11, v1\nbuffer_store_dword v7, {vt}, s[8:11], s70 offen sc1" if rep else "buffer_store_dword v7, off, s[8:11], s70 sc1") + f"\n{l}:\ns_mov_b64 exec, -1")
    def pk_setup(s):
        s.e("s_mov_b32 s95, 0x20000\nv_lshrrev_b32 v236, 5, v1\nv_bfe_u32 v237, v1, 3, 2\nv_and_b32 v238, 7, v1\nv_lshlrev_b32 v238, 4, v238")
        s.e("v_lshrrev_b32 v239, 4, v1\nv_lshlrev_b32 v239, 3, v239\nv_bfe_u32 v240, v1, 2, 2\nv_add_u32 v239, v239, v240\nv_lshlrev_b32 v239, 7, v239\nv_and_b32 v240, 3, v1\nv_lshlrev_b32 v241, 2, v1\nv_lshlrev_b32 v251, 4, v1")
    def prefetch(s, vm, base, nlines, va, vd):
        s.e(f"s_lshr_b32 s3, s2, 3\ns_mul_i32 s3, s3, {nlines*128}\ns_add_u32 s3, s3, {hx(base)}\nv_lshlrev_b32 {va}, 7, v1")
        for q in range((nlines + 63) // 64):
            n = min(64, nlines - 64 * q)
            if n < 64: s.e(f"s_mov_b32 exec_lo, {hx((1 << min(n, 32)) - 1)}\ns_mov_b32 exec_hi, {hx((1 << max(n - 32, 0)) - 1)}")
            vm.op(f"buffer_load_dword {vd}, {va}, s[8:11], s3 offen", "pf")
            s.e("s_add_u32 s3, s3, 8192")
        s.e("s_mov_b64 exec, -1")
    def sdiv(s, dst, src, d, maxv):
        sh = 16; m = (1 << sh) // d + 1
        assert all((x * m) >> sh == x // d for x in range(maxv)), (d, maxv)
        s.e(f"s_mul_i32 {dst}, {src}, {m}\ns_lshr_b32 {dst}, {dst}, {sh}")
    def redg(s, v, t, op):
        s.e(f"v_mov_b32 {t}, {v}\ns_nop 1\nv_permlane32_swap_b32 {t}, {v}\n{op} {v}, {v}, {t}")
        s.e(f"v_mov_b32 {t}, {v}\ns_nop 1\nv_permlane16_swap_b32 {t}, {v}\n{op} {v}, {v}, {t}")

def R(b, n=4): return f"v[{b}:{b+n-1}]"
MF = "v_mfma_f32_16x16x32_bf16"
MF16 = "v_mfma_f32_16x16x16_bf16"
JOBS = [("J1", 10), ("J2", 5), ("J3", 10), ("J4", 5), ("J5", 14)]

def interleave(a, b):
    out = []; na, nb = len(a), len(b); j = 0
    for i, x in enumerate(a):
        out.append(x)
        while j < nb and (j + 1) * na <= (i + 1) * nb: out.append(b[j]); j += 1
    return out + b[j:]

GELU_C0 = -2 * 0.7978845608028654 * 1.4426950408889634
GELU_C1 = GELU_C0 * 0.044715
def gelu_pairs(g, regs, t0):
    c0 = R(t0 + 8, 2)
    for k in range(0, len(regs), 4):
        grp = regs[k:k + 4]
        T = [t0 + 2 * i for i in range(len(grp))]
        for y, t in zip(grp, T): g.e(f"v_pk_mul_f32 {R(t,2)}, {R(y,2)}, {R(y,2)}")
        for y, t in zip(grp, T): g.e(f"v_pk_fma_f32 {R(t,2)}, {R(t,2)}, s[54:55], {c0}")
        for y, t in zip(grp, T): g.e(f"v_pk_mul_f32 {R(t,2)}, {R(t,2)}, {R(y,2)}")
        for y, t in zip(grp, T): g.e(f"v_exp_f32 v{t}, v{t}\nv_exp_f32 v{t+1}, v{t+1}")
        if len(grp) < 2: g.e("s_nop 0")
        for y, t in zip(grp, T): g.e(f"v_pk_add_f32 {R(t,2)}, {R(t,2)}, 1.0 op_sel_hi:[1,0]")
        for y, t in zip(grp, T): g.e(f"v_rcp_f32 v{t}, v{t}\nv_rcp_f32 v{t+1}, v{t+1}")
        if len(grp) < 2: g.e("s_nop 0")
        for y, t in zip(grp, T): g.e(f"v_pk_mul_f32 {R(y,2)}, {R(y,2)}, {R(t,2)}")

def prologue(g):
    e = g.e; o = g.o
    e("s_cmp_ge_u32 s2, 256\ns_cbranch_scc1 Lend")
    g.stamp("c"); g.nstamp["x"] = g.nstamp.get("c", 0)
    e("s_load_dwordx16 s[32:47], s[0:1], 0\ns_load_dwordx4 s[48:51], s[0:1], 64\ns_load_dwordx2 s[52:53], s[0:1], 80")
    e("v_lshrrev_b32 v2, 6, v0\nv_and_b32 v1, 63, v0\ns_and_b32 s29, s2, 7\ns_lshr_b32 s30, s2, 3\nv_readfirstlane_b32 s22, v2")
    if o.get("scr"): e("s_lshr_b32 s29, s2, 5\ns_and_b32 s30, s2, 31")
    e("s_lshl_b32 s25, s29, 1\ns_lshr_b32 s3, s30, 4\ns_add_u32 s25, s25, s3\ns_and_b32 s26, s30, 15")
    e("s_lshl_b32 s27, s25, 1\ns_lshr_b32 s3, s26, 3\ns_add_u32 s27, s27, s3\ns_and_b32 s28, s26, 7")
    if o.get("map1", 3) == 3:
        e("s_lshr_b32 s23, s29, 2\ns_lshl_b32 s23, s23, 3\ns_lshr_b32 s3, s30, 2\ns_add_u32 s23, s23, s3")
        e("s_and_b32 s24, s29, 3\ns_lshl_b32 s24, s24, 2\ns_and_b32 s3, s30, 3\ns_add_u32 s24, s24, s3")
    elif o.get("map1", 3) == 2:
        e("s_lshr_b32 s23, s29, 1\ns_lshl_b32 s23, s23, 2\ns_lshr_b32 s3, s30, 3\ns_add_u32 s23, s23, s3")
        e("s_and_b32 s24, s29, 1\ns_lshl_b32 s24, s24, 3\ns_and_b32 s3, s30, 7\ns_add_u32 s24, s24, s3")
    elif o.get("map1", 3) == 1:
        e("s_lshr_b32 s23, s29, 1\ns_lshl_b32 s23, s23, 2\ns_lshr_b32 s3, s30, 3\ns_add_u32 s23, s23, s3")
        e("s_and_b32 s24, s30, 7\ns_lshl_b32 s24, s24, 1\ns_and_b32 s3, s29, 1\ns_add_u32 s24, s24, s3")
    else:
        e("s_mov_b32 s23, s25\ns_mov_b32 s24, s26")
    e("s_mov_b32 s6, 2621440\ns_mov_b32 s7, 0x20000\ns_mov_b32 s10, %s\ns_mov_b32 s11, 0x20000" % hx(WS_REC))
    e("s_mov_b32 s15, 0x20000\ns_mov_b32 s18, 2621440\ns_mov_b32 s19, 0x20000")
    e("s_waitcnt lgkmcnt(0)")
    g.stamp("c", "i0"); g.nstamp["x"] = g.nstamp.get("c", 0)
    e("s_mov_b32 s4, s32\ns_mov_b32 s5, s33\ns_mov_b32 s8, s52\ns_mov_b32 s9, s53\ns_mov_b32 s16, s48\ns_mov_b32 s17, s49")
    if o.get("map3", 0): e("s_lshr_b32 s38, s29, 1\ns_lshl_b32 s38, s38, 2\ns_lshr_b32 s3, s30, 3\ns_add_u32 s38, s38, s3\ns_and_b32 s39, s29, 1\ns_lshl_b32 s39, s39, 3\ns_add_u32 s39, s39, s28")
    else: e("s_mov_b32 s38, s25\ns_mov_b32 s39, s26")
    e("s_mov_b32 s14, 2457600\ns_mov_b32 s21, %d\ns_cmp_ge_u32 s24, 12\ns_cselect_b64 s[12:13], s[40:41], s[34:35]\ns_cselect_b32 s14, 819200, s14" % SLOT + "")
    e("s_cmp_ge_u32 s22, 6\ns_cbranch_scc1 Lwload\ns_cmp_eq_u32 s22, 5\ns_cbranch_scc1 Lx5load\ns_cmp_eq_u32 s22, 4\ns_cbranch_scc1 Lx4load")

def slot_adv(g, regs, scnt="s57"):
    g.e(f"s_add_u32 {scnt}, {scnt}, 1\ns_and_b32 {scnt}, {scnt}, 3\ns_cselect_b32 s3, s21, {hx(-3*SLOT)}")
    return [f"v_add_u32 v{r}, s3, v{r}" for r in regs]

ACC, SUM, SQ, CS, ONES = 64, 144, 160, 176, 196
def j1_consumer(g):
    e = g.e
    XA, WA, XB, WB = 200, 216, 8, 24
    if g.o.get("prio", 2): e("s_setprio 2")
    g.pk_setup()
    e("s_cmp_eq_u32 s22, 3\ns_cbranch_scc1 Lp0")
    e(f"s_lshl_b32 s100, s22, 8\ns_add_u32 s100, s100, s2\ns_cmp_ge_u32 s100, 740\ns_cselect_b32 s3, 256, 0\ns_sub_u32 s100, s100, s3\ns_lshl_b32 s101, s22, 12\ns_add_u32 s101, s101, {MISC}")
    g.stamp("c", "i0")
    e("s_call_b64 s[70:71], Lpk_issue\ns_branch Lp0x\nLp0:")
    e("s_cmp_lg_u32 s2, 0\ns_cbranch_scc1 Lp0x")
    for i in range(8, 12): e(f"v_mov_b32 v{i}, 0")
    for i in range(32): e((f"s_mov_b32 s3, {hx(CNT+1024*i)}\n" if i % 4 == 0 else "") + f"buffer_store_dwordx4 v[8:11], v251, s[8:11], s3 offen offset:{1024*(i%4)} sc0 sc1")
    e("s_waitcnt vmcnt(0)\nv_mov_b32 v4, 1\nglobal_store_dword v8, v4, s[50:51] sc0 sc1")
    if g.o.get("p0", 0):
        e("s_lshr_b32 s29, s2, 3\ns_lshr_b32 s3, s23, 3\ns_lshl_b32 s3, s3, 5\ns_add_u32 s3, s3, s29\ns_mul_i32 s30, s3, 40960")
        e("v_and_b32 v4, 31, v1\nv_mul_u32_u24 v4, 1280, v4\nv_lshrrev_b32 v5, 5, v1\nv_lshl_add_u32 v4, v5, 7, v4")
        e("s_movk_i32 s60, 3840\ns_cmp_ge_u32 s24, 12\ns_cselect_b32 s60, 1280, s60\ns_cselect_b32 s3, 12, 0\ns_sub_u32 s3, s24, s3\ns_lshr_b32 s3, s3, 2\ns_mul_i32 s61, s3, 1280")
        e("s_lshl_b32 s3, s29, 1\ns_mul_i32 s3, s3, s60\ns_add_u32 s61, s61, s3\ns_mul_i32 s62, s60, 192")
        e("v_mul_u32_u24 v5, 6554, v1\nv_lshrrev_b32 v5, 16, v5\nv_mul_u32_u24 v6, 10, v5\nv_sub_u32 v6, v1, v6")
        e("v_lshrrev_b32 v7, 1, v5\nv_and_b32 v5, 1, v5\nv_lshl_add_u32 v5, v7, 6, v5\nv_mul_lo_u32 v5, v5, s60\nv_lshl_add_u32 v5, v6, 7, v5")
        for t in ("w0", "x0", "x1", "w1", "x2", "w2", "x3", "x4", "w3"):
            q = int(t[1])
            if t[0] == "x": e(f"buffer_load_dword v8, v4, s[4:7], s30 offen offset:{256*q}")
            else:
                e("s_mov_b32 exec_hi, 0x0fffffff" if q < 3 else "s_mov_b64 exec, 0xfffff")
                e("buffer_load_dword v8, v5, s[12:15], s61 offen\ns_add_u32 s61, s61, s62\ns_mov_b64 exec, -1")
    e("Lp0x:")
    g.stamp("c", "i0"); g.stamp("c", "i0")
    e("s_lshr_b32 s58, s22, 1\ns_and_b32 s59, s22, 1\ns_xor_b32 s60, s58, s59")
    e("v_and_b32 v4, 15, v1\nv_lshrrev_b32 v5, 4, v1")
    e("s_lshl_b32 s3, s60, 2\nv_add_u32 v6, s3, v5\nv_lshrrev_b32 v7, 1, v4\nv_xor_b32 v6, v6, v7\nv_lshlrev_b32 v6, 4, v6")
    e("s_lshl_b32 s3, s58, 13\nv_lshlrev_b32 v7, 7, v4\nv_add3_u32 v2, v6, v7, s3\nv_xor_b32 v3, 64, v2")
    e("s_cmp_ge_u32 s24, 12\ns_cselect_b32 s61, 32, 40\ns_cselect_b32 s62, 8, 40\ns_cselect_b32 s63, 32, 160\ns_cselect_b32 s3, 256, 32")
    e("s_mul_i32 s63, s63, s59\ns_add_u32 s63, s63, s3")
    e("v_lshlrev_b32 v6, 3, v5\nv_bfe_u32 v7, v1, 2, 2\nv_add_u32 v6, v6, v7\nv_mul_u32_u24 v6, 320, v6")
    e("v_and_b32 v7, 3, v1\nv_and_b32 v54, 1, v5\nv_lshlrev_b32 v54, 5, v54")
    e(f"s_mul_i32 s64, s60, 10240\ns_add_u32 s64, s64, {WOFF}\ns_sub_u32 s65, {2*WOFF+10240}, s64")
    for nt in range(5):
        if nt < 4:
            e(f"s_lshl_b32 s3, s59, 2\ns_add_u32 s3, s3, {nt}\ns_mul_i32 s3, s3, s61\nv_lshlrev_b32 v55, 3, v7\nv_add_u32 v55, s3, v55")
        else:
            e("v_mul_lo_u32 v55, v7, s62\nv_add_u32 v55, s63, v55")
        e(f"v_xor_b32 v55, v55, v54\nv_add_u32 v55, v55, v6\nv_add_u32 v{44+nt}, s64, v55\nv_add_u32 v{49+nt}, s65, v55")
    for r in range(ACC, ONES): e(f"v_mov_b32 v{r}, 0")
    for r in range(ONES, ONES + 4): e(f"v_mov_b32 v{r}, 0x3f803f80")
    if not g.o.get("j1unr", 1):
        for r in range(XB, WB + 20): e(f"v_mov_b32 v{r}, 0")
    e("s_mov_b32 s57, 0\ns_mov_b32 s56, 0")
    if g.o.get("inner") == 0: e("s_memrealtime s[54:55]\ns_waitcnt vmcnt(0)\ns_memrealtime s[14:15]")
    if g.o.get("tlb", 0):
        e("s_cmp_lg_u32 s22, 3\ns_cbranch_scc1 Ltlbx\ns_lshr_b32 s3, s2, 3\ns_lshl_b32 s29, s3, 20\ns_min_u32 s30, s3, 19\ns_lshl_b32 s30, s30, 17\nv_lshlrev_b32 v56, 16, v1")
        e("s_mov_b64 exec, 0xffff\nbuffer_load_dword v57, v56, s[8:11], s29 offen sc1\ns_mov_b64 exec, 3\nbuffer_load_dword v58, v56, s[16:19], s30 offen sc1\ns_mov_b64 exec, -1\nLtlbx:")
    e("s_cmp_eq_u32 s22, 3\ns_cbranch_scc1 Lpk2b\ns_waitcnt vmcnt(0)\ns_call_b64 s[70:71], Lpk_fin\nLpk2b:")
    if g.o.get("inner") == 0: e("s_waitcnt lgkmcnt(0)\ns_mov_b64 s[82:83], s[54:55]\ns_mov_b64 s[84:85], s[14:15]"); g.nstamp["c"] += 2
    g.stamp("c", "i0")
    IMM = g.o.get("imm", 1) and g.o.get("j1unr", 1)
    if IMM:
        for i, r in enumerate([2, 3] + list(range(44, 54))): e(f"v_add_u32 v{236+i}, {2*SLOT}, v{r}")
    def reads(xa, wa0, X, W, it=0):
        L = []; o = 0
        if IMM:
            o = (it & 1) * SLOT
            if it & 2: xa += 234; wa0 += 194
        for rt in range(4): L.append(f"ds_read_b128 {R(X+4*rt)}, v{xa} offset:{o+rt*2048}")
        for nt in range(5):
            L.append(f"ds_read_b64_tr_b16 {R(W+4*nt,2)}, v{wa0+nt} offset:{o}")
            L.append(f"ds_read_b64_tr_b16 {R(W+4*nt+2,2)}, v{wa0+nt} offset:{o+1280}")
        return L
    DOT = g.o.get("dot", 0)
    def mf(X, W, vt, phaseA):
        L = []
        for nt in range(5):
            for rt in range(4):
                a, b = (R(X+4*rt), R(W+4*nt)) if vt else (R(W+4*nt), R(X+4*rt))
                L.append(f"{MF} {R(ACC+(rt*5+nt)*4)}, {a}, {b}, {R(ACC+(rt*5+nt)*4)}")
            if not phaseA and not DOT: L.append(f"{MF} {R(CS+4*nt)}, {R(ONES)}, {R(W+4*nt)}, {R(CS+4*nt)}")
        if DOT:
            V = []
            for r in range(4):
                if phaseA:
                    for rt in range(4): V += [f"v_dot2c_f32_bf16 v{SUM+4*rt}, v{X+4*rt+r}, v{ONES}", f"v_dot2c_f32_bf16 v{SQ+4*rt}, v{X+4*rt+r}, v{X+4*rt+r}"]
                else:
                    for nt in range(5): V.append(f"v_dot2c_f32_bf16 v{CS+4*nt}, v{W+4*nt+r}, v{ONES}")
            d0 = g.o.get("dot0", 4)
            per = [[] for _ in L]
            for i, v in enumerate(V): per[d0 + i * (len(L) - d0) // len(V)].append(v)
            L = ["\n".join([m] + p) for m, p in zip(L, per)]
        elif phaseA:
            for rt in range(4):
                L.append(f"{MF} {R(SUM+4*rt)}, {R(ONES)}, {R(X+4*rt)}, {R(SUM+4*rt)}")
                L.append(f"{MF} {R(SQ+4*rt)}, {R(X+4*rt)}, {R(X+4*rt)}, {R(SQ+4*rt)}")
        return L
    e("s_lshr_b32 s3, s24, 2\ns_cmp_eq_u32 s3, 2\ns_cbranch_scc1 Lj1v")
    DEN = g.o.get("j1den", 14)
    UNR = g.o.get("j1unr", 1)
    for vt in (0, 1):
        lp = "Lj1v" if vt else "Lj1n"
        e(f"{lp}:")
        mB = mf(XB, WB, vt, False); mA = mf(XA, WA, vt, True)
        for it in range(10 if UNR else 1):
            if it == g.o.get("ps", 1): e("s_waitcnt vmcnt(0)")
            if not UNR: e(f"s_cmp_eq_u32 s56, 0\ns_cbranch_scc1 {lp}w\ns_waitcnt vmcnt(0)\n{lp}w:")
            e("s_barrier")
            if vt and it == 0 and g.o.get("inner") == 1: g.nstamp["c"] -= 10
            if vt and it == 0 and g.o.get("inner") == 0: g.nstamp["c"] -= 2
            g.stamp("c", "i1" if it > 1 else "i01")
            if UNR and it == 0:
                for x in reads(2, 44, XA, WA, it): e(x)
            else:
                for x in interleave(mB[:DEN], reads(2, 44, XA, WA, it)) + mB[DEN:]: e(x)
            e("s_waitcnt lgkmcnt(0)")
            for x in interleave(mA[:DEN], reads(3, 49, XB, WB, it)): e(x)
            adv = [] if IMM else slot_adv(g, [2, 3] + list(range(44, 54)))
            for x in interleave(mA[DEN:], adv): e(x)
            e("s_waitcnt lgkmcnt(0)")
        if not UNR: e(f"s_add_u32 s56, s56, 1\ns_cmp_lt_u32 s56, 10\ns_cbranch_scc1 {lp}")
        for x in mB: e(x)
        if not vt: e("s_branch Lj1done")
    e("Lj1done:")
    g.stamp("c", "16")
    e(f"s_lshl_b32 s3, s59, 9\ns_lshl_b32 s29, s58, 8\ns_add_u32 s3, s3, s29\ns_add_u32 s3, s3, {MISC}\nv_lshlrev_b32 v6, 2, v4\nv_add_u32 v6, s3, v6")
    e(f"s_mul_i32 s3, s58, 640\ns_mul_i32 s29, s59, 320\ns_add_u32 s3, s3, s29\ns_add_u32 s3, s3, {MISC+2048}\nv_lshlrev_b32 v7, 2, v4\nv_add_u32 v7, s3, v7")
    if DOT:
        vals = [SUM + 4 * i for i in range(13)]
        for sw in ("v_permlane32_swap_b32", "v_permlane16_swap_b32"):
            for v in vals: e(f"v_mov_b32 v{v+1}, v{v}")
            for v in vals: e(f"{sw} v{v+1}, v{v}")
            for v in vals: e(f"v_add_f32 v{v}, v{v}, v{v+1}")
    else:
        e("s_mov_b32 s60, 0x22222222\ns_mov_b32 s61, s60\ns_mov_b32 s62, 0x44444444\ns_mov_b32 s63, s62\ns_mov_b32 s64, 0x88888888\ns_mov_b32 s65, s64\ns_nop 3")
        for rt in range(4):
            q = SQ + 4 * rt
            e(f"v_cndmask_b32 v{q}, v{q}, v{q+1}, s[60:61]\nv_cndmask_b32 v{q}, v{q}, v{q+2}, s[62:63]\nv_cndmask_b32 v{q}, v{q}, v{q+3}, s[64:65]")
    e("s_mov_b32 exec_lo, 0x00f0000f\ns_mov_b32 exec_hi, 0xf0000f00")
    for rt in range(4):
        e(f"ds_write_b32 v6, v{SUM+4*rt} offset:{64*rt}\nds_write_b32 v6, v{SQ+4*rt} offset:{1024+64*rt}")
    for nt in range(5): e(f"ds_write_b32 v7, v{CS+4*nt} offset:{64*nt}")
    e("s_mov_b64 exec, -1\ns_waitcnt lgkmcnt(0)\ns_barrier")
    g.stamp("c", "i6")
    e("s_lshr_b32 s61, s24, 2\ns_and_b32 s62, s24, 3")
    e(f"s_mul_i32 s60, s61, {KF}\ns_mul_i32 s3, s62, 5120\ns_add_u32 s60, s60, s3\ns_lshl_b32 s3, s59, 11\ns_add_u32 s63, s60, s3")
    e("s_lshl_b32 s3, s59, 9\ns_add_u32 s64, s60, s3\ns_add_u32 s64, s64, 4096")
    e("v_lshrrev_b32 v3, 1, v5\nv_sub_u32 v3, v5, v3\nv_lshlrev_b32 v3, 8, v3\nv_and_b32 v2, 1, v5\nv_lshlrev_b32 v2, 3, v2\nv_sub_u32 v3, v3, v2")
    e("s_lshl_b32 s65, s23, 7\ns_lshl_b32 s3, s58, 6\ns_add_u32 s65, s65, s3")
    inv = hx(f2u(1.0 / 640)); eps = hx(f2u(1e-5))
    e(f"s_mov_b32 s66, {inv}\ns_mov_b32 s67, {eps}")
    e("s_cmp_eq_u32 s61, 2\ns_cbranch_scc1 Lj1ev")
    e(f"s_lshl_b32 s3, s58, 8\ns_add_u32 s3, s3, {MISC}\nv_lshlrev_b32 v6, 2, v4\nv_add_u32 v6, s3, v6")
    e(f"s_mul_i32 s3, s59, 320\ns_add_u32 s3, s3, {MISC+2048}\nv_lshlrev_b32 v7, 4, v5\nv_add_u32 v7, s3, v7")
    for rt in range(4):
        e(f"ds_read2_b32 {R(8+4*rt,2)}, v6 offset0:{16*rt} offset1:{128+16*rt}")
        e(f"ds_read_b32 v{10+4*rt}, v6 offset:{1024+64*rt}\nds_read_b32 v{11+4*rt}, v6 offset:{1536+64*rt}")
    for nt in range(5):
        e(f"ds_read_b128 {R(144+4*nt)}, v7 offset:{64*nt}\nds_read_b128 {R(164+4*nt)}, v7 offset:{640+64*nt}")
    e("s_lshr_b32 s3, s62, 1\ns_add_u32 s3, s3, 1\ns_sub_u32 s29, 0, s3\ns_bitcmp1_b32 s62, 0\ns_cselect_b32 s3, s29, s3\ns_cmp_eq_u32 s61, 3\ns_cselect_b32 s68, s3, 0")
    e("s_add_u32 s3, s65, s68\nv_add_u32 v24, s3, v4\ns_movk_i32 s69, 0x5000")
    for rt in range(4):
        e(f"v_add_u32 v25, {16*rt}, v24\nv_and_b32 v26, 0x7ff, v25\nv_cmp_eq_u32 s[{70+0}:{71}], v25, v26" if False else
          f"v_add_u32 v25, {16*rt}, v24\nv_and_b32 v26, 0x7ff, v25\nv_cmp_eq_u32 vcc, v25, v26")
        e(f"v_lshrrev_b32 v25, 4, v26\nv_and_b32 v26, 15, v26\nv_cndmask_b32 v{32+rt}, 0, 1.0, vcc")
        e(f"v_mul_lo_u32 v25, v25, s69\nv_lshl_add_u32 v26, v5, 4, v26\nv_lshl_add_u32 v{28+rt}, v26, 4, v25")
    e("s_waitcnt lgkmcnt(0)")
    for rt in range(4):
        b = 8 + 4 * rt
        e(f"v_add_f32 v{b}, v{b}, v{b+1}\nv_add_f32 v{b+2}, v{b+2}, v{b+3}\nv_mul_f32 v{b}, s66, v{b}\nv_mul_f32 v{b+2}, s66, v{b+2}")
        e(f"v_fma_f32 v{b+2}, -v{b}, v{b}, v{b+2}\nv_max_f32 v{b+2}, 0, v{b+2}\nv_add_f32 v{b+3}, s67, v{b+2}\nv_rsq_f32 v{b+1}, v{b+3}")
    for i in range(10): e(f"v_pk_add_f32 {R(144+2*i,2)}, {R(144+2*i,2)}, {R(164+2*i,2)}")
    e("s_cmp_lg_u32 s24, 12\ns_cbranch_scc1 Lj1nost\ns_cmp_lg_u32 s59, 0\ns_cbranch_scc1 Lj1nost")
    e(f"s_lshl_b32 s3, s65, 3\ns_add_u32 s3, s3, {hx(STAT)}\nv_lshlrev_b32 v6, 3, v4\ns_mov_b64 exec, 0xffff")
    for rt in range(4): e(f"buffer_store_dwordx2 {R(8+4*rt,2)}, v6, s[8:11], s3 offen offset:{128*rt} {PL}")
    e("s_mov_b64 exec, -1\nLj1nost:")
    e("s_cmp_lg_u32 s61, 3\ns_cbranch_scc1 Lj1nh")
    for rt in range(4):
        b = 8 + 4 * rt
        e(f"v_mul_f32 v{b+3}, v{b+1}, v{b+1}\nv_fma_f32 v{b+3}, v{b+3}, v{b+2}, s67\nv_rsq_f32 v{b+3}, v{b+3}\nv_mul_f32 v{b+2}, v{b+1}, v{32+rt}\nv_mul_f32 v{b+3}, v{b+2}, v{b+3}")
        e(f"v_mov_b32 v{b+2}, v{b}\n")
    e("s_branch Lj1nh2\nLj1nh:")
    for rt in range(4):
        b = 8 + 4 * rt
        e(f"v_mov_b32 v{b+2}, v{b}\nv_mov_b32 v{b+3}, v{b+1}")
    e("Lj1nh2:")
    g.stamp("c", "i6")
    e(f"s_mov_b32 s54, {hx(f2u(GELU_C1))}\ns_mov_b32 s55, s54\nv_mov_b32 v44, {hx(f2u(GELU_C0))}\nv_mov_b32 v45, v44")
    for rt in range(4):
        b = 8 + 4 * rt
        for nt in range(5):
            for h in range(2):
                a = ACC + (rt * 5 + nt) * 4 + 2 * h
                e(f"v_pk_fma_f32 {R(a,2)}, {R(144+4*nt+2*h,2)}, {R(b+2,2)}, {R(a,2)} op_sel_hi:[1,0,1] neg_lo:[1,0,0] neg_hi:[1,0,0]")
        for nt in range(5):
            for h in range(2):
                a = ACC + (rt * 5 + nt) * 4 + 2 * h
                e(f"v_pk_mul_f32 {R(a,2)}, {R(a,2)}, {R(b+2,2)} op_sel:[0,1] op_sel_hi:[1,1]")
        sk = g.lab("Lsk")
        e(f"s_cmp_lg_u32 s61, 3\ns_cbranch_scc1 {sk}")
        gelu_pairs(g, [ACC + rt * 20 + 2 * i for i in range(10)], 36)
        e(f"{sk}:")
        if not g.o.get("late1", 0): store_tile(g, ACC + rt * 20, 200 + 12 * (rt % 2), f"v{28+rt}", "s63", "s64", 0)
    g.stamp("c", "i6")
    if g.o.get("late1", 0):
        for rt in range(4): store_tile(g, ACC + rt * 20, ACC + rt * 20, f"v{28+rt}", "s63", "s64", 0)
    e("s_branch Lj1pub")
    e("Lj1ev:")
    e(f"s_lshl_b32 s3, s58, 8\ns_add_u32 s3, s3, {MISC}\nv_lshlrev_b32 v6, 4, v5\nv_add_u32 v6, s3, v6")
    e(f"s_mul_i32 s3, s59, 320\ns_add_u32 s3, s3, {MISC+2048}\nv_lshlrev_b32 v7, 2, v4\nv_add_u32 v7, s3, v7")
    for rt in range(4):
        e(f"ds_read_b128 {R(144+16*rt)}, v6 offset:{64*rt}\nds_read_b128 {R(148+16*rt)}, v6 offset:{512+64*rt}")
        e(f"ds_read_b128 {R(152+16*rt)}, v6 offset:{1024+64*rt}\nds_read_b128 {R(156+16*rt)}, v6 offset:{1536+64*rt}")
    for nt in range(5): e(f"ds_read2_b32 {R(8+2*nt,2)}, v7 offset0:{16*nt} offset1:{160+16*nt}")
    e("s_lshr_b32 s3, s65, 4\ns_mul_i32 s3, s3, 20480\nv_lshlrev_b32 v28, 4, v1\nv_add_u32 v28, s3, v28")
    for rt in range(1, 4): e(f"v_add_u32 v{28+rt}, {20480*rt}, v28")
    e("s_waitcnt lgkmcnt(0)")
    for nt in range(5): e(f"v_add_f32 v{8+2*nt}, v{8+2*nt}, v{9+2*nt}")
    for rt in range(4):
        for r in range(4):
            m, q = 144 + 16 * rt + r, 152 + 16 * rt + r
            e(f"v_add_f32 v{m}, v{m}, v{m+4}\nv_add_f32 v{q}, v{q}, v{q+4}\nv_mul_f32 v{m}, s66, v{m}\nv_mul_f32 v{q}, s66, v{q}")
            e(f"v_fma_f32 v{q}, -v{m}, v{m}, v{q}\nv_max_f32 v{q}, 0, v{q}\nv_add_f32 v{q}, s67, v{q}\nv_rsq_f32 v{q}, v{q}")
    e("s_nop 0")
    for rt in range(4):
        for nt in range(5):
            for h in range(2):
                a = ACC + (rt * 5 + nt) * 4 + 2 * h
                e(f"v_pk_fma_f32 {R(a,2)}, {R(144+16*rt+2*h,2)}, {R(8+2*nt,2)}, {R(a,2)} op_sel_hi:[1,0,1] neg_lo:[1,0,0] neg_hi:[1,0,0]")
        for nt in range(5):
            for h in range(2):
                a = ACC + (rt * 5 + nt) * 4 + 2 * h
                e(f"v_pk_mul_f32 {R(a,2)}, {R(a,2)}, {R(152+16*rt+2*h,2)}")
        store_tile(g, ACC + rt * 20, 212 + 12 * (rt % 2), f"v{28+rt}", "s63", "s64", 0)
    e("Lj1pub:")
    g.stamp("c", "16")
    g.flag_off(F_J1, "s23", 7, "s24"); e("s_waitcnt vmcnt(0)")
    g.stamp("c", "i6")
    g.wsignal(0, 1)
    g.stamp("c", "i6")

def store_tile(g, a, t, vo, spair, ssingle, off, npair=2, srd="s[8:11]", pstep=1024, pol=PL):
    n = npair * 4 + 2
    for i in range(n): g.e(f"v_cvt_pk_bf16_f32 v{t+i}, v{a+2*i}, v{a+2*i+1}")
    vop, vos = vo if isinstance(vo, tuple) else (vo, vo)
    if spair == "s63" and vos == "v30": vos = vop = "v30 "
    for p in range(npair): g.e(f"buffer_store_dwordx4 {R(t+4*p)}, {vop}, {srd}, {spair} offen offset:{off+pstep*p} {pol}")
    if vos == "v30": vos = "v2"
    elif vos == vop: g.e(f"v_sub_u32 v2, {vop}, v3"); vos = "v2"
    g.e(f"buffer_store_dwordx2 {R(t+4*npair,2)}, {vos}, {srd}, {ssingle} offen offset:{off} {pol}")


def packer_subs(g):
    e = g.e
    e("Lpk_issue:")
    e("s_mov_b32 s91, 0\ns_movk_i32 s85, 1280\ns_cmp_ge_u32 s100, 940\ns_cbranch_scc1 Lpk_w4")
    e("s_cmp_ge_u32 s100, 740\ns_cbranch_scc1 Lpk_wo\ns_cmp_ge_u32 s100, 200\ns_cbranch_scc1 Lpk_w3")
    e(f"s_mov_b64 s[92:93], s[42:43]\ns_mov_b32 s94, 819200\ns_mov_b32 s89, 0\ns_movk_i32 s90, 100\ns_mov_b32 s3, s100\ns_mov_b32 s31, 5\ns_branch Lpk_acc10")
    e(f"Lpk_w4:\ns_mov_b64 s[92:93], s[46:47]\ns_mov_b32 s94, 2211840\ns_mov_b32 s89, {(W4P-W2P)>>10}\ns_movk_i32 s90, 270\ns_sub_u32 s3, s100, 940\ns_mov_b32 s31, 7")
    e("Lpk_acc10:"); g.sdiv("s83", "s3", 10, 600)
    e("s_mul_i32 s84, s83, 10\ns_sub_u32 s84, s3, s84\ns_lshl_b32 s86, s83, 5\ns_mov_b32 s29, 0x4210\ns_bitset1_b32 s29, 19\ns_cmp_eq_u32 s31, 5\ns_cselect_b32 s30, s29, 0x81020408\ns_mov_b32 s31, 0x00102040")
    e("s_bitcmp1_b64 s[30:31], s83\ns_cselect_b32 s87, 4, 16\ns_cselect_b32 s88, 8, 4\ns_branch Lpk_go")
    e(f"Lpk_wo:\ns_mov_b64 s[92:93], s[36:37]\ns_mov_b32 s94, 819200\ns_mov_b32 s89, {(WOP-W2P)>>10}\ns_movk_i32 s90, 100\ns_sub_u32 s3, s100, 740")
    g.sdiv("s83", "s3", 10, 600)
    e("s_mul_i32 s84, s83, 10\ns_sub_u32 s84, s3, s84"); g.sdiv("s29", "s83", 5, 64)
    e("s_mul_i32 s30, s29, 5\ns_sub_u32 s30, s83, s30\ns_mul_i32 s86, s29, 160\ns_mul_i32 s3, s30, 40\ns_cmp_eq_u32 s30, 4")
    e("s_cselect_b32 s3, 16, s3\ns_mov_b32 s87, 20\ns_cselect_b32 s88, 40, 4\ns_add_u32 s86, s86, s3\ns_branch Lpk_go")
    e(f"Lpk_w3:\ns_mov_b64 s[92:93], s[44:45]\ns_mov_b32 s94, 2211840\ns_mov_b32 s89, {(W3P-W2P)>>10}\ns_movk_i32 s90, 140\ns_mov_b32 s91, 1\ns_movk_i32 s85, 3456\ns_sub_u32 s3, s100, 200")
    g.sdiv("s83", "s3", 27, 600)
    e("s_mul_i32 s84, s83, 27\ns_sub_u32 s84, s3, s84"); g.sdiv("s29", "s83", 5, 64)
    e("s_mul_i32 s30, s29, 5\ns_sub_u32 s30, s83, s30\ns_lshl_b32 s86, s83, 5\ns_mov_b32 s87, 4\ns_mov_b32 s88, 8")
    e("Lpk_go:")
    e("v_mul_lo_u32 v242, v236, s87\nv_add_u32 v242, v242, v237\nv_mul_lo_u32 v242, v242, s85\nv_add_u32 v242, v242, v238")
    e("s_mul_i32 s86, s86, s85\ns_lshl_b32 s3, s84, 7\ns_add_u32 s86, s86, s3\ns_mul_i32 s88, s88, s85")
    for d in range(4):
        e(f"s_add_u32 m0, s101, {d*1024}\ns_nop 0\nbuffer_load_dwordx4 v242, s[92:95], s86 offen lds")
        if d < 3: e("s_add_u32 s86, s86, s88")
    for fbl in range(2):
        lw3, ldn = g.lab("Lpkd"), g.lab("Lpkd")
        e(f"s_lshl_b32 s3, s84, 1\ns_add_u32 s3, s3, {fbl}\ns_cmp_lg_u32 s91, 0\ns_cbranch_scc1 {lw3}")
        g.sdiv("s29", "s3", 5, 64)
        e("s_mul_i32 s30, s29, 5\ns_sub_u32 s30, s3, s30\ns_lshl_b32 s29, s29, 1")
        e("s_lshr_b32 s3, s30, 1\ns_and_b32 s31, s30, 1\ns_lshl_b32 s31, s31, 1\ns_cmp_eq_u32 s30, 4")
        e("s_cselect_b32 s3, 0, s3\ns_cselect_b32 s31, 4, s31\ns_cselect_b32 s86, s90, 1\ns_cselect_b32 s87, 8, 16\ns_cselect_b32 s30, 32, 8")
        e("s_add_u32 s29, s29, s3\ns_mul_i32 s29, s29, s90\ns_mul_i32 s3, s83, 5")
        e(f"s_branch {ldn}\n{lw3}:")
        g.sdiv("s29", "s3", 7, 64)
        e("s_mul_i32 s30, s29, 7\ns_sub_u32 s30, s3, s30\ns_lshl_b32 s29, s29, 1")
        e("s_lshr_b32 s3, s30, 2\ns_and_b32 s31, s30, 3\ns_lshl_b32 s31, s31, 1\ns_cmp_eq_u32 s30, 3")
        e("s_cselect_b32 s86, s90, 1\ns_mov_b32 s87, 8\ns_mov_b32 s30, 32")
        e("s_add_u32 s29, s29, s3\ns_mul_i32 s29, s29, s90\ns_mul_i32 s3, s83, 7")
        e(f"{ldn}:")
        e(f"s_add_u32 s29, s29, s3\ns_add_u32 s29, s29, s31\ns_add_u32 s{96+2*fbl}, s29, s89\ns_add_u32 s{97+2*fbl}, s{96+2*fbl}, s86")
        e(f"v_mul_lo_u32 v{243+2*fbl}, v240, s87\nv_add3_u32 v{243+2*fbl}, v{243+2*fbl}, v239, s101\nv_add_u32 v{244+2*fbl}, s30, v{243+2*fbl}")
    e("s_setpc_b64 s[70:71]")
    e("Lpk_fin:")
    for q in range(4):
        e(f"ds_read_b64_tr_b16 {R(200+4*q,2)}, v{243+q} offset:{64*(q//2)}\nds_read_b64_tr_b16 {R(202+4*q,2)}, v{243+q} offset:{64*(q//2)+512}")
    e("s_waitcnt lgkmcnt(0)")
    for q in range(4): e(f"{MF} {R(216+4*q)}, {R(ONES)}, {R(200+4*q)}, 0")
    for q in range(4):
        e(f"s_lshl_b32 s3, s{96+q}, 10\ns_add_u32 s3, s3, {hx(W2P)}\nbuffer_store_dwordx4 {R(200+4*q)}, v251, s[8:11], s3 offen {PL}")
    e("s_mov_b64 exec, 0xffff")
    for q in range(4):
        e(f"s_lshl_b32 s3, s{96+q}, 6\ns_add_u32 s3, s3, {hx(CSP)}\nbuffer_store_dword v{216+4*q}, v241, s[8:11], s3 offen {PL}")
    e("s_mov_b64 exec, -1\ns_setpc_b64 s[70:71]")

def call(g, target):
    g.e(f"s_getpc_b64 s[30:31]\ns_add_u32 s30, s30, {target}-.+0\ns_addc_u32 s31, s31, 0\ns_swappc_b64 s[20:21], s[30:31]".replace("-.+0", "@"))

class VM:
    def __init__(s, g): s.g = g; s.ops = []
    def op(s, text, tag=None): s.g.e(text); s.ops.append(tag)
    def n_after(s, tag):
        idx = [i for i, t in enumerate(s.ops) if t == tag]
        return None if not idx else len(s.ops) - 1 - idx[-1]
    def wait(s, tag):
        n = s.n_after(tag)
        if n is None: return
        assert n <= 63, n
        s.g.e(f"s_waitcnt vmcnt({n})"); s.ops = s.ops[len(s.ops) - n:]
    def room(s, k):
        if len(s.ops) + k > 60:
            n = 60 - k - 4; s.g.e(f"s_waitcnt vmcnt({n})"); s.ops = s.ops[len(s.ops) - n:]
    def drained(s): s.ops = []

def lds_ref(off):
    b = off >> 16
    return f"v{30+b} offset:{off & 0xffff}"

def xgemm(g, vm, nks, nrt, nnt, acc, XW, WB, waddr, xload, pre_issued=0, barrier_at=None, hook=None, AH=2, st=None, pre=99, rotw=None):
    e = g.e; win = len(XW) // nrt; nb = len(WB)
    def xreg(ks, rt): return XW[(ks % win) * nrt + rt]
    def issue_x(ks):
        for rt, t in enumerate(xload(ks)): vm.op(t.replace("{r}", R(xreg(ks, rt))), ("x", ks))
    def rd(ks):
        L = ["s_barrier"] if barrier_at and ks in barrier_at else []
        if rotw:
            cs = 4 * nnt * 1024; p = ""
            if ks % 4 == 0:
                if ks: p = f"s_add_u32 {rotw}, {rotw}, {cs}\ns_cmp_ge_u32 {rotw}, {5*cs}\ns_cselect_b32 {rotw}, 0, {rotw}\n"
                p += f"v_add_u32 v33, {rotw}, v30\n"
            return L + [(p if nt == 0 else "") + f"ds_read_b128 {R(WB[ks % nb]+4*nt)}, v33 offset:{((ks % 4) * nnt + nt) * 1024}" for nt in range(nnt)]
        return L + [f"ds_read_b128 {R(WB[ks % nb]+4*nt)}, {waddr(ks, nt)}" for nt in range(nnt)]
    nx = pre_issued
    while nx < min(win, nks, pre): issue_x(nx); nx += 1
    if hook: hook(-1)
    for ks in range(min(AH, nks)):
        for x in rd(ks): e(x)
    for ks in range(nks):
        vm.wait(("x", ks))
        later = min(AH - 1, nks - 1 - ks) * nnt
        e(f"s_waitcnt lgkmcnt({later})")
        if st and ks in st[1] and str(g.o.get("inner", "")) and str(g.o.get("inner")) in st[0]: g.stamp("c", st[0]); e("s_waitcnt lgkmcnt(0)")
        m = []
        for nt in range(nnt):
            for rt in range(nrt):
                a = R(acc + (rt * nnt + nt) * 4)
                m.append(f"{MF} {a}, {R(WB[ks % nb]+4*nt)}, {R(xreg(ks, rt))}, {'0' if ks == 0 else a}")
        r = rd(ks + AH) if ks + AH < nks else []
        if nb > AH:
            h = max(1, len(m) * 2 // 3)
            seq = interleave(m[:h], r) + m[h:]
        else:
            j = 0; seq = []
            if r and r[0] == "s_barrier": seq.append(r[0]); r = r[1:]
            for i, x in enumerate(m):
                seq.append(x)
                if r and (i + 1) % nrt == 0: seq.append(r[j]); j += 1
        lds = []
        if g.o.get("spread", 1):
            for _ in range(2):
                if nx < nks and nx <= ks + win - 1:
                    for rt, t in enumerate(xload(nx)): lds.append(t.replace("{r}", R(xreg(nx, rt)))); vm.ops.append(("x", nx))
                    nx += 1
            n = len(seq); out = []; jj = 0
            for i, x in enumerate(seq):
                out.append(x)
                while jj < len(lds) and (2 * jj + 1) * n <= (i + 1) * 2 * len(lds): out.append(lds[jj]); jj += 1
            seq = out + lds[jj:]
        for x in seq: e(x)
        if not g.o.get("spread", 1):
            for _ in range(2):
                if nx < nks and nx <= ks + win: issue_x(nx); nx += 1
        if hook: hook(ks)

def rot_setup(g, idx, cs, sx, sw):
    if g.o.get("rot", 0):
        g.sdiv("s3", idx, 5, 16); g.e(f"s_mul_i32 s3, s3, 5\ns_sub_u32 s3, {idx}, s3")
    else: g.e("s_mov_b32 s3, 0")
    g.e(f"s_lshl_b32 {sx}, s3, 12\ns_mul_i32 {sw}, s3, {cs}")

def xl_rot(sb, sx, st, nrt=1):
    def f(ks):
        p = ""
        if ks % 4 == 0:
            if ks: p = f"s_add_u32 {sx}, {sx}, 4096\ns_cmp_ge_u32 {sx}, 20480\ns_cselect_b32 {sx}, 0, {sx}\n"
            p += f"s_add_u32 {st[0]}, {sb}, {sx}\n"
            if nrt == 2: p += f"s_add_u32 {st[1]}, {st[0]}, 20480\n"
        return [(p if rt == 0 else "") + f"buffer_load_dwordx4 {{r}}, v30, s[8:11], {st[rt]} offen offset:{(ks % 4) * 1024} {PL}" for rt in range(nrt)]
    return f

XK, X1K = 236, 246
AQ, AKC, AKP, AVC, AVP = 34, 44, 54, 224, 8
def tile_addr(g):
    e = g.e
    e("v_and_b32 v4, 15, v1\nv_lshrrev_b32 v5, 4, v1")
    e("s_lshl_b32 s65, s27, 6\ns_lshl_b32 s3, s22, 4\ns_add_u32 s65, s65, s3")
    e("s_lshr_b32 s58, s28, 1\ns_and_b32 s59, s28, 1")
    e("v_mul_u32_u24 v28, 1280, v4\nv_lshl_add_u32 v29, v5, 3, v28\nv_lshl_add_u32 v28, v5, 4, v28")
    e("s_mul_i32 s60, s65, 1280\ns_mul_i32 s3, s58, 320\ns_add_u32 s60, s60, s3\ns_lshl_b32 s3, s59, 5\ns_add_u32 s61, s60, s3\ns_add_u32 s61, s61, 256")
    e("s_lshl_b32 s3, s59, 7\ns_add_u32 s60, s60, s3")
    e("s_lshr_b32 s64, s65, 4\ns_mul_i32 s64, s64, 20480\ns_mul_i32 s3, s58, 5120\ns_add_u32 s62, s64, s3")
    e("s_lshl_b32 s3, s59, 9\ns_add_u32 s63, s62, s3\ns_add_u32 s63, s63, 4096\ns_lshl_b32 s3, s59, 11\ns_add_u32 s62, s62, s3")
    e("v_lshlrev_b32 v30, 4, v1\nv_add_u32 v31, 0x10000, v30\nv_add_u32 v32, 0x20000, v30\nv_sub_u32 v2, v30, v3")

def unpack(g, src, dst, n):
    for i in range(n): g.e(f"v_lshlrev_b32 v{dst+2*i}, 16, v{src+i}\nv_and_b32 v{dst+2*i+1}, 0xffff0000, v{src+i}")

def xl_lin(sreg):
    def f(ks):
        pre = f"s_add_u32 {sreg}, {sreg}, 4096\n" if ks and ks % 4 == 0 else ""
        return [pre + f"buffer_load_dwordx4 {{r}}, v30, s[8:11], {sreg} offen offset:{(ks % 4) * 1024} {PL}"]
    return f

def j2_consumer(g):
    e = g.e; vm = VM(g)
    tile_addr(g)
    e(f"buffer_load_dwordx4 {R(XK)}, v28, s[4:7], s60 offen\nbuffer_load_dwordx4 {R(XK+4)}, v28, s[4:7], s60 offen offset:64\nbuffer_load_dwordx2 {R(XK+8,2)}, v29, s[4:7], s61 offen")
    e(f"s_add_u32 s66, s64, {hx(HF)}\ns_lshl_b32 s67, s65, 3\ns_add_u32 s67, s67, {hx(STAT)}\nv_lshlrev_b32 v6, 3, v4")
    e("s_cmp_eq_u32 s65, 0\ns_cselect_b32 s3, 0, 20480\ns_sub_u32 s68, s62, s3\ns_sub_u32 s69, s63, s3")
    rot_setup(g, "s28", 20480, "s56", "s57")
    g.stamp("c", "i6")
    e("s_barrier")
    g.stamp("c", "26")
    att = []
    for (rr, base, sp, ss) in ((AQ, QF, "s62", "s63"), (AKC, KF, "s62", "s63"), (AKP, KF, "s68", "s69"), (AVC, VF, "s62", "s63"), (AVP, VF, "s68", "s69")):
        att.append(f"s_add_u32 s70, {sp}, {hx(base)}\ns_add_u32 s71, {ss}, {hx(base)}\nbuffer_load_dwordx4 {R(rr)}, v30, s[8:11], s70 offen {PL}")
        att.append(f"buffer_load_dwordx4 {R(rr+4)}, v30, s[8:11], s70 offen offset:1024 {PL}")
        att.append(f"buffer_load_dwordx2 {R(rr+8,2)}, v2, s[8:11], s71 offen {PL}")
    A0 = g.o.get("att0", 5)
    def hook(ks):
        if ks == A0 - 1: vm.op(f"buffer_load_dwordx2 v[18:19], v6, s[8:11], s67 offen {PL}", "st")
        for _ in range(2):
            if ks >= g.o.get("m2", 8) - 2 and att: vm.op(att.pop(0))

    xgemm(g, vm, 20, 1, 5, 64, [84 + 4 * i for i in range(20)], [164, 184, 204], None, xl_rot("s66", "s56", ["s20"]), hook=hook,
          st=("i2", (0, 1, 4, 8, 12, 16)), pre=g.o.get("pre2", 6), rotw="s57", barrier_at={g.o.get("m2", 8)})
    g.stamp("c", "2")
    vm.wait("st")
    unpack(g, XK, 84, 10)
    e("v_mul_f32 v20, v18, v19\nv_mov_b32 v21, v19")
    for i in range(10): e(f"v_pk_add_f32 {R(64+2*i,2)}, {R(64+2*i,2)}, v[20:21] op_sel_hi:[1,0] neg_lo:[0,1] neg_hi:[0,1]")
    for i in range(10): e(f"v_pk_fma_f32 {R(64+2*i,2)}, {R(84+2*i,2)}, v[20:21], {R(64+2*i,2)} op_sel:[0,1,0] op_sel_hi:[1,1,1]")
    e(f"s_add_u32 s66, s62, {hx(X1F)}\ns_add_u32 s67, s63, {hx(X1F)}")
    store_tile(g, 64, X1K, "v30", "s66", "s67", 0)
    e("v_pk_mul_f32 v[24:25], v[64:65], v[64:65]\nv_pk_add_f32 v[22:23], v[64:65], v[66:67]\nv_pk_fma_f32 v[24:25], v[66:67], v[66:67], v[24:25]")
    for i in range(2, 10):
        e(f"v_pk_add_f32 v[22:23], v[22:23], {R(64+2*i,2)}\nv_pk_fma_f32 v[24:25], {R(64+2*i,2)}, {R(64+2*i,2)}, v[24:25]")
    e("v_add_f32 v22, v22, v23\nv_add_f32 v23, v24, v25")
    for sw in ("v_permlane32_swap_b32", "v_permlane16_swap_b32"):
        e(f"v_mov_b32 v24, v22\nv_mov_b32 v25, v23\ns_nop 1\n{sw} v24, v22\n{sw} v25, v23\nv_pk_add_f32 v[22:23], v[22:23], v[24:25]")
    e(f"s_lshl_b32 s3, s65, 6\ns_lshl_b32 s29, s28, 7\ns_add_u32 s3, s3, s29\ns_add_u32 s3, s3, {hx(PST)}\nv_lshlrev_b32 v6, 3, v4")
    e(f"s_mov_b64 exec, 0xffff\nbuffer_store_dwordx2 v[22:23], v6, s[8:11], s3 offen {PL}\ns_mov_b64 exec, -1")
    g.stamp("c", "i2")
    e("s_barrier")
    g.stamp("c", "i2")
    assert not att
    attention(g, 0)
    e("s_waitcnt vmcnt(4)")
    attention(g, 1)

def attention(g, part):
    e = g.e
    Q, KP, KC, VP, VC = AQ, AKP, AKC, AVP, AVC
    BI, S, QM, P, VM_, O = 84, 96, 128, 136, 152, 168
    if part == 0:
        e("v_lshlrev_b32 v26, 2, v5\nv_sub_u32 v26, v4, v26\nv_mov_b32 v92, 0xf149f2ca\ns_cmp_eq_u32 s65, 0\ns_cselect_b32 s3, 1024, 16")
        for kt in range(2):
            for r in range(4):
                if kt == 0: e(f"v_add_u32 v27, s3, v26\nv_subrev_u32 v27, {r}, v27")
                else: e(f"v_subrev_u32 v27, {r}, v26")
                e(f"v_and_b32 v27, 0xfffffff1, v27\nv_cmp_eq_u32 vcc, 0, v27\ns_nop 1\nv_cndmask_b32 v{BI+4*kt+r}, v92, 0, vcc")
        return
    for h in range(4):
        lo = (0xffff << (16 * h)) & 0xffffffff; hi = (0xffff << (16 * h)) >> 32
        e(f"s_mov_b32 vcc_lo, {hx(lo)}\ns_mov_b32 vcc_hi, {hx(hi)}\ns_nop 0\nv_cndmask_b32 v{QM+2*h}, 0, v{Q+8}, vcc\nv_cndmask_b32 v{QM+2*h+1}, 0, v{Q+9}, vcc")
    e("s_nop 1")
    for h in range(4):
        for kt, K in enumerate((KP, KC)): e(f"{MF16} {R(S+8*h+4*kt)}, {R(K+2*h,2)}, {R(Q+2*h,2)}, {R(BI+4*kt)}")
    for h in range(4):
        for kt, K in enumerate((KP, KC)): e(f"{MF16} {R(S+8*h+4*kt)}, {R(K+8,2)}, {R(QM+2*h,2)}, {R(S+8*h+4*kt)}")
    for h in range(4):
        m = 0x000f000f << (4 * h)
        e(f"s_mov_b32 vcc_lo, {hx(m)}\ns_mov_b32 vcc_hi, {hx(m)}\ns_nop 0")
        for kt, V in enumerate((VP, VC)):
            e(f"v_cndmask_b32 v{VM_+4*h+2*kt}, 0, v{V+8}, vcc\nv_cndmask_b32 v{VM_+4*h+2*kt+1}, 0, v{V+9}, vcc")
    sc = (20 ** -0.5) * 1.4426950408889634
    e(f"s_mov_b32 s66, {hx(f2u(sc))}")
    for h in range(4):
        b = S + 8 * h
        e(f"v_max3_f32 v{20+h}, v{b}, v{b+1}, v{b+2}\nv_max3_f32 v{20+h}, v{20+h}, v{b+3}, v{b+4}\nv_max3_f32 v{20+h}, v{20+h}, v{b+5}, v{b+6}\nv_max_f32 v{20+h}, v{20+h}, v{b+7}")
    def red4(op):
        for sw in ("v_permlane32_swap_b32", "v_permlane16_swap_b32"):
            for h in range(4): e(f"v_mov_b32 v{24+h}, v{20+h}")
            e("s_nop 1")
            for h in range(4): e(f"{sw} v{24+h}, v{20+h}")
            for h in range(4): e(f"{op} v{20+h}, v{20+h}, v{24+h}")
    red4("v_max_f32")
    for h in range(4): e(f"v_mul_f32 v{20+h}, s66, v{20+h}")
    for h in range(4):
        for i in range(8): e(f"v_fma_f32 v{S+8*h+i}, v{S+8*h+i}, s66, -v{20+h}")
    for h in range(4):
        for i in range(8): e(f"v_exp_f32 v{S+8*h+i}, v{S+8*h+i}")
    e("s_nop 0")
    for h in range(4):
        b = S + 8 * h
        e(f"v_pk_add_f32 v[24:25], {R(b,2)}, {R(b+2,2)}\nv_pk_add_f32 v[26:27], {R(b+4,2)}, {R(b+6,2)}\nv_pk_add_f32 v[24:25], v[24:25], v[26:27]\nv_add_f32 v{20+h}, v24, v25")
    red4("v_add_f32")
    e("s_waitcnt vmcnt(0)")
    g.flag_off(F_X1, "s25", 7, "s26"); g.wsignal(1)
    g.stamp("c", "2")
    for h in range(4): e(f"v_rcp_f32 v{20+h}, v{20+h}")
    e("s_nop 0")
    for h in range(4):
        for i in range(8): e(f"v_mul_f32 v{S+8*h+i}, v{S+8*h+i}, v{20+h}")
        for i in range(4): e(f"v_cvt_pk_bf16_f32 v{P+4*h+i}, v{S+8*h+2*i}, v{S+8*h+2*i+1}")
    e("s_nop 1")
    for kt, V in enumerate((VP, VC)):
        for h in range(4):
            c = "0" if kt == 0 else R(O + 4 * h)
            e(f"{MF16} {R(O+4*h)}, {R(V+2*h,2)}, {R(P+4*h+2*kt,2)}, {c}")
    for h in range(4):
        for kt in range(2):
            c = "0" if (h == 0 and kt == 0) else R(O + 16)
            e(f"{MF16} {R(O+16)}, {R(VM_+4*h+2*kt,2)}, {R(P+4*h+2*kt,2)}, {c}")
    e(f"s_add_u32 s66, s62, {hx(OF)}\ns_add_u32 s67, s63, {hx(OF)}\ns_nop 7")
    store_tile(g, O, 84, "v30", "s66", "s67", 0)
    g.stamp("c")

def j345_consumer(g):
    e = g.e; vm = VM(g); stop = g.o.get("stop", 5)
    A3 = 64
    e(f"s_lshl_b32 s65, s38, 7\ns_lshl_b32 s3, s22, 5\ns_add_u32 s65, s65, s3\ns_lshl_b32 s68, s65, 6\ns_add_u32 s68, s68, {hx(PST)}")
    e(f"s_lshr_b32 s3, s65, 4\ns_mul_i32 s66, s3, 20480\ns_add_u32 s66, s66, {hx(X1F)}")
    rot_setup(g, "s39", 28672, "s56", "s57")
    e("v_lshlrev_b32 v6, 3, v4\nv_lshl_add_u32 v6, v5, 8, v6")
    e("s_barrier")
    g.stamp("c", "3")
    def hook(ks):
        if ks == -1:
            for i in range(4): vm.op(f"buffer_load_dwordx2 {R(12+2*i,2)}, v6, s[8:11], s68 offen offset:{(i>>1)*1024+(i&1)*128} {PL}")
        if ks == 0:
            e("s_lshl_b32 s71, s26, 2\ns_add_u32 s71, s71, s22"); g.flag_off(F_O, "s25", 8, "s71"); g.signal("v7"); vm.ops.append(None)
        if ks == 12:
            for rt in range(2):
                b = 12 + 4 * rt
                e(f"v_pk_add_f32 {R(b,2)}, {R(b,2)}, {R(b+2,2)}")
                for sw in ("v_permlane32_swap_b32", "v_permlane16_swap_b32"):
                    e(f"v_mov_b32 v{b+2}, v{b}\nv_mov_b32 v{b+3}, v{b+1}\ns_nop 1\n{sw} v{b+2}, v{b}\n{sw} v{b+3}, v{b+1}\nv_pk_add_f32 {R(b,2)}, {R(b,2)}, {R(b+2,2)}")
            e(f"s_mov_b32 s70, {hx(f2u(1.0/640))}\ns_mov_b32 s71, {hx(f2u(1e-5))}")
            for rt in range(2):
                b = 12 + 4 * rt
                e(f"v_mul_f32 v{b}, s70, v{b}\nv_mul_f32 v{b+1}, s70, v{b+1}\nv_fma_f32 v{b+1}, -v{b}, v{b}, v{b+1}\nv_max_f32 v{b+1}, 0, v{b+1}\nv_add_f32 v{b+1}, s71, v{b+1}\nv_rsq_f32 v{b+1}, v{b+1}")
    xgemm(g, vm, 20, 2, 7, A3, [120 + 4 * i for i in range(22)], [34, 208], None, xl_rot("s66", "s56", ["s20", "s21"], 2), hook=hook,
          st=("i3", (0, 1, 2, 4, 6, 8, 10, 12, 14, 17)), pre=g.o.get("pre3", 3), rotw="s57", barrier_at={g.o.get("m3", 10)} if stop >= 5 else None)
    e(f"v_lshlrev_b32 v6, 4, v5\nv_add_u32 v6, {CS3}, v6")
    for nt in range(7): e(f"ds_read_b128 {R(208+4*nt)}, v6 offset:{64*nt}")
    g.stamp("c", "i3")
    e("s_barrier")
    g.stamp("c", "3")
    X4 = [120 + 4 * i for i in range(20)]
    e(f"s_add_u32 s68, s64, {hx(OF)}")
    rot_setup(g, "s28", 20480, "s56", "s57")
    f4 = xl_rot("s68", "s56", ["s20"]); o4 = [f4(ks)[0].replace("{r}", R(X4[ks])) for ks in range(20)]
    e(f"s_lshr_b32 s58, s39, 1\ns_and_b32 s59, s39, 1\ns_lshr_b32 s3, s65, 4\ns_mul_i32 s66, s3, {TSTR}\ns_mul_i32 s3, s58, 7168\ns_add_u32 s66, s66, s3")
    e(f"s_add_u32 s66, s66, {hx(TF)}\ns_lshl_b32 s3, s59, 9\ns_add_u32 s67, s66, s3\ns_add_u32 s67, s67, 3072\ns_lshl_b32 s3, s59, 12\ns_add_u32 s66, s66, s3")
    e(f"v_mov_b32 v44, {hx(f2u(GELU_C0))}\nv_mov_b32 v45, v44\ns_mov_b32 s54, {hx(f2u(GELU_C1))}\ns_mov_b32 s55, s54")
    e("s_waitcnt lgkmcnt(0)")
    for rt in range(2):
        b = 12 + 4 * rt
        for i in range(14):
            a = A3 + rt * 28 + 2 * i
            e(f"v_pk_fma_f32 {R(a,2)}, {R(208+2*i,2)}, {R(b,2)}, {R(a,2)} op_sel_hi:[1,0,1] neg_lo:[1,0,0] neg_hi:[1,0,0]")
        for i in range(14):
            a = A3 + rt * 28 + 2 * i
            e(f"v_pk_mul_f32 {R(a,2)}, {R(a,2)}, {R(b,2)} op_sel:[0,1] op_sel_hi:[1,1]")
        for p in range(4):
            a = A3 + rt * 28 + 8 * p; n = 4 if p < 3 else 2
            gelu_pairs(g, [a + 2 * i for i in range(n)], 36)
            for i in range(n): e(f"v_cvt_pk_bf16_f32 v{a+i}, v{a+2*i}, v{a+2*i+1}")
            if p < 3: e(f"buffer_store_dwordx4 {R(a)}, v30, s[8:11], s66 offen offset:{1024*p} {PL}")
            else: e(f"buffer_store_dwordx2 {R(a,2)}, v2, s[8:11], s67 offen {PL}")
        if rt == 0: e(f"s_add_u32 s66, s66, {TSTR}\ns_add_u32 s67, s67, {TSTR}")
    g.stamp("c")
    vm.drained(); vm.ops.append("ts")
    for ks in range(20): vm.op(o4[ks], ("x", ks))
    vm.wait("ts")
    g.flag_off(F_T, "s38", 7, "s39"); g.wsignal(2)
    e("s_barrier")
    SA = 44
    xgemm(g, vm, 20, 1, 5, SA, X4, [8, 200] if g.o.get("j4wb", 0) else [64, 84, 200], None, None, pre_issued=20, rotw="s57")
    g.stamp("c")
    rot5(g)
    e(f"s_lshl_b32 s3, s27, 2\ns_add_u32 s3, s3, s22\ns_mul_i32 s68, s3, {TSTR}\ns_add_u32 s68, s68, {hx(TF)}\ns_and_b32 s58, s22, 1\ns_lshl_b32 s3, s58, 11\ns_add_u32 s68, s68, s3")
    e(f"s_add_u32 s67, s68, {13*4096}\ns_lshl_b32 s3, s59, 12\ns_add_u32 s66, s68, s3\ns_mul_i32 s69, s58, {-2*TSTR}\ns_add_u32 s69, s69, {TSTR}\ns_lshl_b32 s70, s58, 10\ns_sub_u32 s70, s67, s70")
    e(f"s_mul_i32 s3, s58, 10240\nv_add_u32 v4, s3, v30\nv_add_u32 v5, s3, v31\nv_add_u32 v6, s3, v32\ns_mul_i32 s3, s58, 5120\nv_add_u32 v7, s3, v31")
    def xl5(ks):
        pre = ""
        if ks == 26: pre = "s_mov_b32 s66, s70\n"
        elif ks and ks % 2 == 0: pre = "s_add_u32 s66, s66, 4096\ns_cmp_ge_u32 s66, s67\ns_cselect_b32 s66, s68, s66\n"
        if ks % 2 == 0: pre += "s_add_u32 s20, s66, s69\n"
        return [pre + f"buffer_load_dwordx4 {{r}}, v30, s[8:11], s66 offen offset:{(ks%2)*1024} {PL}", f"buffer_load_dwordx4 {{r}}, v30, s[8:11], s20 offen offset:{(ks%2)*1024} {PL}"]
    def wa5(ks, nt):
        off = ((ks // 2 + 5) % 7) * WSL + ((ks % 2) * 5 + nt) * 1024
        return f"v7 offset:{off & 0xffff}" if ks == 26 else f"v{4 + (off >> 16)} offset:{off & 0xffff}"
    e("s_barrier")
    g.stamp("c", "5")
    XW5 = [164 + 4 * i for i in range(18)] + [8, 12, 16, 20, 24, 36]
    xgemm(g, vm, 27, 2, 5, 64, XW5, [104, 124, 144], wa5, xl5,
          barrier_at=set(range(2, 22, 2)), st=("i5", (0, 1, 2, 4, 8, 12, 16, 20, 24)), pre=g.o.get("pre5", 3))
    e(f"s_xor_b32 s3, s22, 1\ns_mul_i32 s3, s3, 5120\nv_add_u32 v4, s3, v31\ns_mul_i32 s3, s22, 5120\nv_add_u32 v5, s3, v31\ns_nop 7")
    for nt in range(5): e(f"ds_write_b128 v4, {R(84+4*nt)} offset:{(5*WSL + nt*1024) & 0xffff}")
    e("s_waitcnt lgkmcnt(0)\ns_barrier")
    for nt in range(5): e(f"ds_read_b128 {R(8+4*nt)}, v5 offset:{(5*WSL + nt*1024) & 0xffff}")
    g.stamp("c", "5")
    unpack(g, XK, 84, 10)
    e("s_waitcnt lgkmcnt(0)")
    for i in range(10): e(f"v_pk_add_f32 {R(8+2*i,2)}, {R(8+2*i,2)}, {R(64+2*i,2)}")
    unpack(g, X1K, 64, 10)
    e(f"s_mov_b32 s54, {hx(f2u(-1.4426950408889634))}\ns_mov_b32 s55, s54")
    for i in range(10): e(f"v_pk_add_f32 {R(8+2*i,2)}, {R(8+2*i,2)}, {R(64+2*i,2)}")
    for i in range(10): e(f"v_pk_mul_f32 {R(64+2*i,2)}, {R(8+2*i,2)}, s[54:55]")
    for i in range(20): e(f"v_exp_f32 v{64+i}, v{64+i}")
    for i in range(10): e(f"v_pk_add_f32 {R(64+2*i,2)}, {R(64+2*i,2)}, 1.0 op_sel_hi:[1,0]")
    for i in range(20): e(f"v_rcp_f32 v{64+i}, v{64+i}")
    for i in range(10): e(f"v_pk_mul_f32 {R(8+2*i,2)}, {R(8+2*i,2)}, {R(SA+2*i,2)}")
    for i in range(10): e(f"v_pk_fma_f32 {R(8+2*i,2)}, {R(8+2*i,2)}, {R(64+2*i,2)}, {R(84+2*i,2)}")
    store_tile(g, 8, 128, ("v28", "v29"), "s60", "s61", 0, srd="s[16:19]", pstep=64, pol=g.o.get("outpol", ""))
    g.stamp("c")

def rot5(g):
    if g.o.get("rot", 0): g.e("s_lshr_b32 s3, s28, 1\ns_add_u32 s59, s28, s3")
    else: g.e("s_mov_b32 s59, 0")

def loader(g, kind):
    e = g.e; o = g.o; stop = o.get("stop", 5); vm = VM(g)
    wv = kind; kind = kind[0]
    e(f"L{wv}load:")
    if o.get("lprio", 0): e(f"s_setprio {o['lprio']}")
    e("s_and_b32 s58, s22, 1\nv_lshlrev_b32 v2, 4, v1")
    if kind == "x":
        e("v_lshrrev_b32 v4, 3, v1\nv_and_b32 v5, 7, v1\nv_lshrrev_b32 v6, 1, v4\nv_xor_b32 v5, v5, v6\nv_mul_u32_u24 v4, 1280, v4\nv_lshl_add_u32 v8, v5, 4, v4\nv_xor_b32 v9, 64, v8")
        e("s_lshl_b32 s3, s23, 1\ns_add_u32 s3, s3, s58\ns_mul_i32 s66, s3, 81920\ns_mov_b32 s64, 128")
    else:
        e("s_movk_i32 s60, 3840\ns_cmp_ge_u32 s24, 12\ns_cselect_b32 s60, 1280, s60\ns_cselect_b32 s3, 12, 0\ns_sub_u32 s3, s24, s3\ns_mul_i32 s61, s3, 320")
        for d in range(5):
            e(f"v_add_u32 v4, {64*d}, v1\nv_mul_u32_u24 v5, 3277, v4\nv_lshrrev_b32 v5, 16, v5\nv_mul_u32_u24 v6, 20, v5\nv_sub_u32 v6, v4, v6")
            e(f"v_lshrrev_b32 v7, 2, v5\nv_and_b32 v7, 2, v7\nv_xor_b32 v6, v6, v7\nv_mul_lo_u32 v5, v5, s60\nv_lshl_add_u32 v{8+d}, v6, 4, v5")
        e("s_lshl_b32 s3, s58, 5\ns_mul_i32 s66, s3, s60\ns_add_u32 s66, s66, s61\ns_lshl_b32 s64, s60, 6\ns_lshl_b32 s67, s60, 4")
    e("s_add_u32 s3, s23, s24\ns_mul_i32 s3, s3, 3"); g.sdiv("s29", "s3", 10, 128)
    e("s_mul_i32 s29, s29, 10\ns_sub_u32 s59, s3, s29")
    if not o.get("rot1", 1): e("s_mov_b32 s59, 0")
    if o.get("rot1", 1) == 2: e("s_add_u32 s3, s23, s24\ns_and_b32 s3, s3, 1\ns_mul_i32 s59, s3, 5")
    if o.get("rot1", 1) == 4: e("s_add_u32 s3, s23, s24\ns_and_b32 s3, s3, 3\ns_mul_i32 s3, s3, 5\ns_lshr_b32 s59, s3, 1")
    e("s_mul_i32 s65, s64, 10\ns_add_u32 s63, s66, s65\ns_mul_i32 s3, s59, s64\ns_add_u32 s62, s66, s3")
    def dma(vo, srd, so, off, k, pol): vm.op(f"buffer_load_dwordx4 {vo}, {srd}, {so} offen offset:{off} {pol} lds", k)
    def adv(): e("s_add_u32 s62, s62, s64\ns_cmp_ge_u32 s62, s63\ns_cselect_b32 s3, s65, 0\ns_sub_u32 s62, s62, s3")
    def issue1(k):
        sl = (k % 4) * SLOT
        if kind == "x":
            e(f"s_lshl_b32 s3, s58, 13\ns_add_u32 s68, s3, {sl}\ns_mov_b32 s69, s62")
            for i in range(8):
                e(f"s_add_u32 m0, s68, {i*1024}"); e("s_add_u32 s69, s69, 10240" if i else "s_nop 0")
                dma(f"v{8+(i&1)}", "s[4:7]", "s69", 0, k, "")
        else:
            e(f"s_mul_i32 s3, s58, 10240\ns_add_u32 s68, s3, {sl+WOFF}\ns_add_u32 s69, s62, s67")
            for grp in range(2):
                for d in range(5):
                    e(f"s_add_u32 m0, s68, {grp*5120+d*1024}\ns_nop 0")
                    dma(f"v{8+d}", "s[12:15]", "s69" if grp else "s62", 0, k, "")
        adv()
    def only(w, fn):
        sk = g.lab("Lonly"); e(f"s_cmp_lg_u32 s22, {w}\ns_cbranch_scc1 {sk}"); fn(); e(f"{sk}:")
    PRE, PS, PLD, PC = o.get("pre1", 2), o.get("ps", 1), o.get("pld", 4), o.get("pc", 5)
    PI2, PF2 = o.get("pi2", 2), o.get("pf2", 5); PSB = o.get("psb", 7 if PI2 >= 0 else 3); sched = [int(c, 36) for c in str(o.get("sch", "x8aaaa"))[1:]]
    if wv == "x4": g.stamp("x", "i0")
    issue1(0)
    if wv == "x4":
        g.stamp("x", "i0")
        e(f"s_and_b32 s3, s2, 7\ns_lshl_b32 s3, s3, 10\ns_add_u32 s3, s3, {hx(F_PK)}\nv_add_u32 v16, s3, v2\nv_lshlrev_b32 v17, 10, v1\nv_mov_b32 v18, 1\nv_mov_b32 v15, 0\nv_mov_b32 v19, {LCNT}")
    else:
        e(f"s_sub_u32 s3, s22, 5\ns_lshl_b32 s100, s3, 8\ns_add_u32 s100, s100, s2\ns_cmp_ge_u32 s100, 740\ns_cselect_b32 s29, 256, 0\ns_sub_u32 s100, s100, s29\ns_add_u32 s100, s100, 740\ns_lshl_b32 s101, s3, 12\ns_add_u32 s101, s101, {3*SLOT if PI2 < 0 else MISC+4096}")
        if PI2 < 0: g.pk_setup(); e("s_call_b64 s[70:71], Lpk_issue"); vm.ops += ["pk"] * 4
    for k in range(1, PRE): issue1(k)
    if wv != "x4":
        if PI2 >= 0: g.pk_setup()
        for rr in range(ONES, ONES + 4): e(f"v_mov_b32 v{rr}, 0x3f803f80")
    if wv == "x4": g.stamp("x")
    e(f"s_sub_u32 s3, s22, 4\ns_mul_i32 s3, s3, 25600\ns_mul_i32 s56, s28, 102400\ns_add_u32 s56, s56, s3\ns_add_u32 s56, s56, {hx(W2P)}\nv_add_u32 v3, s3, v2")
    e(f"s_mul_i32 s57, s39, 143360\ns_add_u32 s57, s57, s3\ns_add_u32 s57, s57, {hx(W3P)}")
    todo = g.todo = []
    for (sr, r0, tag) in (("s56", 120, "w2"), ("s57", 20, "w3")):
        for q in range(25):
            todo.append(((f"s_add_u32 {sr}, {sr}, 4096\n" if q and q % 4 == 0 else "") + f"buffer_load_dwordx4 {R(r0+4*q)}, v2, s[8:11], {sr} offen offset:{(q % 4) * 1024} {PL}", tag))
    def flag(base):
        e(f"s_lshl_b32 s70, s2, 2\ns_add_u32 s70, s70, {hx(base)}\ns_mov_b64 exec, 0xff"); vm.op("buffer_store_dword v18, v17, s[8:11], s70 offen sc1"); e("s_mov_b64 exec, -1")
    for k in range(10):
        vm.wait(k)
        if k == PSB: vm.wait("pks")
        if wv == "x4" and k < 2: g.stamp("x", "i0")
        if k == PC and wv == "x4":
            vm.wait("pkc"); g.pk_check("v16", 224)
        e("s_barrier")
        if wv == "x4" and k == PS - 1: vm.op("global_load_dword v14, v15, s[50:51]", "ini")
        if wv == "x4" and k == PLD: vm.op("buffer_load_dwordx4 v[224:227], v16, s[8:11], 0 offen sc1", "pkc")
        if wv == "x4" and k == PS:
            vm.wait("ini")
            l0, l1 = g.lab("Lini"), g.lab("Linix")
            e(f"s_mov_b32 s31, 0\n{l0}:\nv_cmp_eq_u32 vcc, 0, v14\ns_cbranch_vccz {l1}\ns_add_u32 s31, s31, 1\ns_cmp_gt_u32 s31, 400000\ns_cbranch_scc1 {l1}")
            e(f"global_load_dword v14, v15, s[50:51] sc0 sc1\ns_waitcnt vmcnt(0)\ns_branch {l0}\n{l1}:")
            flag(F_PK)
        if wv == "x4" and k == PSB: flag(F_PKB); vm.ops.pop()
        if k == 0:
            for kk in range(PRE, 3 if PI2 < 0 else 4): issue1(kk)
            if wv != "x4" and PI2 < 0: vm.wait("pk"); e("s_call_b64 s[70:71], Lpk_fin"); vm.ops += ["pks"] * 8
            if wv == "x4": e("v_mov_b32 v20, 0\nv_mov_b32 v21, 0\nds_write_b64 v19, v[20:21]\nds_write_b64 v19, v[20:21] offset:8\ns_waitcnt lgkmcnt(0)")
        if k == 1 and PI2 < 0: issue1(3)
        if 1 <= k <= 6: vm.room(10); issue1(k + 3)
        if wv != "x4" and k == PI2: e("s_call_b64 s[70:71], Lpk_issue"); vm.ops += ["pk"] * 4
        if wv != "x4" and k == PF2 and PI2 >= 0: vm.wait("pk"); vm.room(8); e("s_call_b64 s[70:71], Lpk_fin"); vm.ops += ["pks"] * 8
        if k >= PC:
            for _ in range(min(sched[k - PC], len(todo))):
                vm.room(1); vm.op(*todo.pop(0))
    assert getattr(g, 'tail_ops', vm.ops) == vm.ops
    g.tail_ops = [t for t in vm.ops]
    assert PSB > PS and PF2 < 6
    if wv != "w": e("s_branch Ltail")

def loader_tail(g):
    e = g.e; o = g.o; stop = o.get("stop", 5); vm = VM(g)
    e("Ltail:\ns_sub_u32 s58, s22, 4")
    if o.get("lprio", 0): e("s_setprio 0")
    def only(w, fn):
        sk = g.lab("Lonly"); e(f"s_cmp_lg_u32 s22, {w}\ns_cbranch_scc1 {sk}"); fn(); e(f"{sk}:")
    def lin(n, ssrc, ldsbase, tag):
        e(f"s_mul_i32 s68, s58, {n*1024}\ns_add_u32 s68, s68, {ldsbase}")
        for q in range(n):
            if q % 4 == 0:
                vm.room(4)
                e(f"s_add_u32 m0, s68, {q*1024}"); e(f"s_add_u32 {ssrc}, {ssrc}, 4096" if q else "s_nop 0")
            vm.op(f"buffer_load_dwordx4 v2, s[8:11], {ssrc} offen offset:{(q % 4) * 1024} {PL} lds", tag)
    def ldreg(n, ssrc, r0, tag):
        for q in range(n):
            if q % 4 == 0:
                vm.room(4)
                if q: e(f"s_add_u32 {ssrc}, {ssrc}, 4096")
            vm.op(f"buffer_load_dwordx4 {R(r0+4*q)}, v2, s[8:11], {ssrc} offen offset:{(q % 4) * 1024} {PL}", tag)
    def wreg(n, va, off, r0):
        for q in range(n): e(f"ds_write_b128 {va}, {R(r0+4*q)} offset:{off+q*1024}")
    vm.ops = list(g.tail_ops); todo = g.todo
    assert all(t in ("w2", "w3") for t in vm.ops), vm.ops
    def some(n):
        for _ in range(min(n, len(todo))):
            vm.room(1); vm.op(*todo.pop(0))
    e(f"s_mul_i32 s67, s39, 143360\ns_add_u32 s67, s67, {hx(W3P)}")
    e("s_barrier")
    g.stamp("x")
    if stop >= 2:
        some(99)
        e("s_mul_i32 s3, s58, 10240\ns_add_u32 s69, s67, s3\ns_add_u32 s69, s69, 102400"); lin(10, "s69", 102400, "w3")
        vm.wait("w2"); g.stamp("x"); wreg(25, "v3", 0, 120); e("s_waitcnt lgkmcnt(0)")
        if o.get("inner") == 6: e("s_waitcnt vmcnt(0)"); g.stamp("x")
        def poll_h():
            e("s_and_b32 s3, s27, 1\ns_lshl_b32 s3, s3, 1\ns_add_u32 s3, s3, s25\ns_add_u32 s3, s3, 15\ns_and_b32 s67, s3, 15")
            jpoll("s67", "v_and_b32 v5, 3, v1\nv_add_u32 v5, 12, v5")
        def jpoll(other, slot):
            e(f"v_mov_b32 v4, s25\ns_mov_b32 exec_lo, 0\nv_mov_b32 v4, {other}\ns_mov_b32 exec_lo, -1\n{slot}")
            e(f"v_lshlrev_b32 v5, 2, v5\nv_lshl_add_u32 v4, v4, 7, v5\ns_and_b32 s3, s26, 3\ns_lshl_b32 s3, s3, 11\ns_add_u32 s3, s3, {hx(F_J1)}\nv_add_u32 v4, s3, v4\nv_mov_b32 v5, 1")
            g.poll("v4", "v5", "v6")
        def poll_q():
            e("s_max_u32 s67, s25, 1\ns_sub_u32 s67, s67, 1")
            jpoll("s67", "v_and_b32 v5, 15, v1\nv_min_u32 v5, 11, v5")
        def cs3():
            e("s_waitcnt vmcnt(40)")
            e(f"s_mul_i32 s69, s39, 8960\ns_add_u32 s69, s69, {hx(CSP + ((W3P-W2P)>>4))}\nv_and_b32 v4, 31, v1\nv_lshlrev_b32 v4, 4, v4\nv_lshrrev_b32 v5, 5, v1\nv_mul_u32_u24 v5, 4480, v5\nv_add_u32 v5, v5, v4")
            for i in range(10): e(f"buffer_load_dwordx4 {R(168+4*i)}, v5, s[8:11], s69 offen offset:{(448*i)} {PL}")
            e("s_waitcnt vmcnt(0)")
            for i in range(1, 10): e(f"v_pk_add_f32 v[168:169], v[168:169], {R(168+4*i,2)}\nv_pk_add_f32 v[170:171], v[170:171], {R(170+4*i,2)}")
            for r in range(4): e(f"v_mov_b32 v{172+r}, v{168+r}")
            e("s_nop 1")
            for r in range(4): e(f"v_permlane32_swap_b32 v{172+r}, v{168+r}")
            e(f"v_pk_add_f32 v[168:169], v[168:169], v[172:173]\nv_pk_add_f32 v[170:171], v[170:171], v[174:175]\nv_add_u32 v4, {CS3}, v4\nds_write_b128 v4, v[168:171]\ns_waitcnt lgkmcnt(0)")
        def pkb():
            e(f"s_and_b32 s3, s2, 7\ns_lshl_b32 s3, s3, 10\ns_add_u32 s3, s3, {hx(F_PKB)}\nv_add_u32 v16, s3, v2"); g.pk_check("v16", 224, True)
        only(5, cs3); pkb(); vm.drained()
        if o.get("wo", 2) == 2:
            e(f"s_mul_i32 s69, s28, 102400\ns_mul_i32 s3, s58, 25600\ns_add_u32 s69, s69, s3\ns_add_u32 s69, s69, {hx(WOP)}\nv_mov_b32 v4, {LCNT}\ns_mov_b32 s31, 0")
            e("Lspin:\nds_read_b32 v5, v4\ns_add_u32 s31, s31, 1\ns_cmp_gt_u32 s31, 400000\ns_cbranch_scc1 Lspinx\ns_waitcnt lgkmcnt(0)\nv_cmp_gt_u32 vcc, 4, v5\ns_cbranch_vccnz Lspin\nLspinx:")
            ldreg(25, "s69", 120, "wo")
        only(4, poll_h); g.stamp("x")
        e("s_barrier")
        def W4R(c): return 120 + 20 * (c - 2) if c < 7 else (20 + 20 * (c - 7) if c < 12 else 220)
        def adv(): e("s_add_u32 s62, s62, s64\ns_cmp_ge_u32 s62, s63\ns_cselect_b32 s3, s65, 0\ns_sub_u32 s62, s62, s3")
        C2 = 2 + o.get("nc2", 5)
        if stop >= 5:
            rot5(g)
            e(f"s_mul_i32 s66, s28, 276480\ns_mul_i32 s3, s58, 5120\ns_add_u32 s61, s66, {hx(W4P)}\ns_add_u32 s66, s61, s3\ns_movk_i32 s64, 20480\nv_add_u32 v11, s3, v2")
            e("s_mul_i32 s65, s64, 13\ns_add_u32 s63, s66, s65\ns_mul_i32 s3, s59, s64\ns_add_u32 s62, s66, s3\nv_add_u32 v12, 0x10000, v11\nv_add_u32 v13, 0x20000, v11")
            e("s_mov_b32 s56, s62"); adv(); e("s_mov_b32 s57, s62"); adv()
            e(f"s_add_u32 s61, s61, s65\ns_lshl_b32 s3, s58, 11\ns_add_u32 s60, s61, s3\nv_add_u32 v14, s3, v2\ns_and_b32 s3, s58, 1\ns_lshl_b32 s3, s3, 10\ns_add_u32 s3, s3, 8192\ns_add_u32 s61, s61, s3\nv_add_u32 v15, s3, v2")
            e(f"v_add_u32 v14, {4*WSL}, v14\nv_add_u32 v15, {4*WSL}, v15")
        only(4, poll_q)
        e("s_waitcnt vmcnt(0)\ns_barrier"); vm.drained()
        WO = o.get("wo", 2)
        if WO:
            e(f"s_mul_i32 s69, s28, 102400\ns_mul_i32 s3, s58, 25600\ns_add_u32 s69, s69, s3\ns_add_u32 s69, s69, {hx(WOP)}\ns_mov_b32 s55, s62")
            if WO == 1: ldreg(25, "s69", 120, "wo")
            C2 = 7
            for c in range(5): adv()
        elif stop >= 5:
            for c in range(2, C2):
                e("s_mov_b32 s69, s62"); ldreg(5, "s69", W4R(c), c); adv()
        e("s_barrier")
    if stop >= 3:
        wreg(25, "v3", 0, 20)
        if stop >= 5 and o.get("nc3", 6):
            e("s_waitcnt lgkmcnt(0)")
            if o.get("spin2", 0):
                e(f"v_mov_b32 v4, {LCNT+4}\ns_mov_b32 s31, 0\nLspin2:\nds_read_b32 v5, v4\ns_add_u32 s31, s31, 1\ns_cmp_gt_u32 s31, 400000\ns_cbranch_scc1 Lspin2x\ns_waitcnt lgkmcnt(0)\nv_cmp_gt_u32 vcc, 4, v5\ns_cbranch_vccnz Lspin2\nLspin2x:")
            for c in range(C2, C2 + o.get("nc3", 6)):
                e("s_mov_b32 s69, s62"); ldreg(5, "s69", W4R(c), c); adv()
            C2 += o.get("nc3", 6)
        only(4, lambda: g.pollg(F_X1, 7, 15, rb="s38")); g.stamp("x")
        e("s_waitcnt lgkmcnt(0)\ns_barrier")
        if stop >= 5:
            e("s_barrier")
            def fo(): g.pollg(F_O, 8, 63)
            only(4, fo); g.stamp("x")
            for c in range(C2, 13):
                e("s_mov_b32 s69, s62"); ldreg(5, "s69", W4R(c), c); adv()
            ldreg(2, "s60", 240, 13); ldreg(1, "s61", 248, 13)
        e("s_barrier")
    if stop >= 5:
        e(f"s_mul_i32 s69, s28, 102400\ns_mul_i32 s3, s58, 25600\ns_add_u32 s69, s69, s3\ns_add_u32 s69, s69, {hx(WOP)}")
        if WO: vm.wait("wo"); wreg(25, "v3", 0, 120)
        else: lin(25, "s69", 0, "w")
        lin(5, "s56", 5 * WSL, 0); lin(5, "s57", 6 * WSL, 1); vm.wait("w")
        g.stamp("x")
        e("s_waitcnt lgkmcnt(0)\ns_barrier")
        if WO:
            e("s_mov_b32 s62, s55")
            for c in range(2, 7):
                e("s_mov_b32 s69, s62"); ldreg(5, "s69", W4R(c), c); adv()
        def w5(c):
            if c == 13: e("ds_write_b128 v14, v[240:243]\nds_write_b128 v14, v[244:247] offset:1024\nds_write_b128 v15, v[248:251]"); return
            off = ((c + 5) % 7) * WSL
            for q in range(5):
                a = off + q * 1024
                e(f"ds_write_b128 v{11+(a>>16)}, {R(W4R(c)+4*q)} offset:{a & 0xffff}")
        def ft(): g.pollg(F_T, 7, 15)
        only(4, ft); g.stamp("x")
        vm.wait(1)
        for c in range(11):
            e(f"s_waitcnt lgkmcnt({0 if c == 10 or not o.get('lag', 1) else 15})\ns_barrier")
            if c == 0:
                for cc in range(2, 7 if not WO else 4): vm.wait(cc); w5(cc)
            if c == 1 and WO:
                for cc in range(4, 7): vm.wait(cc); w5(cc)
            if 7 <= c + 5 <= 13: w5(c + 5)
    if o.get("stamps"):
        e("s_cmp_lg_u32 s22, 4\ns_cbranch_scc1 Lend"); g.dump_stamps("x", 1)
    e("s_endpgm")

def main(opt):
    g = G(opt); e = g.e; stop = opt.get("stop", 5)
    hdr = open("cdna_kernels/" + NAME + ".s.ref").read().split("\n")
    hdr = [l for l in hdr if l.startswith(";") and "@launch" not in l]
    out = hdr + ["; @launch grid=(256,1,1) block=(512,1,1) lds=163840",
        '.amdgcn_target "amdgcn-amd-amdhsa--gfx950"', ".text", f".globl {NAME}_kernel", ".p2align 8",
        f".type {NAME}_kernel,@function", f"{NAME}_kernel:"]
    prologue(g)
    lay = opt.get("lay", 0)
    if lay:
        e("s_branch Lcons"); packer_subs(g)
        if lay == 2: loader(g, "x4"); loader(g, "x5"); loader(g, "w"); loader_tail(g)
        e("Lcons:")
    j1_consumer(g)
    if stop >= 2: j2_consumer(g)
    if stop >= 3: j345_consumer(g)
    if opt.get("stamps"):
        e("s_cmp_lg_u32 s22, 0\ns_cbranch_scc1 Lend"); g.dump_stamps("c", 0)
    e("Lend:\ns_endpgm")
    if not lay: packer_subs(g)
    if lay != 2: loader(g, "x4"); loader(g, "x5"); loader(g, "w"); loader_tail(g)
    if "ldpol" in opt: g.L = [l.replace(" sc1", (" " + opt["ldpol"]) if opt["ldpol"] != "none" else "") if ("buffer_load_dwordx" in l and "v[224:227], v16" not in l) else l for l in g.L]
    if "stpol" in opt: g.L = [l.replace(" sc1", (" " + opt["stpol"]) if opt["stpol"] != "none" else "") if ("buffer_store_dwordx" in l and "sc0" not in l) else l for l in g.L]
    out += g.L
    out += ['.section .rodata,"a"', ".p2align 6", f".amdhsa_kernel {NAME}_kernel", "  .amdhsa_next_free_vgpr 256", "  .amdhsa_next_free_sgpr 102",
        "  .amdhsa_accum_offset 256", "  .amdhsa_group_segment_fixed_size 0", "  .amdhsa_kernarg_size 88", "  .amdhsa_user_sgpr_count 2",
        "  .amdhsa_user_sgpr_kernarg_segment_ptr 1", "  .amdhsa_system_sgpr_workgroup_id_x 1", ".end_amdhsa_kernel"]
    return "\n".join(out) + "\n"

if __name__ == "__main__":
    opt = {}
    for a in sys.argv[2:]:
        k, v = a.split("=")
        opt[k] = int(v) if v.lstrip("-").isdigit() else v.replace("_", " ")
    open(sys.argv[1], "w").write(main(opt))
```
